```python
import torch

def _softmax(x, axis=-1):
    return torch.softmax(x, dim=axis)
def _gelu(x):
    return torch.nn.functional.gelu(x, approximate="tanh")
def _silu(x):
    return torch.nn.functional.silu(x)
def _sigmoid(x):
    return torch.sigmoid(x)
def _layernorm(x, axis=-1, eps=1e-5):
    m = x.mean(dim=axis, keepdim=True)
    v = x.var(dim=axis, keepdim=True, unbiased=False)
    return (x - m) / torch.sqrt(v + eps)
def _scatter_add(tgt, idx, src, axis=0):
    return tgt.clone().index_add_(axis, idx, src)
def _segment_sum(src, seg, n):
    out = torch.zeros((n,) + src.shape[1:], dtype=src.dtype)
    return out.index_add_(0, seg, src)
def _pad(x, pw):
    flat = tuple(v for pair in reversed(pw) for v in pair)
    return torch.nn.functional.pad(x, flat)

kernel_name = 'parallel_sum__mha_block__dense_activation_mish__prompt'

def setup_inputs():

    _w = (lambda a: (lambda t: t.to(torch.bfloat16) if t.is_floating_point() else t)(torch.as_tensor(a)))
    def _A_setup():
        B, S, D, H = 1, 2048, 512, 32
        return {
            "x": _w((lambda *s: torch.randn(*s, dtype=torch.bfloat16) * 0.05)(B, S, D)),
            "wqkv": _w((lambda *s: torch.randn(*s, dtype=torch.bfloat16) * 0.05)(D, 3 * D)),
            "wo": _w((lambda *s: torch.randn(*s, dtype=torch.bfloat16) * 0.05)(D, D)),
        }
    _A_in = _A_setup()

    def _B_setup():
        B, S, D, F = 1, 2048, 512, 1792
        return {
            "x": _w((lambda *s: torch.randn(*s, dtype=torch.bfloat16) * 0.05)(B, S, D)),
            "w1": _w((lambda *s: torch.randn(*s, dtype=torch.bfloat16) * 0.8)(D, F) * (D ** -0.5)),
            "b1": _w((lambda *s: torch.randn(*s, dtype=torch.bfloat16) * 0.8)(F)),
            "w2": _w((lambda *s: torch.randn(*s, dtype=torch.bfloat16) * 0.2)(F, D) * (F ** -0.5)),
        }
    _B_in = _B_setup()

    return {
        "A_x": _A_in["x"],
        "A_wqkv": _A_in["wqkv"],
        "A_wo": _A_in["wo"],
        "B_x": _B_in["x"],
        "B_w1": _B_in["w1"],
        "B_b1": _B_in["b1"],
        "B_w2": _B_in["w2"],
    }

def reference(A_x, A_wqkv, A_wo, B_x, B_w1, B_b1, B_w2):
    def _A_ref(x, wqkv, wo):
        B, S, D = x.shape
        H = 32
        Dh = D // H
        qkv = (lambda x, *d: x.permute(*d))((x @ wqkv).reshape(B, S, 3, H, Dh), 2, 0, 3, 1, 4)
        q, k, v = qkv[0], qkv[1], qkv[2]
        scores = torch.einsum("bhqd,bhkd->bhqk", q, k) * (Dh ** -0.5)
        p = _softmax(scores, axis=-1)
        o = torch.einsum("bhqk,bhkd->bhqd", p, v)
        return (lambda x, *d: x.permute(*d))(o, 0, 2, 1, 3).reshape(B, S, D) @ wo

    def _B_ref(x, w1, b1, w2):
        h = torch.einsum("bsd,df->bsf", x, w1) + b1
        sp = torch.log1p(torch.exp(-torch.abs(h))) + torch.where(h > 0, h, torch.zeros_like(h))
        act = h * torch.tanh(sp)
        return torch.einsum("bsf,fd->bsd", act, w2)

    x = A_x
    xn = _layernorm(x, axis=-1)
    return x + _A_ref(xn, A_wqkv, A_wo) + _B_ref(xn, B_w1, B_b1, B_w2)
```

```python
import struct

def f2u(x):
    return struct.unpack('<I', struct.pack('<f', x))[0]

def fhex(x):
    return '0x%08x' % f2u(x)

def v(i, n=1):
    return f'v{i}' if n == 1 else f'v[{i}:{i+n-1}]'

def a(i, n=1):
    return f'a{i}' if n == 1 else f'a[{i}:{i+n-1}]'

def s(i, n=1):
    return f's{i}' if n == 1 else f's[{i}:{i+n-1}]'

class Kern:
    def __init__(self, name):
        self.name = name
        self.lines = []
        self.nlab = 0
        self.vm = []
        self.lg = []
    def __call__(self, txt):
        for ln in txt.strip('\n').split('\n'):
            self.lines.append('    ' + ln.strip())
    def c(self, txt):
        self.lines.append('    ; ' + txt)
    def label(self, l):
        self.lines.append(l + ':')
    def newlabel(self, base='L'):
        self.nlab += 1
        return f'{self.name}_{base}{self.nlab}'
    def vmop(self, txt, tag):
        self(txt)
        self.vm.append(tag)
    def vmwait(self, tag):
        idx = [i for i, t in enumerate(self.vm) if t == tag]
        if not idx:
            return
        n = len(self.vm) - 1 - idx[-1]
        assert n <= 63
        self(f's_waitcnt vmcnt({n})')
        self.vm = self.vm[idx[-1] + 1:]
    def vmwait_all(self):
        self('s_waitcnt vmcnt(0)')
        self.vm = []
    def lgop(self, txt, tag):
        self(txt)
        self.lg.append(tag)
    def lgwait(self, tag):
        idx = [i for i, t in enumerate(self.lg) if t == tag]
        if not idx:
            return
        n = len(self.lg) - 1 - idx[-1]
        assert n <= 15
        self(f's_waitcnt lgkmcnt({n})')
        self.lg = self.lg[idx[-1] + 1:]
    def lgwait_all(self):
        self('s_waitcnt lgkmcnt(0)')
        self.lg = []
    def srd(self, d, base_lo, base_hi, size):
        self(f's_mov_b32 s{d}, s{base_lo}')
        self(f's_and_b32 s{d+1}, s{base_hi}, 0xffff')
        self(f's_mov_b32 s{d+2}, {size:#x}')
        self(f's_mov_b32 s{d+3}, 0x20000')
    def text(self, vgprs, sgprs, accum=None, agprs=0):
        if accum is None:
            accum = (vgprs + 3) // 4 * 4
        nfv = accum + agprs if agprs else vgprs
        hdr = f'''.text
.globl {self.name}
.p2align 8
.type {self.name},@function
{self.name}:
'''
        body = '\n'.join(self.lines) + '\n'
        kd = f'''.section .rodata,"a"
.p2align 6
.amdhsa_kernel {self.name}
  .amdhsa_next_free_vgpr {nfv}
  .amdhsa_next_free_sgpr {sgprs}
  .amdhsa_accum_offset {accum}
  .amdhsa_group_segment_fixed_size 0
  .amdhsa_kernarg_size 80
  .amdhsa_user_sgpr_count 2
  .amdhsa_user_sgpr_kernarg_segment_ptr 1
  .amdhsa_system_sgpr_workgroup_id_x 1
.end_amdhsa_kernel
'''
        return hdr + body, kd
```

```python
import math, sys
from asmlib import *

LOG2E = 1.4426950408889634
LN2 = 0.6931471805599453
QSCALE = 0.25 * LOG2E

WS_QKV = 0
WS_TF = 0x600000
WS_WF = 0xF00000
WS_SIZE = 0x10000000

def MFMA(d, A, B, C):
    return f'v_mfma_f32_32x32x16_bf16 {d}, {A}, {B}, {C}'

STG = 45056
MISC = 3 * STG
L_SW = MISC
L_RSUM = MISC + 1024
L_RSQ = MISC + 1536
L_RR = MISC + 2048
L_RM = MISC + 2560
L_BIAS = MISC + 3072
K1_LDS = MISC + 3584

def gen_k1():
    k = Kern('k1_kernel')
    END = 'k1_end'
    SX, SW_, SWS, SSZ, SB = 4, 8, 12, 16, 20
    sW, sRB, sCH, sRBK, sCG = 24, 25, 26, 27, 28
    sC, sSTG, sDST, sXO, sWO, sWINC, sLX, sLW, sT0, sT1, sT2, sONES = 29, 30, 31, 32, 33, 34, 35, 52, 53, 54, 55, 56
    sFB, sQB, sTILE, sSWZ1, sSWZ2, sSCALE = 57, 58, 59, 60, 61, 62
    vTID, vLANE = 0, 1
    vX0, vX, vW0, vW = 8, 12, 16, 17
    vOX0, vOX1, vOW = 18, 19, 20
    vZ1, vZ2 = 21, 22
    vBIAS = 23
    vS1 = 24
    vS2 = 176
    ACC = 64
    XS = [128, 132]
    WSET = [136, 152]
    CS = 168
    vRS, vRQ = 172, 173
    vH = 174
    vN = 175

    k(f's_cmp_ge_u32 s2, 256')
    k(f's_cbranch_scc1 {END}')
    k('s_load_dwordx4 s[36:39], s[0:1], 0')
    k('s_load_dwordx2 s[40:41], s[0:1], 16')
    k('s_load_dwordx4 s[44:47], s[0:1], 32')
    k('s_load_dwordx2 s[48:49], s[0:1], 48')
    k('s_load_dwordx2 s[50:51], s[0:1], 72')
    k(f'v_lshrrev_b32 v2, 6, v0')
    k(f'v_and_b32 v{vLANE}, 63, v0')
    k(f'v_readfirstlane_b32 s{sW}, v2')
    k(f'v_lshrrev_b32 v{vH}, 5, v{vLANE}')
    k(f'v_and_b32 v{vN}, 31, v{vLANE}')
    k(f's_and_b32 s{sT0}, s2, 7')
    k(f's_lshr_b32 s{sT1}, s2, 3')
    k(f's_and_b32 s{sRBK}, s{sT0}, 1')
    k(f's_lshl_b32 s{sRBK}, s{sRBK}, 3')
    k(f's_and_b32 s{sT2}, s{sT1}, 7')
    k(f's_add_u32 s{sRBK}, s{sRBK}, s{sT2}')
    k(f's_lshr_b32 s{sCG}, s{sT0}, 1')
    k(f's_lshl_b32 s{sCG}, s{sCG}, 2')
    k(f's_lshr_b32 s{sT2}, s{sT1}, 3')
    k(f's_add_u32 s{sCG}, s{sCG}, s{sT2}')
    k(f's_and_b32 s{sRB}, s{sW}, 3')
    k(f's_lshr_b32 s{sCH}, s{sW}, 2')
    k(f's_lshr_b32 s{sT0}, s{sCG}, 1')
    k(f's_mul_i32 s{sFB}, s{sT0}, 7')
    k(f's_and_b32 s{sT0}, s{sCG}, 1')
    k(f's_lshl_b32 s{sT0}, s{sT0}, 2')
    k(f's_add_u32 s{sFB}, s{sFB}, s{sT0}')
    k(f's_mul_i32 s{sQB}, s{sCG}, 3')
    k(f's_lshl_b32 s{sTILE}, s{sRBK}, 2')
    k(f's_add_u32 s{sTILE}, s{sTILE}, s{sRB}')
    k(f's_mov_b32 s{sONES}, 0x3f803f80')
    k(f'v_lshrrev_b32 v2, 3, v{vLANE}')
    k(f'v_and_b32 v3, 7, v{vLANE}')
    k(f'v_lshrrev_b32 v4, 4, v{vLANE}')
    k(f'v_xor_b32 v5, v3, v4')
    k(f'v_lshlrev_b32 v5, 4, v5')
    k(f'v_lshl_add_u32 v{vOX0}, v2, 10, v5')
    k(f'v_xor_b32 v{vOX1}, 64, v{vOX0}')
    k(f'v_add_u32 v{vOX1}, 0x2000, v{vOX1}')
    k(f'v_lshrrev_b32 v2, 1, v{vN}')
    k(f'v_and_b32 v2, 7, v2')
    k(f'v_xor_b32 v2, v2, v{vH}')
    k(f'v_lshlrev_b32 v2, 4, v2')
    k(f'v_lshl_add_u32 v2, v{vN}, 7, v2')
    k(f's_lshl_b32 s{sT0}, s{sRB}, 12')
    k(f'v_add_u32 v2, s{sT0}, v2')
    for ks in range(4):
        k(f'v_xor_b32 v{vX0+ks}, {ks*32}, v2')
    k(f'v_and_b32 v2, 15, v{vLANE}')
    k(f'v_lshrrev_b32 v2, 2, v2')
    k(f'v_lshl_add_u32 v2, v{vH}, 3, v2')
    k(f'v_lshlrev_b32 v2, 6, v2')
    k(f'v_lshrrev_b32 v3, 4, v{vLANE}')
    k(f'v_and_b32 v3, 1, v3')
    k(f'v_lshl_add_u32 v2, v3, 5, v2')
    k(f'v_and_b32 v3, 3, v{vLANE}')
    k(f'v_lshl_add_u32 v2, v3, 3, v2')
    k(f'v_add_u32 v{vW0}, 16384, v2')
    k(f'v_lshlrev_b32 v2, 12, v{vH}')
    k(f'v_lshl_add_u32 v{vZ1}, v{vN}, 1, v2')
    k(f'v_add_u32 v{vZ2}, 0x2000, v{vZ1}')
    k(f'v_lshlrev_b32 v2, 2, v{vTID}')
    k(f'v_add_u32 v2, {MISC}, v2')
    k(f'v_mov_b32 v3, 0')
    k(f'ds_write_b32 v2, v3')
    k('s_waitcnt lgkmcnt(0)')
    k.srd(SX, 36, 37, 2048 * 512 * 2)
    k.srd(SWS, 50, 51, WS_SIZE)
    k.srd(SB, 46, 47, 1792 * 2)
    k(f's_cmp_lt_u32 s2, 64')
    k(f's_cselect_b32 s{SSZ}, s40, s48')
    k(f's_cselect_b32 s{SSZ+1}, s41, s49')
    k(f's_mov_b32 s{SSZ+2}, {1792*1024:#x}')
    k(f's_cselect_b32 s{SSZ+2}, {512*1024:#x}, s{SSZ+2}')
    k(f's_and_b32 s{SSZ+1}, s{SSZ+1}, 0xffff')
    k(f's_mov_b32 s{SSZ+3}, 0x20000')
    k(f's_lshr_b32 s{sT0}, s2, 1')
    k(f's_sub_u32 s{sT1}, s{sT0}, 32')
    k(f's_cmp_lt_u32 s2, 64')
    k(f's_cselect_b32 s{sT1}, s{sT0}, s{sT1}')
    k(f's_lshl_b32 s{sT1}, s{sT1}, 14')
    k(f's_and_b32 s{sT2}, s2, 1')
    k(f's_lshl_b32 s{sT2}, s{sT2}, 3')
    k(f's_add_u32 s{sT2}, s{sT2}, s{sW}')
    k(f's_lshl_b32 s{sSWZ1}, s{sT2}, 6')
    k(f's_add_u32 s{sT1}, s{sT1}, s{sSWZ1}')
    for j in range(8):
        k(f'buffer_load_ushort v{vS1+j}, v{vZ1 if j < 4 else vZ2}, s[{SSZ}:{SSZ+3}], s{sT1} offen offset:{(j%4)*1024}')
    k(f's_lshl_b32 s{sSWZ1}, s{sT0}, 4')
    k(f's_add_u32 s{sSWZ1}, s{sSWZ1}, s{sT2}')
    k(f's_lshl_b32 s{sSWZ1}, s{sSWZ1}, 10')
    k(f's_add_u32 s{sSWZ1}, s{sSWZ1}, {WS_WF:#x}')
    L2 = k.newlabel('noswz2')
    k(f's_cmp_ge_u32 s2, 32')
    k(f's_cbranch_scc1 {L2}')
    k.srd(SSZ, 48, 49, 1792 * 1024)
    k(f's_add_u32 s{sT1}, s{sT0}, 96')
    k(f's_lshl_b32 s{sT1}, s{sT1}, 14')
    k(f's_lshl_b32 s{sSWZ2}, s{sT2}, 6')
    k(f's_add_u32 s{sT1}, s{sT1}, s{sSWZ2}')
    for j in range(8):
        k(f'buffer_load_ushort v{vS2+j}, v{vZ1 if j < 4 else vZ2}, s[{SSZ}:{SSZ+3}], s{sT1} offen offset:{(j%4)*1024}')
    k.label(L2)
    k(f's_add_u32 s{sSWZ2}, s{sSWZ1}, {128*16*1024:#x}')
    k(f's_lshl_b32 s{sT0}, s{sFB}, 6')
    k(f'v_lshlrev_b32 v2, 1, v{vTID}')
    k(f'buffer_load_ushort v{vBIAS}, v2, s[{SB}:{SB+3}], s{sT0} offen')
    k(f's_lshl_b32 s{sXO}, s{sRBK}, 17')
    k(f's_lshl_b32 s{sT0}, s{sW}, 14')
    k(f's_add_u32 s{sXO}, s{sXO}, s{sT0}')
    k(f's_lshl_b32 s{sLX}, s{sW}, 11')
    k(f's_mov_b32 s{sC}, 0')
    k(f's_mov_b32 s{sSTG}, 0')
    k(f's_mov_b32 s{sDST}, 0')
    ROLE1 = k.newlabel('role1')
    k(f's_cmp_eq_u32 s{sCH}, 1')
    k(f's_cbranch_scc1 {ROLE1}')

    def dma(nslot):
        k(f's_add_u32 m0, s{sDST}, s{sLX}')
        k(f's_add_u32 s{sT0}, s{sDST}, s{sLW}')
        k(f'buffer_load_dwordx4 v{vOX0}, s[{SX}:{SX+3}], s{sXO} offen lds')
        k(f's_add_u32 m0, m0, 1024')
        k(f's_add_u32 s{sXO}, s{sXO}, 128')
        k(f's_sub_u32 s{sT1}, s{sXO}, 128')
        k(f'buffer_load_dwordx4 v{vOX1}, s[{SX}:{SX+3}], s{sT1} offen lds')
        for j in range(nslot):
            k(f's_add_u32 m0, s{sT0}, {j*960}')
            k('s_nop 0')
            k(f'buffer_load_dwordx4 v{vOW}, s[{SW_}:{SW_+3}], s{sWO} offen offset:{j*64} lds')
        k(f's_add_u32 s{sWO}, s{sWO}, s{sWINC}')
        k(f's_add_u32 s{sDST}, s{sDST}, {STG}')
        k(f's_cmp_eq_u32 s{sDST}, {3*STG}')
        k(f's_cselect_b32 s{sDST}, 0, s{sDST}')

    def role(rid, types):
        nslot = len(types)
        sb = 0 if rid == 0 else 4
        N = 2 + nslot
        ldw = 3584 if rid == 0 else 3072
        tag = f'r{rid}_' + ''.join(types)
        if rid == 0:
            k.srd(SW_, 44, 45, 512 * 3584)
            k(f's_lshl_b32 s{sWO}, s{sFB}, 6')
        else:
            k.srd(SW_, 38, 39, 512 * 3072)
            k(f's_lshl_b32 s{sWO}, s{sQB}, 6')
        k(f's_mul_i32 s{sT0}, s{sRB}, {16*ldw}')
        k(f's_add_u32 s{sWO}, s{sWO}, s{sT0}')
        k(f's_mov_b32 s{sWINC}, {64*ldw}')
        k(f's_mul_i32 s{sLW}, s{sRB}, {7*1024}')
        k(f's_add_u32 s{sLW}, s{sLW}, {16384 + sb*1024}')
        k(f'v_lshrrev_b32 v2, 2, v{vLANE}')
        k(f'v_mul_u32_u24 v2, {ldw}, v2')
        k(f'v_and_b32 v3, 3, v{vLANE}')
        k(f'v_lshl_add_u32 v{vOW}, v3, 4, v2')
        dma(nslot)
        dma(nslot)
        for i in range(16 * nslot):
            k(f'v_mov_b32 v{ACC+i}, 0')
        for i in range(4):
            k(f'v_mov_b32 v{CS+i}, 0')
        k(f'v_mov_b32 v{vRS}, 0')
        k(f'v_mov_b32 v{vRQ}, 0')
        for ks in range(4):
            k(f'v_mov_b32 v{vX+ks}, v{vX0+ks}')
        k(f'v_add_u32 v{vW}, {sb*1024}, v{vW0}')
        k(f'v_mov_b32 v{vW0}, v{vW}')
        LOOP = k.newlabel('loop')
        W0 = k.newlabel('w0'); W1 = k.newlabel('w1'); ND = k.newlabel('nodma')
        k.label(LOOP)
        k(f's_cmp_eq_u32 s{sC}, 7')
        k(f's_cbranch_scc1 {W0}')
        k(f's_waitcnt vmcnt({N})')
        k(f's_branch {W1}')
        k.label(W0)
        k('s_waitcnt vmcnt(0)')
        k.label(W1)
        k('s_barrier')
        def reads(ks, st):
            k(f'ds_read_b128 {v(XS[st],4)}, v{vX+ks}')
            for j in range(nslot):
                off = (ks * 7 + j) * 1024
                k(f'ds_read_b64_tr_b16 {v(WSET[st]+4*j,2)}, v{vW} offset:{off}')
                k(f'ds_read_b64_tr_b16 {v(WSET[st]+4*j+2,2)}, v{vW} offset:{off+256}')
        reads(0, 0)
        k(f's_cmp_ge_u32 s{sC}, 6')
        k(f's_cbranch_scc1 {ND}')
        dma(nslot)
        k.label(ND)
        for ks in range(4):
            st = ks & 1
            k('s_waitcnt lgkmcnt(0)')
            if ks < 3:
                reads(ks + 1, st ^ 1)
            for j in range(nslot):
                X = v(XS[st], 4); W = v(WSET[st] + 4 * j, 4); A = v(ACC + 16 * j, 16)
                if types[j] == 'N':
                    k(MFMA(A, X, W, A))
                else:
                    k(MFMA(A, W, X, A))
                if rid == 1 and j < 2:
                    for r in range(4):
                        if j == 0:
                            k(f'v_dot2c_f32_bf16 v{vRS}, s{sONES}, v{XS[st]+r}')
                        else:
                            k(f'v_dot2c_f32_bf16 v{vRQ}, v{XS[st]+r}, v{XS[st]+r}')
            SK = k.newlabel('nocs')
            k(f's_cmp_eq_u32 s{sRB}, {ks}')
            k(f's_cbranch_scc0 {SK}')
            for j in range(nslot):
                for r in range(4):
                    k(f'v_dot2c_f32_bf16 v{CS+j}, s{sONES}, v{WSET[st]+4*j+r}')
            k.label(SK)
        k(f's_add_u32 s{sSTG}, s{sSTG}, {STG}')
        k(f's_cmp_eq_u32 s{sSTG}, {3*STG}')
        k(f's_cselect_b32 s{sSTG}, 0, s{sSTG}')
        for ks in range(4):
            k(f'v_add_u32 v{vX+ks}, s{sSTG}, v{vX0+ks}')
        k(f'v_add_u32 v{vW}, s{sSTG}, v{vW0}')
        k(f's_add_u32 s{sC}, s{sC}, 1')
        k(f's_cmp_lt_u32 s{sC}, 8')
        k(f's_cbranch_scc1 {LOOP}')
        k('s_nop 3')
        k(f'v_lshlrev_b32 v2, 2, v{vN}')
        for j in range(nslot):
            k(f'ds_add_f32 v2, v{CS+j} offset:{L_SW + (sb+j)*128}') if L_SW + (sb + j) * 128 < 65536 else None
        assert L_SW >= 65536
        k(f'v_add_u32 v2, {L_SW}, v2')
        for j in range(nslot):
            k(f'ds_add_f32 v2, v{CS+j} offset:{(sb+j)*128}')
        if rid == 1:
            k(f's_lshl_b32 s{sT0}, s{sRB}, 7')
            k(f'v_add_u32 v3, s{sT0}, v2')
            k(f'ds_add_f32 v3, v{vRS} offset:{L_RSUM - L_SW}')
            k(f'ds_add_f32 v3, v{vRQ} offset:{L_RSQ - L_SW}')
        else:
            NB = k.newlabel('nobias')
            k(f's_cmp_ge_u32 s{sW}, 2')
            k(f's_cbranch_scc1 {NB}')
            k(f'v_lshlrev_b32 v3, 16, v{vBIAS}')
            k(f'v_mul_f32 v3, {fhex(LOG2E)}, v3')
            k(f'v_lshlrev_b32 v4, 2, v{vTID}')
            k(f'v_add_u32 v4, {L_BIAS}, v4')
            k(f'ds_write_b32 v4, v3')
            k.label(NB)
        for (base, soff, cond) in ((vS1, sSWZ1, None), (vS2, sSWZ2, 32)):
            if cond is not None:
                SKZ = k.newlabel('noswzst')
                k(f's_cmp_ge_u32 s2, {cond}')
                k(f's_cbranch_scc1 {SKZ}')
            for r in range(4):
                k(f'v_lshl_or_b32 v{base+r}, v{base+2*r+1}, 16, v{base+2*r}') if False else None
            for r in range(4):
                k(f'v_lshl_or_b32 v{32+r}, v{base+2*r+1}, 16, v{base+2*r}')
            k(f'v_lshlrev_b32 v36, 4, v{vLANE}')
            k(f'buffer_store_dwordx4 v[32:35], v36, s[{SWS}:{SWS+3}], s{soff} offen')
            k('s_nop 1')
            if cond is not None:
                k.label(SKZ)
        k('s_waitcnt lgkmcnt(0)')
        k('s_barrier')
        if rid == 0:
            NS = k.newlabel('nostat')
            k(f's_cmp_ge_u32 s{sW}, 2')
            k(f's_cbranch_scc1 {NS}')
            k(f'v_lshlrev_b32 v4, 2, v{vTID}')
            k(f'v_add_u32 v4, {L_RSUM}, v4')
            k(f'ds_read_b32 v5, v4')
            k(f'ds_read_b32 v6, v4 offset:{L_RSQ - L_RSUM}')
            k('s_waitcnt lgkmcnt(0)')
            k(f'v_mul_f32 v5, {fhex(1/512)}, v5')
            k(f'v_mul_f32 v6, {fhex(1/512)}, v6')
            k(f'v_fma_f32 v6, -v5, v5, v6')
            k(f'v_max_f32 v6, 0, v6')
            k(f'v_add_f32 v6, {fhex(1e-5)}, v6')
            k(f'v_rsq_f32 v6, v6')
            k('s_nop 0')
            k(f'v_mul_f32 v5, v5, v6')
            k(f'ds_write_b32 v4, v6 offset:{L_RR - L_RSUM}')
            k(f'ds_write_b32 v4, v5 offset:{L_RM - L_RSUM}')
            k('s_waitcnt lgkmcnt(0)')
            k.label(NS)
        k('s_barrier')
        vR, vRM = 2, 3
        k(f's_lshl_b32 s{sT0}, s{sRB}, 7')
        k(f'v_lshlrev_b32 v4, 2, v{vN}')
        k(f'v_add_u32 v4, s{sT0}, v4')
        k(f'v_add_u32 v4, {L_RR}, v4')
        k(f'ds_read_b32 v{vR}, v4')
        k(f'ds_read_b32 v{vRM}, v4 offset:{L_RM - L_RR}')
        k(f'v_lshlrev_b32 v5, 4, v{vH}')
        k(f'v_add_u32 v5, {L_SW}, v5')
        k(f'v_lshlrev_b32 v6, 4, v{vLANE}')
        if 'N' in types:
            k(f'v_lshlrev_b32 v7, 4, v{vH}')
            k(f'v_add_u32 v7, s{sT0}, v7')
            k(f'v_add_u32 v7, {L_RR}, v7')
            for g in range(4):
                k(f'ds_read_b128 {v(128+4*g,4)}, v7 offset:{g*32}')
                k(f'ds_read_b128 {v(144+4*g,4)}, v7 offset:{g*32 + L_RM - L_RR}')
            k(f'v_lshrrev_b32 v8, 4, v{vN}')
            k(f'v_lshlrev_b32 v8, 16, v8')
            k(f'v_lshl_add_u32 v8, v{vH}, 8, v8')
            k(f'v_and_b32 v9, 15, v{vN}')
            k(f'v_lshl_add_u32 v8, v9, 4, v8')
        k('s_waitcnt lgkmcnt(0)')
        if rid == 0:
            vRL, vRML, vC2 = 10, 11, 12
            k(f'v_mul_f32 v{vRL}, {fhex(LOG2E)}, v{vR}')
            k(f'v_mul_f32 v{vRML}, {fhex(LOG2E)}, v{vRM}')
            k(f'v_mov_b32 v{vC2}, {fhex(-2*LN2)}')
            for j in range(nslot):
                SKS = None
                if j == 3:
                    SKS = k.newlabel('noslot3')
                    k(f's_and_b32 s{sT0}, s{sCG}, 1')
                    k(f's_cbranch_scc1 {SKS}')
                A = ACC + 16 * j
                SWR, CLR, T = 32, 48, 128
                for g in range(4):
                    k(f'ds_read_b128 {v(SWR+4*g,4)}, v5 offset:{j*128 + g*32}')
                    k(f'ds_read_b128 {v(CLR+4*g,4)}, v5 offset:{L_BIAS - L_SW + j*128 + g*32}')
                k('s_waitcnt lgkmcnt(0)')
                for i in range(16):
                    k(f'v_fma_f32 v{SWR+i}, -v{vRML}, v{SWR+i}, v{CLR+i}')
                for i in range(16):
                    k(f'v_fma_f32 v{A+i}, v{A+i}, v{vRL}, v{SWR+i}')
                for i in range(16):
                    k(f'v_exp_f32 v{T+i}, v{A+i}')
                for i in range(16):
                    k(f'v_add_f32 v{CLR+i}, 2.0, v{T+i}')
                for i in range(16):
                    k(f'v_fma_f32 v{T+i}, v{T+i}, v{CLR+i}, 2.0')
                for i in range(16):
                    k(f'v_rcp_f32 v{T+i}, v{T+i}')
                for i in range(16):
                    k(f'v_fmaak_f32 v{T+i}, v{T+i}, v{vC2}, {fhex(LN2)}')
                for i in range(16):
                    k(f'v_mul_f32 v{A+i}, v{A+i}, v{T+i}')
                for i in range(8):
                    k(f'v_cvt_pk_bf16_f32 v{T+i}, v{A+2*i}, v{A+2*i+1}')
                k(f's_mul_i32 s{sT0}, s{sTILE}, 144')
                k(f's_add_u32 s{sT0}, s{sT0}, s{sFB}')
                k(f's_add_u32 s{sT0}, s{sT0}, s{sFB}')
                k(f's_add_u32 s{sT0}, s{sT0}, {32 + 2*j}')
                k(f's_lshl_b32 s{sT0}, s{sT0}, 10')
                k(f's_add_u32 s{sT0}, s{sT0}, {WS_TF:#x}')
                k(f'buffer_store_dwordx4 {v(T,4)}, v6, s[{SWS}:{SWS+3}], s{sT0} offen')
                k(f'buffer_store_dwordx4 {v(T+4,4)}, v6, s[{SWS}:{SWS+3}], s{sT0} offen offset:1024')
                k('s_nop 1')
                if SKS:
                    k.label(SKS)
        else:
            for j in range(nslot):
                A = ACC + 16 * j
                SWR, T = 32, 48
                k(f's_add_u32 s{sT1}, s{sQB}, {j}')
                k(f's_lshl_b32 s{sT0}, s{sT1}, 17')
                k(f's_lshl_b32 s{sT2}, s{sTILE}, 10')
                k(f's_add_u32 s{sT0}, s{sT0}, s{sT2}')
                if types[j] == 'T':
                    k(f's_cmp_lt_u32 s{sT1}, 16')
                    k(f's_cselect_b32 s{sSCALE}, {fhex(QSCALE)}, {fhex(1.0)}')
                    for g in range(4):
                        k(f'ds_read_b128 {v(SWR+4*g,4)}, v5 offset:{(sb+j)*128 + g*32}')
                    k(f'v_mul_f32 v10, s{sSCALE}, v{vR}')
                    k(f'v_mul_f32 v11, s{sSCALE}, v{vRM}')
                    k('s_waitcnt lgkmcnt(0)')
                    for i in range(16):
                        k(f'v_mul_f32 v{SWR+i}, v11, v{SWR+i}')
                    for i in range(16):
                        k(f'v_fma_f32 v{A+i}, v{A+i}, v10, -v{SWR+i}')
                    for i in range(8):
                        k(f'v_cvt_pk_bf16_f32 v{T+i}, v{A+2*i}, v{A+2*i+1}')
                    k(f's_add_u32 s{sT2}, s{sT0}, 0x10000')
                    k(f'buffer_store_dwordx4 {v(T,4)}, v6, s[{SWS}:{SWS+3}], s{sT0} offen')
                    k(f'buffer_store_dwordx4 {v(T+4,4)}, v6, s[{SWS}:{SWS+3}], s{sT2} offen')
                    k('s_nop 1')
                else:
                    k(f'v_lshlrev_b32 v9, 2, v{vN}')
                    k(f'v_add_u32 v9, {L_SW}, v9')
                    k(f'ds_read_b32 v10, v9 offset:{(sb+j)*128}')
                    k('s_waitcnt lgkmcnt(0)')
                    for i in range(16):
                        k(f'v_mul_f32 v{SWR+i}, v10, v{144+i}')
                    for i in range(16):
                        k(f'v_fma_f32 v{A+i}, v{A+i}, v{128+i}, -v{SWR+i}')
                    for i in range(8):
                        k(f'v_cvt_pk_bf16_f32 v{T+i}, v{A+2*i}, v{A+2*i+1}')
                    k(f'buffer_store_dwordx4 {v(T,4)}, v8, s[{SWS}:{SWS+3}], s{sT0} offen')
                    k(f'buffer_store_dwordx4 {v(T+4,4)}, v8, s[{SWS}:{SWS+3}], s{sT0} offen offset:512')
                    k('s_nop 1')
        k('s_endpgm')

    role(0, ['F'] * 4)
    k.label(ROLE1)
    V1 = k.newlabel('ttn'); V2 = k.newlabel('nnn')
    k(f's_cmp_eq_u32 s{sCG}, 10')
    k(f's_cbranch_scc1 {V1}')
    k(f's_cmp_gt_u32 s{sCG}, 10')
    k(f's_cbranch_scc1 {V2}')
    role(1, ['T', 'T', 'T'])
    k.label(V1)
    role(1, ['T', 'T', 'N'])
    k.label(V2)
    role(1, ['N', 'N', 'N'])
    k.label(END)
    k('s_endpgm')
    return k.text(184, 64)

def gen_k2():
    k = Kern('k2_kernel')
    END = 'k2_end'
    SWS = 4
    sW, sHEAD, sQT, sIT, sT0, sT1, sFB = 8, 9, 10, 11, 12, 13, 14
    sMASK = 16
    vLANE, vKA, vVA, vO16 = 1, 2, 3, 4
    QF = 8
    NEGM = 16
    O = 32
    S = [48, 64]
    P = 80
    KF = [88, 92]
    VF = [96, 104]
    T = 112
    k('s_cmp_ge_u32 s2, 256')
    k(f's_cbranch_scc1 {END}')
    k('s_load_dwordx2 s[20:21], s[0:1], 72')
    k('v_lshrrev_b32 v2, 6, v0')
    k(f'v_and_b32 v{vLANE}, 63, v0')
    k(f'v_readfirstlane_b32 s{sW}, v2')
    k(f's_and_b32 s{sHEAD}, s2, 31')
    k(f's_lshr_b32 s{sQT}, s2, 5')
    k(f's_lshl_b32 s{sQT}, s{sQT}, 3')
    k(f'v_lshlrev_b32 v{vO16}, 4, v{vLANE}')
    k(f's_add_u32 s{sQT}, s{sQT}, s{sW}')
    k('s_waitcnt lgkmcnt(0)')
    k.srd(SWS, 20, 21, WS_SIZE)
    k(f's_lshl_b32 s{sT0}, s{sHEAD}, 16')
    k(f's_lshl_b32 s{sT1}, s{sQT}, 10')
    k(f's_add_u32 s{sT1}, s{sT1}, s{sT0}')
    k(f'buffer_load_dwordx4 {v(QF,4)}, v{vO16}, s[{SWS}:{SWS+3}], s{sT1} offen')
    k(f's_lshl_b32 s{sT1}, s{sW}, 10')
    k(f's_add_u32 s{sT0}, s{sT0}, s{sT1}')
    k(f's_add_u32 s22, s{sT0}, {32*65536:#x}')
    k(f's_add_u32 s23, s{sT0}, {64*65536:#x}')
    for i in range(8):
        k(f's_add_u32 m0, s{sT1}, {i*8192}')
        k(f's_add_u32 s24, s22, {i*8192}')
        k(f'buffer_load_dwordx4 v{vO16}, s[{SWS}:{SWS+3}], s24 offen lds')
        k(f's_add_u32 m0, s{sT1}, {65536 + i*8192}')
        k(f's_add_u32 s24, s23, {i*8192}')
        k(f'buffer_load_dwordx4 v{vO16}, s[{SWS}:{SWS+3}], s24 offen lds')
    k(f'v_mov_b32 v{vKA}, v{vO16}')
    k(f'v_lshrrev_b32 v5, 5, v{vLANE}')
    k(f'v_lshlrev_b32 v5, 8, v5')
    k(f'v_and_b32 v6, 15, v{vLANE}')
    k(f'v_lshl_add_u32 v5, v6, 4, v5')
    k(f'v_add_u32 v{vVA}, 0x10000, v5')
    k(f's_mov_b32 s{sMASK}, 0x0000ffff')
    k(f's_mov_b32 s{sMASK+1}, 0x0000ffff')
    for i in range(16):
        k(f'v_mov_b32 v{VF[0]+i}, 0x3f803f80')
    k(f's_mov_b32 s{sFB}, 0')
    k('s_mov_b32 s15, 3')
    k('s_waitcnt vmcnt(12)')
    k('s_barrier')
    k(f'ds_read_b128 {v(KF[0],4)}, v{vKA}')
    k('s_waitcnt lgkmcnt(0)')
    k(MFMA(v(S[0],16), v(KF[0],4), v(QF,4), '0'))
    k('s_nop 15')
    k(f'v_max3_f32 v{T}, v{S[0]}, v{S[0]+1}, v{S[0]+2}')
    for i in range(3, 15, 2):
        k(f'v_max3_f32 v{T}, v{T}, v{S[0]+i}, v{S[0]+i+1}')
    k(f'v_max_f32 v{T}, v{T}, v{S[0]+15}')
    RESTART = k.newlabel('restart')
    k.label(RESTART)
    k(f'v_mov_b32 v{T+1}, v{T}')
    k('s_nop 1')
    k(f'v_permlane32_swap_b32 v{T}, v{T+1}')
    k('s_nop 1')
    k(f'v_max_f32 v{T}, v{T}, v{T+1}')
    for i in range(16):
        k(f'v_sub_f32 v{NEGM+i}, 0, v{T}')
    for i in range(16):
        k(f'v_mov_b32 v{O+i}, 0')
    k(f'v_mov_b32 v{vKA}, v{vO16}')
    k(f'v_lshrrev_b32 v5, 5, v{vLANE}')
    k(f'v_lshlrev_b32 v5, 8, v5')
    k(f'v_and_b32 v6, 15, v{vLANE}')
    k(f'v_lshl_add_u32 v5, v6, 4, v5')
    k(f'v_add_u32 v{vVA}, 0x10000, v5')
    def rdK(t_off, buf):
        k(f'ds_read_b128 {v(KF[buf],4)}, v{vKA} offset:{t_off*1024}')
    def rdV(t_off, buf):
        k(f's_mov_b64 exec, s[{sMASK}:{sMASK+1}]')
        k(f'ds_read_b128 {v(VF[buf],4)}, v{vVA} offset:{t_off*1024}')
        k(f'ds_read_b128 {v(VF[buf]+4,4)}, v{vVA} offset:{t_off*1024+512}')
        k('s_mov_b64 exec, -1')
    rdK(0, 0); rdK(1, 1); rdV(0, 0); rdV(1, 1)
    k('s_waitcnt lgkmcnt(0)')
    k(MFMA(v(S[0],16), v(KF[0],4), v(QF,4), v(NEGM,16)))
    k('s_nop 7')
    k(f's_mov_b32 s{sIT}, 0')
    LOOP = k.newlabel('loop'); NB = k.newlabel('nobar')
    k.label(LOOP)
    k(f's_cmp_eq_u32 s{sIT}, s15')
    k(f's_cbranch_scc0 {NB}')
    k('s_waitcnt vmcnt(0)')
    k('s_barrier')
    k.label(NB)
    for j in range(4):
        b = j & 1
        cur, nxt = S[b], S[b ^ 1]
        k('s_waitcnt lgkmcnt(2)')
        k(MFMA(v(nxt,16), v(KF[b^1],4), v(QF,4), v(NEGM,16)))
        rdK(j + 2, b)
        e = lambda i: k(f'v_exp_f32 v{cur+i}, v{cur+i}')
        c = lambda i: k(f'v_cvt_pk_bf16_f32 v{P+i}, v{cur+2*i}, v{cur+2*i+1}')
        e(0); e(1); e(2); e(3); c(0); e(4); e(5); c(1); e(6); e(7); c(2); e(8); c(3); e(9); e(10)
        k(MFMA(v(O,16), v(VF[b],4), v(P,4), v(O,16)))
        e(11); c(4); e(12); e(13); c(5); e(14); e(15); c(6); k('s_nop 0'); c(7)
        k('s_nop 1')
        k(MFMA(v(O,16), v(VF[b]+4,4), v(P+4,4), v(O,16)))
        rdV(j + 2, b)
    k(f'v_add_u32 v{vKA}, 0x1000, v{vKA}')
    k(f'v_add_u32 v{vVA}, 0x1000, v{vVA}')
    k(f's_add_u32 s{sIT}, s{sIT}, 1')
    k(f's_cmp_lt_u32 s{sIT}, 16')
    k(f's_cbranch_scc1 {LOOP}')
    k('s_waitcnt lgkmcnt(0)')
    k('s_nop 15')
    DONE = k.newlabel('done')
    k(f's_cmp_eq_u32 s{sFB}, 1')
    k(f's_cbranch_scc1 {DONE}')
    k(f'v_mov_b32 v{T}, {fhex(2.0**40)}')
    k(f'v_cmp_nlt_f32 vcc, v{O+8}, v{T}')
    k(f'v_mov_b32 v{T+1}, 0x207')
    for i in range(8):
        k(f'v_cmp_class_f32 s[26:27], v{O+i}, v{T+1}')
        k('s_or_b64 vcc, vcc, s[26:27]')
    k('s_cmp_eq_u64 vcc, 0')
    k(f's_cbranch_scc1 {DONE}')
    k(f's_mov_b32 s{sFB}, 1')
    k('s_mov_b32 s15, 99')
    k(f'v_mov_b32 v{vKA}, v{vO16}')
    k(f'v_mov_b32 v{T}, 0xff800000')
    k(f's_mov_b32 s{sIT}, 0')
    FL = k.newlabel('fbloop')
    k.label(FL)
    k(f'ds_read_b128 {v(KF[0],4)}, v{vKA}')
    k('s_waitcnt lgkmcnt(0)')
    k(MFMA(v(S[0],16), v(KF[0],4), v(QF,4), '0'))
    k('s_nop 15')
    for i in range(0, 16, 2):
        k(f'v_max3_f32 v{T}, v{T}, v{S[0]+i}, v{S[0]+i+1}')
    k(f'v_add_u32 v{vKA}, 0x400, v{vKA}')
    k(f's_add_u32 s{sIT}, s{sIT}, 1')
    k(f's_cmp_lt_u32 s{sIT}, 64')
    k(f's_cbranch_scc1 {FL}')
    k(f's_branch {RESTART}')
    k.label(DONE)
    k(f'v_rcp_f32 v{T}, v{O+8}')
    k('s_nop 0')
    for i in range(8):
        k(f'v_mul_f32 v{O+i}, v{O+i}, v{T}')
    for i in range(4):
        k(f'v_cvt_pk_bf16_f32 v{T+4+i}, v{O+2*i}, v{O+2*i+1}')
    k(f's_mul_i32 s{sT0}, s{sQT}, 144')
    k(f's_add_u32 s{sT0}, s{sT0}, s{sHEAD}')
    k(f's_lshl_b32 s{sT0}, s{sT0}, 10')
    k(f's_add_u32 s{sT0}, s{sT0}, {WS_TF:#x}')
    k(f'buffer_store_dwordx4 {v(T+4,4)}, v{vO16}, s[{SWS}:{SWS+3}], s{sT0} offen')
    k.label(END)
    k('s_endpgm')
    return k.text(120, 32)

K3_ROW = 272
K3_REG = 64 * K3_ROW
K3_LDS = 8 * K3_REG
def gen_k3():
    k = Kern('k3_kernel')
    END = 'k3_end'
    SWS, SX, SO = 4, 8, 12
    sW, sTB, sNB, sT0, sT1, sTO, sWO = 16, 17, 18, 19, 20, 21, 22
    vLANE, vO16 = 1, 2
    ACC = 16
    BUF = 80
    XR = 224
    k('s_cmp_ge_u32 s2, 256')
    k(f's_cbranch_scc1 {END}')
    k('s_load_dwordx2 s[24:25], s[0:1], 0')
    k('s_load_dwordx2 s[26:27], s[0:1], 56')
    k('s_load_dwordx2 s[28:29], s[0:1], 72')
    k('v_lshrrev_b32 v2, 6, v0')
    k(f'v_and_b32 v{vLANE}, 63, v0')
    k(f'v_readfirstlane_b32 s{sW}, v2')
    k(f's_and_b32 s{sTB}, s2, 7')
    k(f's_lshr_b32 s{sT0}, s2, 3')
    k(f's_and_b32 s{sT0}, s{sT0}, 3')
    k(f's_lshl_b32 s{sT0}, s{sT0}, 3')
    k(f's_add_u32 s{sTB}, s{sTB}, s{sT0}')
    k(f's_lshr_b32 s{sNB}, s2, 5')
    k(f'v_lshlrev_b32 v{vO16}, 4, v{vLANE}')
    k('s_waitcnt lgkmcnt(0)')
    k.srd(SWS, 28, 29, WS_SIZE)
    k.srd(SX, 24, 25, 2048 * 1024)
    k.srd(SO, 26, 27, 2048 * 1024)
    k('v_lshrrev_b32 v3, 3, v0')
    k('v_and_b32 v4, 7, v0')
    k('v_lshlrev_b32 v5, 10, v3')
    k('v_lshl_add_u32 v5, v4, 4, v5')
    k(f's_lshl_b32 s{sT0}, s{sTB}, 16')
    k(f's_lshl_b32 s{sT1}, s{sNB}, 7')
    k(f's_add_u32 s30, s{sT0}, s{sT1}')
    k.vmop(f'buffer_load_dwordx4 {v(XR,4)}, v5, s[{SX}:{SX+3}], s30 offen', 'x')
    k(f's_mul_i32 s{sTO}, s{sTB}, {2*144}')
    k(f's_mul_i32 s{sT0}, s{sW}, 18')
    k(f's_add_u32 s{sTO}, s{sTO}, s{sT0}')
    k(f's_lshl_b32 s{sTO}, s{sTO}, 10')
    k(f's_add_u32 s{sTO}, s{sTO}, {WS_TF:#x}')
    k(f's_lshl_b32 s{sWO}, s{sT0}, 4')
    k(f's_lshl_b32 s{sT1}, s{sNB}, 1')
    k(f's_add_u32 s{sWO}, s{sWO}, s{sT1}')
    k(f's_lshl_b32 s{sWO}, s{sWO}, 10')
    k(f's_add_u32 s{sWO}, s{sWO}, {WS_WF:#x}')
    k(f's_add_u32 s31, s{sTO}, {144*1024}')
    def loads(ks):
        b = BUF + (ks % 9) * 16
        k.vmop(f'buffer_load_dwordx4 {v(b,4)}, v{vO16}, s[{SWS}:{SWS+3}], s{sTO} offen', ks)
        k.vmop(f'buffer_load_dwordx4 {v(b+4,4)}, v{vO16}, s[{SWS}:{SWS+3}], s31 offen', ks)
        k.vmop(f'buffer_load_dwordx4 {v(b+8,4)}, v{vO16}, s[{SWS}:{SWS+3}], s{sWO} offen', ks)
        k.vmop(f'buffer_load_dwordx4 {v(b+12,4)}, v{vO16}, s[{SWS}:{SWS+3}], s{sWO} offen offset:1024', ks)
        k(f's_add_u32 s{sTO}, s{sTO}, 1024')
        k(f's_add_u32 s31, s31, 1024')
        k(f's_add_u32 s{sWO}, s{sWO}, 16384')
    for ks in range(9):
        loads(ks)
    for i in range(64):
        k(f'v_mov_b32 v{ACC+i}, 0')
    for ks in range(18):
        k.vmwait(ks)
        b = BUF + (ks % 9) * 16
        for tt in range(2):
            for nb in range(2):
                A = v(ACC + (tt * 2 + nb) * 16, 16)
                k(MFMA(A, v(b + 8 + 4 * nb, 4), v(b + 4 * tt, 4), A))
        if ks + 9 < 18:
            loads(ks + 9)
    k('s_nop 15')
    k(f'v_and_b32 v6, 31, v{vLANE}')
    k(f'v_mul_u32_u24 v6, {K3_ROW}, v6')
    k(f'v_lshrrev_b32 v7, 5, v{vLANE}')
    k(f'v_lshl_add_u32 v6, v7, 4, v6')
    k(f's_mul_i32 s{sT0}, s{sW}, {K3_REG}')
    k(f'v_add_u32 v6, s{sT0}, v6')
    for tt in range(2):
        for nb in range(2):
            for g in range(4):
                r = ACC + (tt * 2 + nb) * 16 + 4 * g
                k(f'ds_write_b128 v6, {v(r,4)} offset:{tt*32*K3_ROW + nb*128 + g*32}')
    k('s_waitcnt lgkmcnt(0)')
    k('s_barrier')
    k(f'v_mul_u32_u24 v6, {K3_ROW}, v3')
    k('v_lshl_add_u32 v6, v4, 5, v6')
    R = 80
    k(f'v_add_u32 v7, {4*K3_REG}, v6')
    for w in range(8):
        base = 'v6' if w < 4 else 'v7'
        off = (w % 4) * K3_REG
        k(f'ds_read_b128 {v(R+8*w,4)}, {base} offset:{off}')
        k(f'ds_read_b128 {v(R+8*w+4,4)}, {base} offset:{off+16}')
        if w == 3:
            k('s_waitcnt lgkmcnt(4)')
    k('s_waitcnt lgkmcnt(0)')
    for w in range(1, 8):
        for i in range(8):
            k(f'v_add_f32 v{R+i}, v{R+i}, v{R+8*w+i}')
    k.vmwait('x')
    for i in range(4):
        k(f'v_lshlrev_b32 v{R+16+2*i}, 16, v{XR+i}')
        k(f'v_and_b32 v{R+17+2*i}, 0xffff0000, v{XR+i}')
    for i in range(8):
        k(f'v_add_f32 v{R+i}, v{R+i}, v{R+16+i}')
    for i in range(4):
        k(f'v_cvt_pk_bf16_f32 v{R+24+i}, v{R+2*i}, v{R+2*i+1}')
    k(f'buffer_store_dwordx4 {v(R+24,4)}, v5, s[{SO}:{SO+3}], s30 offen')
    k.label(END)
    k('s_endpgm')
    return k.text(232, 40)

HEADER = open('parallel_sum__mha_block__dense_activation_mish__prompt.s.ref').read().split('; Override launch')[0]

def main(out):
    t1, d1 = gen_k1()
    t2, d2 = gen_k2()
    t3, d3 = gen_k3()
    s = HEADER
    s += f'; @launch kernel=k1_kernel grid=(256,1,1) block=(512,1,1) lds={K1_LDS}\n'
    s += f'; @launch kernel=k2_kernel grid=(256,1,1) block=(512,1,1) lds=135168\n'
    s += f'; @launch kernel=k3_kernel grid=(256,1,1) block=(512,1,1) lds={K3_LDS}\n'
    s += '.amdgcn_target "amdgcn-amd-amdhsa--gfx950"\n'
    s += t1 + t2 + t3 + d1 + d2 + d3
    open(out, 'w').write(s)

if __name__ == '__main__':
    main(sys.argv[1] if len(sys.argv) > 1 else 'parallel_sum__mha_block__dense_activation_mish__prompt.s')
```

```python
import struct

def f2u(x):
    return struct.unpack('<I', struct.pack('<f', x))[0]

def fhex(x):
    return '0x%08x' % f2u(x)

def v(i, n=1):
    return f'v{i}' if n == 1 else f'v[{i}:{i+n-1}]'

def a(i, n=1):
    return f'a{i}' if n == 1 else f'a[{i}:{i+n-1}]'

def s(i, n=1):
    return f's{i}' if n == 1 else f's[{i}:{i+n-1}]'

class Kern:
    def __init__(self, name):
        self.name = name
        self.lines = []
        self.nlab = 0
        self.vm = []
        self.lg = []
    def __call__(self, txt):
        for ln in txt.strip('\n').split('\n'):
            self.lines.append('    ' + ln.strip())
    def c(self, txt):
        self.lines.append('    ; ' + txt)
    def label(self, l):
        self.lines.append(l + ':')
    def newlabel(self, base='L'):
        self.nlab += 1
        return f'{self.name}_{base}{self.nlab}'
    def vmop(self, txt, tag):
        self(txt)
        self.vm.append(tag)
    def vmwait(self, tag):
        idx = [i for i, t in enumerate(self.vm) if t == tag]
        if not idx:
            return
        n = len(self.vm) - 1 - idx[-1]
        assert n <= 63
        self(f's_waitcnt vmcnt({n})')
        self.vm = self.vm[idx[-1] + 1:]
    def vmwait_all(self):
        self('s_waitcnt vmcnt(0)')
        self.vm = []
    def lgop(self, txt, tag):
        self(txt)
        self.lg.append(tag)
    def lgwait(self, tag):
        idx = [i for i, t in enumerate(self.lg) if t == tag]
        if not idx:
            return
        n = len(self.lg) - 1 - idx[-1]
        assert n <= 15
        self(f's_waitcnt lgkmcnt({n})')
        self.lg = self.lg[idx[-1] + 1:]
    def lgwait_all(self):
        self('s_waitcnt lgkmcnt(0)')
        self.lg = []
    def stamp_init(self, enable, sbase=70):
        self.st_en = enable
        self.st_base = sbase
        self.st_n = 0
    def stamp(self, real=False):
        if not self.st_en: return
        r = self.st_base + 2 * self.st_n
        self(f's_memrealtime s[{r}:{r+1}]' if real else f's_memtime s[{r}:{r+1}]')
        self('s_waitcnt lgkmcnt(0)')
        self.st_n += 1
    def stamp_dump(self, kidx, wavesgpr, vtmp=2):
        if not self.st_en: return
        assert (vtmp + 1) % 2 == 0
        self('s_load_dwordx2 s[96:97], s[0:1], 72')
        self('s_waitcnt lgkmcnt(0)')
        self(f's_lshl_b32 s98, s2, 4')
        self(f's_add_u32 s98, s98, s{wavesgpr}')
        self(f's_lshl_b32 s98, s98, 7')
        self(f's_add_u32 s98, s98, {0x8000000 + kidx * 0x100000:#x}')
        self(f'v_mov_b32 v{vtmp}, s98')
        for i in range(self.st_n):
            r = self.st_base + 2 * i
            self(f'v_mov_b32 v{vtmp+1}, s{r}')
            self(f'v_mov_b32 v{vtmp+2}, s{r+1}')
            self(f'global_store_dwordx2 v{vtmp}, v[{vtmp+1}:{vtmp+2}], s[96:97] offset:{8*i}')
            self('s_nop 1')
    def srd(self, d, base_lo, base_hi, size):
        self(f's_mov_b32 s{d}, s{base_lo}')
        self(f's_and_b32 s{d+1}, s{base_hi}, 0xffff')
        self(f's_mov_b32 s{d+2}, {size:#x}')
        self(f's_mov_b32 s{d+3}, 0x20000')
    def text(self, vgprs, sgprs, accum=None, agprs=0):
        if accum is None:
            accum = (vgprs + 3) // 4 * 4
        nfv = accum + agprs if agprs else vgprs
        hdr = f'''.text
.globl {self.name}
.p2align 8
.type {self.name},@function
{self.name}:
'''
        body = '\n'.join(self.lines) + '\n'
        kd = f'''.section .rodata,"a"
.p2align 6
.amdhsa_kernel {self.name}
  .amdhsa_next_free_vgpr {nfv}
  .amdhsa_next_free_sgpr {sgprs}
  .amdhsa_accum_offset {accum}
  .amdhsa_group_segment_fixed_size 0
  .amdhsa_kernarg_size 80
  .amdhsa_user_sgpr_count 2
  .amdhsa_user_sgpr_kernarg_segment_ptr 1
  .amdhsa_system_sgpr_workgroup_id_x 1
.end_amdhsa_kernel
'''
        return hdr + body, kd
```

```python
import math, sys, os
DBG = os.environ.get('DBG', '')
EXP = os.environ.get('EXP', '').split(',')
from asmlib import *

LOG2E = 1.4426950408889634
LN2 = 0.6931471805599453
QSCALE = 0.25 * LOG2E

WS_QKV = 0
WS_TF = 0x600000
WS_WF = 0xF00000
WS_SIZE = 0x10000000

def MFMA(d, A, B, C):
    return f'v_mfma_f32_32x32x16_bf16 {d}, {A}, {B}, {C}'

STG = 45056
MISC = 3 * STG
L_SW = MISC
L_RSUM = MISC + 1024
L_RSQ = MISC + 1536
L_RR = MISC + 2048
L_RM = MISC + 2560
L_BIAS = MISC + 3072
K1_LDS = MISC + 3584

def gen_k1():
    k = Kern('k1_kernel')
    END = 'k1_end'
    SX, SW_, SWS, SSZ, SB = 4, 8, 12, 16, 20
    sW, sRB, sCH, sRBK, sCG = 24, 25, 26, 27, 28
    sC, sSTG, sDST, sXO, sWO, sWINC, sLX, sLW, sT0, sT1, sT2, sONES = 29, 30, 31, 32, 33, 34, 35, 52, 53, 54, 55, 56
    sFB, sQB, sTILE, sSWZ1, sSWZ2, sSCALE = 57, 58, 59, 60, 61, 62
    vTID, vLANE = 0, 1
    vX0, vX, vW0, vW = 8, 12, 16, 17
    vOX0, vOX1, vOW = 18, 19, 20
    vZ1, vZ2 = 21, 22
    vBIAS = 23
    vS1 = 24
    vS2 = 176
    ACC = 64
    XS = [128, 132]
    WSET = [136, 152]
    CS = 168
    vRS, vRQ = 172, 173
    vH = 174
    vN = 175

    k(f's_cmp_ge_u32 s2, 256')
    k(f's_cbranch_scc1 {END}')
    k.stamp_init('1' in DBG)
    k.stamp(); k.stamp(real=True)
    k('s_load_dwordx4 s[36:39], s[0:1], 0')
    k('s_load_dwordx2 s[40:41], s[0:1], 16')
    k('s_load_dwordx4 s[44:47], s[0:1], 32')
    k('s_load_dwordx2 s[48:49], s[0:1], 48')
    k('s_load_dwordx2 s[50:51], s[0:1], 72')
    k(f'v_lshrrev_b32 v2, 6, v0')
    k(f'v_and_b32 v{vLANE}, 63, v0')
    k(f'v_readfirstlane_b32 s{sW}, v2')
    k(f'v_lshrrev_b32 v{vH}, 5, v{vLANE}')
    k(f'v_and_b32 v{vN}, 31, v{vLANE}')
    k(f's_and_b32 s{sT0}, s2, 7')
    k(f's_lshr_b32 s{sT1}, s2, 3')
    k(f's_and_b32 s{sRBK}, s{sT0}, 1')
    k(f's_lshl_b32 s{sRBK}, s{sRBK}, 3')
    k(f's_and_b32 s{sT2}, s{sT1}, 7')
    k(f's_add_u32 s{sRBK}, s{sRBK}, s{sT2}')
    k(f's_lshr_b32 s{sCG}, s{sT0}, 1')
    k(f's_lshl_b32 s{sCG}, s{sCG}, 2')
    k(f's_lshr_b32 s{sT2}, s{sT1}, 3')
    k(f's_add_u32 s{sCG}, s{sCG}, s{sT2}')
    k(f's_and_b32 s{sRB}, s{sW}, 3')
    k(f's_lshr_b32 s{sCH}, s{sW}, 2')
    k(f's_lshr_b32 s{sT0}, s{sCG}, 1')
    k(f's_mul_i32 s{sFB}, s{sT0}, 7')
    k(f's_and_b32 s{sT0}, s{sCG}, 1')
    k(f's_lshl_b32 s{sT0}, s{sT0}, 2')
    k(f's_add_u32 s{sFB}, s{sFB}, s{sT0}')
    k(f's_mul_i32 s{sQB}, s{sCG}, 3')
    k(f's_lshl_b32 s{sTILE}, s{sRBK}, 2')
    k(f's_add_u32 s{sTILE}, s{sTILE}, s{sRB}')
    k(f's_mov_b32 s{sONES}, 0x3f803f80')
    k(f'v_lshrrev_b32 v2, 3, v{vLANE}')
    k(f'v_and_b32 v3, 7, v{vLANE}')
    k(f'v_lshrrev_b32 v4, 4, v{vLANE}')
    k(f'v_xor_b32 v5, v3, v4')
    k(f'v_lshlrev_b32 v5, 4, v5')
    k(f'v_lshl_add_u32 v{vOX0}, v2, 10, v5')
    k(f'v_xor_b32 v{vOX1}, 64, v{vOX0}')
    k(f'v_add_u32 v{vOX1}, 0x2000, v{vOX1}')
    k(f'v_lshrrev_b32 v2, 1, v{vN}')
    k(f'v_and_b32 v2, 7, v2')
    k(f'v_xor_b32 v2, v2, v{vH}')
    k(f'v_lshlrev_b32 v2, 4, v2')
    k(f'v_lshl_add_u32 v2, v{vN}, 7, v2')
    k(f's_lshl_b32 s{sT0}, s{sRB}, 12')
    k(f'v_add_u32 v2, s{sT0}, v2')
    for ks in range(4):
        k(f'v_xor_b32 v{vX0+ks}, {ks*32}, v2')
    k(f'v_and_b32 v2, 15, v{vLANE}')
    k(f'v_lshrrev_b32 v2, 2, v2')
    k(f'v_lshl_add_u32 v2, v{vH}, 3, v2')
    k(f'v_lshlrev_b32 v2, 6, v2')
    k(f'v_lshrrev_b32 v3, 4, v{vLANE}')
    k(f'v_and_b32 v3, 1, v3')
    k(f'v_lshl_add_u32 v2, v3, 5, v2')
    k(f'v_and_b32 v3, 3, v{vLANE}')
    k(f'v_lshl_add_u32 v2, v3, 3, v2')
    k(f'v_add_u32 v{vW0}, 16384, v2')
    k(f'v_lshlrev_b32 v2, 12, v{vH}')
    k(f'v_lshl_add_u32 v{vZ1}, v{vN}, 1, v2')
    k(f'v_add_u32 v{vZ2}, 0x2000, v{vZ1}')
    k(f'v_lshlrev_b32 v2, 2, v{vTID}')
    k(f'v_add_u32 v2, {MISC}, v2')
    k(f'v_mov_b32 v3, 0')
    k(f'ds_write_b32 v2, v3')
    k('s_waitcnt lgkmcnt(0)')
    k.srd(SX, 36, 37, 2048 * 512 * 2)
    k.srd(SWS, 50, 51, WS_SIZE)
    k.srd(SB, 46, 47, 1792 * 2)
    k(f's_cmp_lt_u32 s2, 64')
    k(f's_cselect_b32 s{SSZ}, s40, s48')
    k(f's_cselect_b32 s{SSZ+1}, s41, s49')
    k(f's_mov_b32 s{SSZ+2}, {1792*1024:#x}')
    k(f's_cselect_b32 s{SSZ+2}, {512*1024:#x}, s{SSZ+2}')
    k(f's_and_b32 s{SSZ+1}, s{SSZ+1}, 0xffff')
    k(f's_mov_b32 s{SSZ+3}, 0x20000')
    k(f's_lshr_b32 s{sT0}, s2, 1')
    k(f's_sub_u32 s{sT1}, s{sT0}, 32')
    k(f's_cmp_lt_u32 s2, 64')
    k(f's_cselect_b32 s{sT1}, s{sT0}, s{sT1}')
    k(f's_lshl_b32 s{sT1}, s{sT1}, 14')
    k(f's_and_b32 s{sT2}, s2, 1')
    k(f's_lshl_b32 s{sT2}, s{sT2}, 3')
    k(f's_add_u32 s{sT2}, s{sT2}, s{sW}')
    k(f's_lshl_b32 s{sSWZ1}, s{sT2}, 6')
    k(f's_add_u32 s{sT1}, s{sT1}, s{sSWZ1}')
    for j in range(8):
        k(f'buffer_load_ushort v{vS1+j}, v{vZ1 if j < 4 else vZ2}, s[{SSZ}:{SSZ+3}], s{sT1} offen offset:{(j%4)*1024}')
    k(f's_lshl_b32 s{sSWZ1}, s{sT0}, 4')
    k(f's_add_u32 s{sSWZ1}, s{sSWZ1}, s{sT2}')
    k(f's_lshl_b32 s{sSWZ1}, s{sSWZ1}, 10')
    k(f's_add_u32 s{sSWZ1}, s{sSWZ1}, {WS_WF:#x}')
    L2 = k.newlabel('noswz2')
    k(f's_cmp_ge_u32 s2, 32')
    k(f's_cbranch_scc1 {L2}')
    k.srd(SSZ, 48, 49, 1792 * 1024)
    k(f's_add_u32 s{sT1}, s{sT0}, 96')
    k(f's_lshl_b32 s{sT1}, s{sT1}, 14')
    k(f's_lshl_b32 s{sSWZ2}, s{sT2}, 6')
    k(f's_add_u32 s{sT1}, s{sT1}, s{sSWZ2}')
    for j in range(8):
        k(f'buffer_load_ushort v{vS2+j}, v{vZ1 if j < 4 else vZ2}, s[{SSZ}:{SSZ+3}], s{sT1} offen offset:{(j%4)*1024}')
    k.label(L2)
    k(f's_add_u32 s{sSWZ2}, s{sSWZ1}, {128*16*1024:#x}')
    k(f's_lshl_b32 s{sT0}, s{sFB}, 6')
    k(f'v_lshlrev_b32 v2, 1, v{vTID}')
    k(f'buffer_load_ushort v{vBIAS}, v2, s[{SB}:{SB+3}], s{sT0} offen')
    k(f's_lshl_b32 s{sXO}, s{sRBK}, 17')
    k(f's_lshl_b32 s{sT0}, s{sW}, 14')
    k(f's_add_u32 s{sXO}, s{sXO}, s{sT0}')
    k(f's_lshl_b32 s{sLX}, s{sW}, 11')
    k(f's_mov_b32 s{sC}, 0')
    k(f's_mov_b32 s{sSTG}, 0')
    k(f's_mov_b32 s{sDST}, 0')
    ROLE1 = k.newlabel('role1')
    k(f's_cmp_eq_u32 s{sCH}, 1')
    k(f's_cbranch_scc1 {ROLE1}')

    def dma(nslot):
        k(f's_add_u32 m0, s{sDST}, s{sLX}')
        k(f's_add_u32 s{sT0}, s{sDST}, s{sLW}')
        k(f'buffer_load_dwordx4 v{vOX0}, s[{SX}:{SX+3}], s{sXO} offen lds')
        k(f's_add_u32 m0, m0, 1024')
        k(f's_add_u32 s{sXO}, s{sXO}, 128')
        k(f's_sub_u32 s{sT1}, s{sXO}, 128')
        k(f'buffer_load_dwordx4 v{vOX1}, s[{SX}:{SX+3}], s{sT1} offen lds')
        for j in range(nslot):
            k(f's_add_u32 m0, s{sT0}, {j*960}')
            k('s_nop 0')
            k(f'buffer_load_dwordx4 v{vOW}, s[{SW_}:{SW_+3}], s{sWO} offen offset:{j*64} lds')
        k(f's_add_u32 s{sWO}, s{sWO}, s{sWINC}')
        k(f's_add_u32 s{sDST}, s{sDST}, {STG}')
        k(f's_cmp_eq_u32 s{sDST}, {3*STG}')
        k(f's_cselect_b32 s{sDST}, 0, s{sDST}')

    def role(rid, types):
        nslot = len(types)
        sb = 0 if rid == 0 else 4
        N = 2 + nslot
        ldw = 3584 if rid == 0 else 3072
        tag = f'r{rid}_' + ''.join(types)
        if rid == 0:
            k.srd(SW_, 44, 45, 512 * 3584)
            k(f's_lshl_b32 s{sWO}, s{sFB}, 6')
        else:
            k.srd(SW_, 38, 39, 512 * 3072)
            k(f's_lshl_b32 s{sWO}, s{sQB}, 6')
        k(f's_mul_i32 s{sT0}, s{sRB}, {16*ldw}')
        k(f's_add_u32 s{sWO}, s{sWO}, s{sT0}')
        k(f's_mov_b32 s{sWINC}, {64*ldw}')
        k(f's_mul_i32 s{sLW}, s{sRB}, {7*1024}')
        k(f's_add_u32 s{sLW}, s{sLW}, {16384 + sb*1024}')
        k(f'v_lshrrev_b32 v2, 2, v{vLANE}')
        k(f'v_mul_u32_u24 v2, {ldw}, v2')
        k(f'v_and_b32 v3, 3, v{vLANE}')
        k(f'v_lshl_add_u32 v{vOW}, v3, 4, v2')
        k.st_n = 2
        k.stamp()
        dma(nslot)
        dma(nslot)
        k.stamp()
        for i in range(16 * nslot):
            k(f'v_mov_b32 v{ACC+i}, 0')
        for i in range(4):
            k(f'v_mov_b32 v{CS+i}, 0')
        k(f'v_mov_b32 v{vRS}, 0')
        k(f'v_mov_b32 v{vRQ}, 0')
        for ks in range(4):
            k(f'v_mov_b32 v{vX+ks}, v{vX0+ks}')
        k(f'v_add_u32 v{vW}, {sb*1024}, v{vW0}')
        k(f'v_mov_b32 v{vW0}, v{vW}')
        LOOP = k.newlabel('loop')
        W0 = k.newlabel('w0'); W1 = k.newlabel('w1'); ND = k.newlabel('nodma')
        k.label(LOOP)
        k(f's_cmp_eq_u32 s{sC}, 7')
        k(f's_cbranch_scc1 {W0}')
        k(f's_waitcnt vmcnt({N})')
        k(f's_branch {W1}')
        k.label(W0)
        k('s_waitcnt vmcnt(0)')
        k.label(W1)
        k('s_barrier')
        def reads(ks, st):
            k(f'ds_read_b128 {v(XS[st],4)}, v{vX+ks}')
            for j in range(nslot):
                off = (ks * 7 + j) * 1024
                k(f'ds_read_b64_tr_b16 {v(WSET[st]+4*j,2)}, v{vW} offset:{off}')
                k(f'ds_read_b64_tr_b16 {v(WSET[st]+4*j+2,2)}, v{vW} offset:{off+256}')
        if 'nocomp' not in EXP: reads(0, 0)
        k(f's_cmp_ge_u32 s{sC}, 6')
        k(f's_cbranch_scc1 {ND}')
        if 'nodma' not in EXP: dma(nslot)
        k.label(ND)
        for ks in range(4 if 'nocomp' not in EXP else 0):
            st = ks & 1
            k('s_waitcnt lgkmcnt(0)')
            if ks < 3:
                reads(ks + 1, st ^ 1)
            for j in range(nslot):
                X = v(XS[st], 4); W = v(WSET[st] + 4 * j, 4); A = v(ACC + 16 * j, 16)
                if types[j] == 'N':
                    k(MFMA(A, X, W, A))
                else:
                    k(MFMA(A, W, X, A))
                if rid == 1 and j < 2 and 'nodot' not in EXP:
                    for r in range(4):
                        if j == 0:
                            k(f'v_dot2c_f32_bf16 v{vRS}, s{sONES}, v{XS[st]+r}')
                        else:
                            k(f'v_dot2c_f32_bf16 v{vRQ}, v{XS[st]+r}, v{XS[st]+r}')
            SK = k.newlabel('nocs')
            k(f's_cmp_eq_u32 s{sRB}, {ks}')
            k(f's_cbranch_scc0 {SK}')
            for j in range(nslot if 'nodot' not in EXP else 0):
                for r in range(4):
                    k(f'v_dot2c_f32_bf16 v{CS+j}, s{sONES}, v{WSET[st]+4*j+r}')
            k.label(SK)
        k(f's_add_u32 s{sSTG}, s{sSTG}, {STG}')
        k(f's_cmp_eq_u32 s{sSTG}, {3*STG}')
        k(f's_cselect_b32 s{sSTG}, 0, s{sSTG}')
        for ks in range(4):
            k(f'v_add_u32 v{vX+ks}, s{sSTG}, v{vX0+ks}')
        k(f'v_add_u32 v{vW}, s{sSTG}, v{vW0}')
        k(f's_add_u32 s{sC}, s{sC}, 1')
        k(f's_cmp_lt_u32 s{sC}, 8')
        k(f's_cbranch_scc1 {LOOP}')
        k('s_nop 3')
        k.stamp()
        k(f'v_lshlrev_b32 v2, 2, v{vN}')
        for j in range(nslot):
            k(f'ds_add_f32 v2, v{CS+j} offset:{L_SW + (sb+j)*128}') if L_SW + (sb + j) * 128 < 65536 else None
        assert L_SW >= 65536
        k(f'v_add_u32 v2, {L_SW}, v2')
        for j in range(nslot):
            k(f'ds_add_f32 v2, v{CS+j} offset:{(sb+j)*128}')
        if rid == 1:
            k(f's_lshl_b32 s{sT0}, s{sRB}, 7')
            k(f'v_add_u32 v3, s{sT0}, v2')
            k(f'ds_add_f32 v3, v{vRS} offset:{L_RSUM - L_SW}')
            k(f'ds_add_f32 v3, v{vRQ} offset:{L_RSQ - L_SW}')
        else:
            NB = k.newlabel('nobias')
            k(f's_cmp_ge_u32 s{sW}, 2')
            k(f's_cbranch_scc1 {NB}')
            k(f'v_lshlrev_b32 v3, 16, v{vBIAS}')
            k(f'v_mul_f32 v3, {fhex(LOG2E)}, v3')
            k(f'v_lshlrev_b32 v4, 2, v{vTID}')
            k(f'v_add_u32 v4, {L_BIAS}, v4')
            k(f'ds_write_b32 v4, v3')
            k.label(NB)
        for (base, soff, cond) in ((vS1, sSWZ1, None), (vS2, sSWZ2, 32)):
            if cond is not None:
                SKZ = k.newlabel('noswzst')
                k(f's_cmp_ge_u32 s2, {cond}')
                k(f's_cbranch_scc1 {SKZ}')
            for r in range(4):
                k(f'v_lshl_or_b32 v{base+r}, v{base+2*r+1}, 16, v{base+2*r}') if False else None
            for r in range(4):
                k(f'v_lshl_or_b32 v{32+r}, v{base+2*r+1}, 16, v{base+2*r}')
            k(f'v_lshlrev_b32 v36, 4, v{vLANE}')
            k(f'buffer_store_dwordx4 v[32:35], v36, s[{SWS}:{SWS+3}], s{soff} offen')
            k('s_nop 1')
            if cond is not None:
                k.label(SKZ)
        k('s_waitcnt lgkmcnt(0)')
        k('s_barrier')
        if rid == 0:
            NS = k.newlabel('nostat')
            k(f's_cmp_ge_u32 s{sW}, 2')
            k(f's_cbranch_scc1 {NS}')
            k(f'v_lshlrev_b32 v4, 2, v{vTID}')
            k(f'v_add_u32 v4, {L_RSUM}, v4')
            k(f'ds_read_b32 v5, v4')
            k(f'ds_read_b32 v6, v4 offset:{L_RSQ - L_RSUM}')
            k('s_waitcnt lgkmcnt(0)')
            k(f'v_mul_f32 v5, {fhex(1/512)}, v5')
            k(f'v_mul_f32 v6, {fhex(1/512)}, v6')
            k(f'v_fma_f32 v6, -v5, v5, v6')
            k(f'v_max_f32 v6, 0, v6')
            k(f'v_add_f32 v6, {fhex(1e-5)}, v6')
            k(f'v_rsq_f32 v6, v6')
            k('s_nop 0')
            k(f'v_mul_f32 v5, v5, v6')
            k(f'ds_write_b32 v4, v6 offset:{L_RR - L_RSUM}')
            k(f'ds_write_b32 v4, v5 offset:{L_RM - L_RSUM}')
            k('s_waitcnt lgkmcnt(0)')
            k.label(NS)
        k('s_barrier')
        k.stamp()
        vR, vRM = 2, 3
        k(f's_lshl_b32 s{sT0}, s{sRB}, 7')
        k(f'v_lshlrev_b32 v4, 2, v{vN}')
        k(f'v_add_u32 v4, s{sT0}, v4')
        k(f'v_add_u32 v4, {L_RR}, v4')
        k(f'ds_read_b32 v{vR}, v4')
        k(f'ds_read_b32 v{vRM}, v4 offset:{L_RM - L_RR}')
        k(f'v_lshlrev_b32 v5, 4, v{vH}')
        k(f'v_add_u32 v5, {L_SW}, v5')
        k(f'v_lshlrev_b32 v6, 4, v{vLANE}')
        if 'N' in types:
            k(f'v_lshlrev_b32 v7, 4, v{vH}')
            k(f'v_add_u32 v7, s{sT0}, v7')
            k(f'v_add_u32 v7, {L_RR}, v7')
            for g in range(4):
                k(f'ds_read_b128 {v(128+4*g,4)}, v7 offset:{g*32}')
                k(f'ds_read_b128 {v(144+4*g,4)}, v7 offset:{g*32 + L_RM - L_RR}')
            k(f'v_lshrrev_b32 v8, 4, v{vN}')
            k(f'v_lshlrev_b32 v8, 16, v8')
            k(f'v_lshl_add_u32 v8, v{vH}, 8, v8')
            k(f'v_and_b32 v9, 15, v{vN}')
            k(f'v_lshl_add_u32 v8, v9, 4, v8')
        k('s_waitcnt lgkmcnt(0)')
        if rid == 0:
            vRL, vRML, vC2 = 10, 11, 12
            k(f'v_mul_f32 v{vRL}, {fhex(LOG2E)}, v{vR}')
            k(f'v_mul_f32 v{vRML}, {fhex(LOG2E)}, v{vRM}')
            k(f'v_mov_b32 v{vC2}, {fhex(-2*LN2)}')
            for j in range(nslot):
                SKS = None
                if j == 3:
                    SKS = k.newlabel('noslot3')
                    k(f's_and_b32 s{sT0}, s{sCG}, 1')
                    k(f's_cbranch_scc1 {SKS}')
                A = ACC + 16 * j
                SWR, CLR, T = 32, 48, 128
                for g in range(4):
                    k(f'ds_read_b128 {v(SWR+4*g,4)}, v5 offset:{j*128 + g*32}')
                    k(f'ds_read_b128 {v(CLR+4*g,4)}, v5 offset:{L_BIAS - L_SW + j*128 + g*32}')
                k('s_waitcnt lgkmcnt(0)')
                for i in range(16):
                    k(f'v_fma_f32 v{SWR+i}, -v{vRML}, v{SWR+i}, v{CLR+i}')
                for i in range(16):
                    k(f'v_fma_f32 v{A+i}, v{A+i}, v{vRL}, v{SWR+i}')
                for i in range(16):
                    k(f'v_exp_f32 v{T+i}, v{A+i}')
                for i in range(16):
                    k(f'v_add_f32 v{CLR+i}, 2.0, v{T+i}')
                for i in range(16):
                    k(f'v_fma_f32 v{T+i}, v{T+i}, v{CLR+i}, 2.0')
                for i in range(16):
                    k(f'v_rcp_f32 v{T+i}, v{T+i}')
                for i in range(16):
                    k(f'v_fmaak_f32 v{T+i}, v{T+i}, v{vC2}, {fhex(LN2)}')
                for i in range(16):
                    k(f'v_mul_f32 v{A+i}, v{A+i}, v{T+i}')
                for i in range(8):
                    k(f'v_cvt_pk_bf16_f32 v{T+i}, v{A+2*i}, v{A+2*i+1}')
                k(f's_mul_i32 s{sT0}, s{sTILE}, 144')
                k(f's_add_u32 s{sT0}, s{sT0}, s{sFB}')
                k(f's_add_u32 s{sT0}, s{sT0}, s{sFB}')
                k(f's_add_u32 s{sT0}, s{sT0}, {32 + 2*j}')
                k(f's_lshl_b32 s{sT0}, s{sT0}, 10')
                k(f's_add_u32 s{sT0}, s{sT0}, {WS_TF:#x}')
                k(f'buffer_store_dwordx4 {v(T,4)}, v6, s[{SWS}:{SWS+3}], s{sT0} offen')
                k(f'buffer_store_dwordx4 {v(T+4,4)}, v6, s[{SWS}:{SWS+3}], s{sT0} offen offset:1024')
                k('s_nop 1')
                if SKS:
                    k.label(SKS)
        else:
            for j in range(nslot):
                A = ACC + 16 * j
                SWR, T = 32, 48
                k(f's_add_u32 s{sT1}, s{sQB}, {j}')
                k(f's_lshl_b32 s{sT0}, s{sT1}, 17')
                k(f's_lshl_b32 s{sT2}, s{sTILE}, 10')
                k(f's_add_u32 s{sT0}, s{sT0}, s{sT2}')
                if types[j] == 'T':
                    k(f's_cmp_lt_u32 s{sT1}, 16')
                    k(f's_cselect_b32 s{sSCALE}, {fhex(QSCALE)}, {fhex(1.0)}')
                    for g in range(4):
                        k(f'ds_read_b128 {v(SWR+4*g,4)}, v5 offset:{(sb+j)*128 + g*32}')
                    k(f'v_mul_f32 v10, s{sSCALE}, v{vR}')
                    k(f'v_mul_f32 v11, s{sSCALE}, v{vRM}')
                    k('s_waitcnt lgkmcnt(0)')
                    for i in range(16):
                        k(f'v_mul_f32 v{SWR+i}, v11, v{SWR+i}')
                    for i in range(16):
                        k(f'v_fma_f32 v{A+i}, v{A+i}, v10, -v{SWR+i}')
                    for i in range(8):
                        k(f'v_cvt_pk_bf16_f32 v{T+i}, v{A+2*i}, v{A+2*i+1}')
                    k(f's_add_u32 s{sT2}, s{sT0}, 0x10000')
                    k(f'buffer_store_dwordx4 {v(T,4)}, v6, s[{SWS}:{SWS+3}], s{sT0} offen')
                    k(f'buffer_store_dwordx4 {v(T+4,4)}, v6, s[{SWS}:{SWS+3}], s{sT2} offen')
                    k('s_nop 1')
                else:
                    k(f'v_lshlrev_b32 v9, 2, v{vN}')
                    k(f'v_add_u32 v9, {L_SW}, v9')
                    k(f'ds_read_b32 v10, v9 offset:{(sb+j)*128}')
                    k('s_waitcnt lgkmcnt(0)')
                    for i in range(16):
                        k(f'v_mul_f32 v{SWR+i}, v10, v{144+i}')
                    for i in range(16):
                        k(f'v_fma_f32 v{A+i}, v{A+i}, v{128+i}, -v{SWR+i}')
                    for i in range(8):
                        k(f'v_cvt_pk_bf16_f32 v{T+i}, v{A+2*i}, v{A+2*i+1}')
                    k(f'buffer_store_dwordx4 {v(T,4)}, v8, s[{SWS}:{SWS+3}], s{sT0} offen')
                    k(f'buffer_store_dwordx4 {v(T+4,4)}, v8, s[{SWS}:{SWS+3}], s{sT0} offen offset:512')
                    k('s_nop 1')
        k.stamp()
        if k.st_en:
            k('s_waitcnt vmcnt(0)')
        k.stamp(); k.stamp(real=True)
        k.stamp_dump(0, sW, vtmp=3)
        k('s_endpgm')

    role(0, ['F'] * 4)
    k.label(ROLE1)
    V1 = k.newlabel('ttn'); V2 = k.newlabel('nnn')
    k(f's_cmp_eq_u32 s{sCG}, 10')
    k(f's_cbranch_scc1 {V1}')
    k(f's_cmp_gt_u32 s{sCG}, 10')
    k(f's_cbranch_scc1 {V2}')
    role(1, ['T', 'T', 'T'])
    k.label(V1)
    role(1, ['T', 'T', 'N'])
    k.label(V2)
    role(1, ['N', 'N', 'N'])
    k.label(END)
    k('s_endpgm')
    return k.text(184, 100 if DBG else 64)

K2_CONST = 131072
K2_LDS = K2_CONST + 8192 + 256
def gen_k2():
    k = Kern('k2_kernel')
    END = 'k2_end'
    SWS = 4
    sW, sHEAD, sQT, sIT, sT0, sT1, sFB = 8, 9, 10, 11, 12, 13, 14
    sKS, sVS, sLD = 22, 23, 24
    vLANE, vKA, vVA, vO16, vINC, vVA0 = 1, 2, 3, 4, 5, 6
    QF = 8
    NEGM = 16
    O = 32
    S = [48, 64]
    P = 80
    KF = [88, 92]
    VF = [96, 104]
    T = 112
    UN = 8
    k('s_cmp_ge_u32 s2, 256')
    k(f's_cbranch_scc1 {END}')
    k.stamp_init('2' in DBG)
    k.stamp(); k.stamp(real=True)
    k('s_load_dwordx2 s[20:21], s[0:1], 72')
    k('v_lshrrev_b32 v2, 6, v0')
    k(f'v_and_b32 v{vLANE}, 63, v0')
    k(f'v_readfirstlane_b32 s{sW}, v2')
    k(f's_and_b32 s{sHEAD}, s2, 31')
    k(f's_lshr_b32 s{sQT}, s2, 5')
    k(f's_lshl_b32 s{sQT}, s{sQT}, 3')
    k(f'v_lshlrev_b32 v{vO16}, 4, v{vLANE}')
    k(f's_add_u32 s{sQT}, s{sQT}, s{sW}')
    k(f's_lshl_b32 s{sT0}, s{sHEAD}, 16')
    k(f's_lshl_b32 s{sT1}, s{sQT}, 10')
    k(f's_add_u32 s25, s{sT1}, s{sT0}')
    k(f's_lshl_b32 s{sLD}, s{sW}, 10')
    k(f's_add_u32 s{sT0}, s{sT0}, s{sLD}')
    k(f's_add_u32 s{sKS}, s{sT0}, {32*65536:#x}')
    k(f's_add_u32 s{sVS}, s{sT0}, {64*65536:#x}')
    k('s_waitcnt lgkmcnt(0)')
    k.srd(SWS, 20, 21, WS_SIZE)
    k(f'buffer_load_dwordx4 {v(QF,4)}, v{vO16}, s[{SWS}:{SWS+3}], s25 offen')
    def dma_round(i):
        k(f's_add_u32 m0, s{sLD}, {i*8192}')
        k(f's_add_u32 s26, s{sKS}, {i*8192}')
        k(f'buffer_load_dwordx4 v{vO16}, s[{SWS}:{SWS+3}], s26 offen lds')
        k(f's_add_u32 m0, s{sLD}, {65536 + i*8192}')
        k(f's_add_u32 s26, s{sVS}, {i*8192}')
        k(f'buffer_load_dwordx4 v{vO16}, s[{SWS}:{SWS+3}], s26 offen lds')
    dma_round(0)
    dma_round(1)
    k('v_lshlrev_b32 v7, 4, v0')
    k(f'v_add_u32 v7, {K2_CONST}, v7')
    for i in range(4):
        k(f'v_mov_b32 v{T+i}, 0')
    k('v_and_b32 v12, 31, v0')
    k('v_cmp_eq_u32 vcc, 0, v12')
    k(f'v_mov_b32 v13, 0x3f803f80')
    k('s_nop 0')
    for i in range(4):
        k(f'v_cndmask_b32 v{T+i}, v{T+i}, v13, vcc')
    k(f'ds_write_b128 v7, {v(T,4)}')
    for i in range(4):
        k(f'v_mov_b32 v{T+4+i}, 0')
    k(f'v_mov_b32 v7, {K2_CONST + 8192}')
    k(f'v_lshl_add_u32 v7, v{vLANE}, 2, v7')
    k(f'ds_write_b32 v7, v{T+4}')
    k(f'v_lshrrev_b32 v7, 5, v{vLANE}')
    k(f'v_lshlrev_b32 v7, 8, v7')
    k(f'v_and_b32 v12, 15, v{vLANE}')
    k(f'v_lshl_add_u32 v7, v12, 4, v7')
    k(f'v_add_u32 v{vVA0}, 0x10000, v7')
    k(f'v_mov_b32 v{vINC}, {UN*1024}')
    k(f'v_and_b32 v12, 31, v{vLANE}')
    k(f'v_mov_b32 v13, {K2_CONST + 16}')
    k(f'v_mov_b32 v14, 0')
    k('v_cmp_lt_u32 vcc, 15, v12')
    k('s_nop 1')
    k(f'v_cndmask_b32 v{vVA0}, v{vVA0}, v13, vcc')
    k(f'v_cndmask_b32 v{vINC}, v{vINC}, v14, vcc')
    k(f'v_mov_b32 v13, {K2_CONST}')
    k('v_cmp_eq_u32 vcc, 16, v12')
    k('s_nop 1')
    k(f'v_cndmask_b32 v{vVA0}, v{vVA0}, v13, vcc')
    k(f'v_subrev_u32 v14, 20, v12')
    k(f'v_mov_b32 v13, {K2_CONST + 64}')
    k('v_cmp_gt_u32 vcc, 8, v14')
    k('s_nop 1')
    k(f'v_cndmask_b32 v{vVA0}, v{vVA0}, v13, vcc')
    k(f's_mov_b32 s{sFB}, 0')
    k('s_waitcnt vmcnt(0) lgkmcnt(0)')
    k('s_barrier')
    k.stamp()
    k(f'ds_read_b128 {v(KF[0],4)}, v{vO16}')
    k('s_waitcnt lgkmcnt(0)')
    k(MFMA(v(S[0],16), v(KF[0],4), v(QF,4), '0'))
    k('s_nop 15')
    k(f'v_max3_f32 v{T}, v{S[0]}, v{S[0]+1}, v{S[0]+2}')
    for i in range(3, 15, 2):
        k(f'v_max3_f32 v{T}, v{T}, v{S[0]+i}, v{S[0]+i+1}')
    k(f'v_max_f32 v{T}, v{T}, v{S[0]+15}')
    RESTART = k.newlabel('restart')
    k.label(RESTART)
    k(f'v_mov_b32 v{T+1}, v{T}')
    k(f'v_mov_b32 v{vKA}, v{vO16}')
    k(f'v_mov_b32 v{vVA}, v{vVA0}')
    k(f'v_permlane32_swap_b32 v{T}, v{T+1}')
    k(f'ds_read_b128 {v(KF[0],4)}, v{vKA}')
    k(f'ds_read_b128 {v(VF[0],4)}, v{vVA}')
    k(f'ds_read_b128 {v(VF[0]+4,4)}, v{vVA} offset:512')
    k(f'ds_read_b128 {v(KF[1],4)}, v{vKA} offset:1024')
    k(f'v_max_f32 v{T}, v{T}, v{T+1}')
    for i in range(16):
        k(f'v_sub_f32 v{NEGM+i}, 0, v{T}')
    for i in range(16):
        k(f'v_mov_b32 v{O+i}, 0')
    for i in range(8):
        k(f'v_mov_b32 v{VF[1]+i}, 0')
    for i in range(8):
        k(f'v_mov_b32 v{P+i}, 0')
    for i in range(12, 16):
        k(f'v_mov_b32 v{S[1]+i}, 0')
    k('s_waitcnt lgkmcnt(0)')
    k(MFMA(v(S[0],16), v(KF[0],4), v(QF,4), v(NEGM,16)))
    k('s_nop 15')
    def body(dma, prio=None):
        dq = []
        if dma:
            for i in range(2, 8):
                dq.append(i)
        nolds = 'nolds' in EXP
        def MF(*a):
            if 'nomfma' not in EXP: k(MFMA(*a))
        for j in range(UN):
            b = j & 1
            cur, nxt = S[b], S[b ^ 1]
            e = lambda i: k(f'v_exp_f32 v{cur+i}, v{cur+i}')
            c = lambda i: k(f'v_cvt_pk_bf16_f32 v{P+i}, v{cur+2*i}, v{cur+2*i+1}')
            cp = lambda i: k(f'v_cvt_pk_bf16_f32 v{P+i}, v{nxt+2*i}, v{nxt+2*i+1}')
            e(0)
            if prio is not None and (j == 0 or prio[j] != prio[j-1]):
                k(f's_setprio {prio[j]}')
            if j == UN - 1:
                k(f'v_add_u32 v{vVA}, v{vINC}, v{vVA}')
            cp(6); e(1); e(2); cp(7); e(3); e(4)
            MF(v(O,16), v(VF[b^1]+4,4), v(P+4,4), v(O,16))
            voff = ((j + 1) % UN) * 1024
            if not nolds: k(f'ds_read_b128 {v(VF[b^1],4)}, v{vVA} offset:{voff}')
            c(0); e(5); e(6); c(1)
            if not nolds: k('s_waitcnt lgkmcnt(1)')
            e(7)
            MF(v(nxt,16), v(KF[b^1],4), v(QF,4), v(NEGM,16))
            if not nolds: k(f'ds_read_b128 {v(VF[b^1]+4,4)}, v{vVA} offset:{voff+512}')
            e(8); c(2); e(9); e(10); c(3); e(11)
            if dq and j < 6:
                dma_round(dq.pop(0))
            e(12)
            MF(v(O,16), v(VF[b],4), v(P,4), v(O,16))
            if not nolds: k(f'ds_read_b128 {v(KF[b],4)}, v{vKA} offset:{(j+2)*1024}')
            c(4); e(13)
            if j == UN - 1:
                k(f'v_add_u32 v{vKA}, {UN*1024}, v{vKA}')
            e(14); c(5)
            if j == UN - 1:
                k(f's_add_u32 s{sIT}, s{sIT}, 1')
                k(f's_cmp_lt_u32 s{sIT}, {64//UN}')
            e(15)
    FIRST = k.newlabel('first'); LOOP = k.newlabel('loop'); LOOP2 = k.newlabel('loop2'); AFTER = k.newlabel('after'); R2 = k.newlabel('r2')
    k(f's_mov_b32 s{sIT}, 0')
    k(f's_cmp_eq_u32 s{sFB}, 1')
    k(f's_cbranch_scc1 {LOOP}')
    nh = int(os.environ.get('NH', '-1'))
    if nh >= 0:
        k(f's_cmp_ge_u32 s{sW}, 4')
        k(f's_cbranch_scc1 {R2}')
    body(True)
    k('s_waitcnt vmcnt(0)')
    k('s_barrier')
    k.label(LOOP)
    body(False)
    k(f's_cbranch_scc1 {LOOP}')
    if nh >= 0:
        k(f's_branch {AFTER}')
        k.label(R2)
        pr = [1] * nh + [0] * (UN - nh)
        body(True, pr)
        k('s_waitcnt vmcnt(0)')
        k('s_barrier')
        k.label(LOOP2)
        body(False, pr)
        k(f's_cbranch_scc1 {LOOP2}')
        k('s_setprio 0')
        k.label(AFTER)
    k('s_nop 1')
    k(f'v_cvt_pk_bf16_f32 v{P+6}, v{S[1]+12}, v{S[1]+13}')
    k(f'v_cvt_pk_bf16_f32 v{P+7}, v{S[1]+14}, v{S[1]+15}')
    k('s_nop 1')
    k(MFMA(v(O,16), v(VF[1]+4,4), v(P+4,4), v(O,16)))
    k('s_waitcnt lgkmcnt(0)')
    k('s_nop 15')
    k.stamp()
    k(f'v_mov_b32 v{T}, v{O+8}')
    k(f'v_mov_b32 v{T+1}, v{O+8}')
    k('s_nop 1')
    k(f'v_permlane32_swap_b32 v{T}, v{T+1}')
    k('s_nop 1')
    DONE = k.newlabel('done')
    k(f's_cmp_eq_u32 s{sFB}, 1')
    k(f's_cbranch_scc1 {DONE}')
    if EXP != ['']: k(f's_branch {DONE}')
    k(f'v_mov_b32 v{T+2}, {fhex(2.0**40)}')
    k(f'v_cmp_nlt_f32 vcc, v{T}, v{T+2}')
    k(f'v_mov_b32 v{T+1}, 0x207')
    for i in range(8):
        k(f'v_cmp_class_f32 s[26:27], v{O+i}, v{T+1}')
        k('s_or_b64 vcc, vcc, s[26:27]')
    k('s_cmp_eq_u64 vcc, 0')
    k(f's_cbranch_scc1 {DONE}')
    k(f's_mov_b32 s{sFB}, 1')
    k(f'v_mov_b32 v{vKA}, v{vO16}')
    k(f'v_mov_b32 v{T}, 0xff800000')
    k(f's_mov_b32 s{sIT}, 0')
    FL = k.newlabel('fbloop')
    k.label(FL)
    k(f'ds_read_b128 {v(KF[0],4)}, v{vKA}')
    k('s_waitcnt lgkmcnt(0)')
    k(MFMA(v(S[0],16), v(KF[0],4), v(QF,4), '0'))
    k('s_nop 15')
    for i in range(0, 16, 2):
        k(f'v_max3_f32 v{T}, v{T}, v{S[0]+i}, v{S[0]+i+1}')
    k(f'v_add_u32 v{vKA}, 0x400, v{vKA}')
    k(f's_add_u32 s{sIT}, s{sIT}, 1')
    k(f's_cmp_lt_u32 s{sIT}, 64')
    k(f's_cbranch_scc1 {FL}')
    k(f's_branch {RESTART}')
    k.label(DONE)
    k(f'v_rcp_f32 v{T}, v{T}')
    k('s_nop 0')
    for i in range(8):
        k(f'v_mul_f32 v{O+i}, v{O+i}, v{T}')
    for i in range(4):
        k(f'v_cvt_pk_bf16_f32 v{T+4+i}, v{O+2*i}, v{O+2*i+1}')
    k(f's_mul_i32 s{sT0}, s{sQT}, 144')
    k(f's_add_u32 s{sT0}, s{sT0}, s{sHEAD}')
    k(f's_lshl_b32 s{sT0}, s{sT0}, 10')
    k(f's_add_u32 s{sT0}, s{sT0}, {WS_TF:#x}')
    k(f'buffer_store_dwordx4 {v(T+4,4)}, v{vO16}, s[{SWS}:{SWS+3}], s{sT0} offen')
    if k.st_en:
        k('s_waitcnt vmcnt(0)')
    k.stamp(); k.stamp(real=True)
    k.stamp_dump(1, sW, vtmp=T+9)
    k.label(END)
    k('s_endpgm')
    return k.text(128, 100 if DBG else 32)

K3_ROW = 272
K3_REG = 64 * K3_ROW
K3_LDS = 8 * K3_REG
def gen_k3():
    k = Kern('k3_kernel')
    END = 'k3_end'
    SWS, SX, SO = 4, 8, 12
    sW, sTB, sNB, sT0, sT1, sTO, sWO = 16, 17, 18, 19, 20, 21, 22
    vLANE, vO16 = 1, 2
    ACC = 16
    BUF = 80
    XR = 224
    k('s_cmp_ge_u32 s2, 256')
    k(f's_cbranch_scc1 {END}')
    k.stamp_init('3' in DBG)
    k.stamp(); k.stamp(real=True)
    k('s_load_dwordx2 s[24:25], s[0:1], 0')
    k('s_load_dwordx2 s[26:27], s[0:1], 56')
    k('s_load_dwordx2 s[28:29], s[0:1], 72')
    k('v_lshrrev_b32 v2, 6, v0')
    k(f'v_and_b32 v{vLANE}, 63, v0')
    k(f'v_readfirstlane_b32 s{sW}, v2')
    k(f's_and_b32 s{sTB}, s2, 7')
    k(f's_lshr_b32 s{sT0}, s2, 3')
    k(f's_and_b32 s{sT0}, s{sT0}, 3')
    k(f's_lshl_b32 s{sT0}, s{sT0}, 3')
    k(f's_add_u32 s{sTB}, s{sTB}, s{sT0}')
    k(f's_lshr_b32 s{sNB}, s2, 5')
    k(f'v_lshlrev_b32 v{vO16}, 4, v{vLANE}')
    k('s_waitcnt lgkmcnt(0)')
    k.srd(SWS, 28, 29, WS_SIZE)
    k.srd(SX, 24, 25, 2048 * 1024)
    k.srd(SO, 26, 27, 2048 * 1024)
    k('v_lshrrev_b32 v3, 3, v0')
    k('v_and_b32 v4, 7, v0')
    k('v_lshlrev_b32 v5, 10, v3')
    k('v_lshl_add_u32 v5, v4, 4, v5')
    k(f's_lshl_b32 s{sT0}, s{sTB}, 16')
    k(f's_lshl_b32 s{sT1}, s{sNB}, 7')
    k(f's_add_u32 s30, s{sT0}, s{sT1}')
    k.vmop(f'buffer_load_dwordx4 {v(XR,4)}, v5, s[{SX}:{SX+3}], s30 offen', 'x')
    k(f's_mul_i32 s{sTO}, s{sTB}, {2*144}')
    k(f's_mul_i32 s{sT0}, s{sW}, 18')
    k(f's_add_u32 s{sTO}, s{sTO}, s{sT0}')
    k(f's_lshl_b32 s{sTO}, s{sTO}, 10')
    k(f's_add_u32 s{sTO}, s{sTO}, {WS_TF:#x}')
    k(f's_lshl_b32 s{sWO}, s{sT0}, 4')
    k(f's_lshl_b32 s{sT1}, s{sNB}, 1')
    k(f's_add_u32 s{sWO}, s{sWO}, s{sT1}')
    k(f's_lshl_b32 s{sWO}, s{sWO}, 10')
    k(f's_add_u32 s{sWO}, s{sWO}, {WS_WF:#x}')
    k(f's_add_u32 s31, s{sTO}, {144*1024}')
    def loads(ks):
        b = BUF + (ks % 9) * 16
        k.vmop(f'buffer_load_dwordx4 {v(b,4)}, v{vO16}, s[{SWS}:{SWS+3}], s{sTO} offen', ks)
        k.vmop(f'buffer_load_dwordx4 {v(b+4,4)}, v{vO16}, s[{SWS}:{SWS+3}], s31 offen', ks)
        k.vmop(f'buffer_load_dwordx4 {v(b+8,4)}, v{vO16}, s[{SWS}:{SWS+3}], s{sWO} offen', ks)
        k.vmop(f'buffer_load_dwordx4 {v(b+12,4)}, v{vO16}, s[{SWS}:{SWS+3}], s{sWO} offen offset:1024', ks)
        k(f's_add_u32 s{sTO}, s{sTO}, 1024')
        k(f's_add_u32 s31, s31, 1024')
        k(f's_add_u32 s{sWO}, s{sWO}, 16384')
    for ks in range(9):
        loads(ks)
    k.stamp()
    for i in range(64):
        k(f'v_mov_b32 v{ACC+i}, 0')
    for ks in range(18):
        k.vmwait(ks)
        if ks in (0, 9): k.stamp()
        b = BUF + (ks % 9) * 16
        for tt in range(2):
            for nb in range(2):
                A = v(ACC + (tt * 2 + nb) * 16, 16)
                k(MFMA(A, v(b + 8 + 4 * nb, 4), v(b + 4 * tt, 4), A))
        if ks + 9 < 18:
            loads(ks + 9)
    k('s_nop 15')
    k.stamp()
    k(f'v_and_b32 v6, 31, v{vLANE}')
    k(f'v_mul_u32_u24 v6, {K3_ROW}, v6')
    k(f'v_lshrrev_b32 v7, 5, v{vLANE}')
    k(f'v_lshl_add_u32 v6, v7, 4, v6')
    k(f's_mul_i32 s{sT0}, s{sW}, {K3_REG}')
    k(f'v_add_u32 v6, s{sT0}, v6')
    for tt in range(2):
        for nb in range(2):
            for g in range(4):
                r = ACC + (tt * 2 + nb) * 16 + 4 * g
                k(f'ds_write_b128 v6, {v(r,4)} offset:{tt*32*K3_ROW + nb*128 + g*32}')
    k('s_waitcnt lgkmcnt(0)')
    k('s_barrier')
    k(f'v_mul_u32_u24 v6, {K3_ROW}, v3')
    k('v_lshl_add_u32 v6, v4, 5, v6')
    R = 80
    k(f'v_add_u32 v7, {4*K3_REG}, v6')
    for w in range(8):
        base = 'v6' if w < 4 else 'v7'
        off = (w % 4) * K3_REG
        k(f'ds_read_b128 {v(R+8*w,4)}, {base} offset:{off}')
        k(f'ds_read_b128 {v(R+8*w+4,4)}, {base} offset:{off+16}')
        if w == 3:
            k('s_waitcnt lgkmcnt(4)')
    k('s_waitcnt lgkmcnt(0)')
    for w in range(1, 8):
        for i in range(8):
            k(f'v_add_f32 v{R+i}, v{R+i}, v{R+8*w+i}')
    k.vmwait('x')
    for i in range(4):
        k(f'v_lshlrev_b32 v{R+16+2*i}, 16, v{XR+i}')
        k(f'v_and_b32 v{R+17+2*i}, 0xffff0000, v{XR+i}')
    for i in range(8):
        k(f'v_add_f32 v{R+i}, v{R+i}, v{R+16+i}')
    for i in range(4):
        k(f'v_cvt_pk_bf16_f32 v{R+24+i}, v{R+2*i}, v{R+2*i+1}')
    k(f'buffer_store_dwordx4 {v(R+24,4)}, v5, s[{SO}:{SO+3}], s30 offen')
    k.stamp()
    if k.st_en:
        k('s_waitcnt vmcnt(0)')
    k.stamp(); k.stamp(real=True)
    k.stamp_dump(2, sW, vtmp=3)
    k.label(END)
    k('s_endpgm')
    return k.text(232, 100 if DBG else 40)

HEADER = open('parallel_sum__mha_block__dense_activation_mish__prompt.s.ref').read().split('; Override launch')[0]

def main(out):
    t1, d1 = gen_k1()
    t2, d2 = gen_k2()
    t3, d3 = gen_k3()
    s = HEADER
    s += f'; @launch kernel=k1_kernel grid=(256,1,1) block=(512,1,1) lds={K1_LDS}\n'
    s += f'; @launch kernel=k2_kernel grid=(256,1,1) block=(512,1,1) lds={K2_LDS}\n'
    s += f'; @launch kernel=k3_kernel grid=(256,1,1) block=(512,1,1) lds={K3_LDS}\n'
    s += '.amdgcn_target "amdgcn-amd-amdhsa--gfx950"\n'
    s += t1 + t2 + t3 + d1 + d2 + d3
    open(out, 'w').write(s)

if __name__ == '__main__':
    main(sys.argv[1] if len(sys.argv) > 1 else 'parallel_sum__mha_block__dense_activation_mish__prompt.s')
```

```python
import math, sys, os
DBG = os.environ.get('DBG', '')
EXP = os.environ.get('EXP', '').split(',')
ST1 = os.environ.get('ST1', '')
from asmlib import *

LOG2E = 1.4426950408889634
LN2 = 0.6931471805599453
QSCALE = 0.25 * LOG2E

WS_QKV = 0
WS_TF = 0x600000
WS_WF = 0xF00000
WS_SIZE = 0x10000000

def MFMA(d, A, B, C):
    return f'v_mfma_f32_32x32x16_bf16 {d}, {A}, {B}, {C}'

XSL, NXS = 16384, 3
WSL, NWS = 16384, 6
WRB = XSL * NXS
MISC = WRB + WSL * NWS
L_SW = MISC
L_RSUM = MISC + 1024
L_BIAS = MISC + 3072
L_PRIV = MISC + 3584
K1_LDS = MISC + 3584 + 2048

def gen_k1():
    k = Kern('k1_kernel')
    def BAR():
        if 'nobar' not in EXP: k('s_barrier')
    END = 'k1_end'
    SX, SW_, SWS, SSZ, SB, SWQ = 4, 8, 12, 16, 20, 64
    sW, sRB, sCH, sRBK, sCG = 24, 25, 26, 27, 28
    sC, sXD, sWD, sXO, sFO, sQO, sLX, sT0, sT1, sT2 = 29, 30, 31, 32, 33, 34, 35, 53, 54, 55
    sXR, sWR = 56, 63
    sFB, sQB, sTA, sSWZ1, sSWZ2, sSCALE = 57, 58, 59, 60, 61, 70
    sTB, sSA, sSB, sIDX, sNF = 42, 43, 52, 68, 69
    vTID, vLANE = 0, 1
    vX = 8
    vW = 16
    vOX0, vOX1, vOF, vOQ = 20, 21, 22, 23
    vZ1, vZ2 = 2, 3
    vBIAS = 25
    vS1 = 26
    vS2 = 184
    ACC = 64
    XA, XB = [128, 132], [136, 140]
    WSET = [144, 156]
    CW = 168
    CS = 172
    RS = 176
    TMP = 180
    vH, vN = 192, 193
    SEL = 196

    k(f's_cmp_ge_u32 s2, 256')
    k(f's_cbranch_scc1 {END}')
    k.stamp_init('1' in DBG, sbase=74)
    k.stamp(); k.stamp(real=True)
    k('s_load_dwordx4 s[36:39], s[0:1], 0')
    k('s_load_dwordx4 s[44:47], s[0:1], 32')
    k('s_load_dwordx2 s[40:41], s[0:1], 16')
    k('s_load_dwordx2 s[48:49], s[0:1], 48')
    k('s_load_dwordx2 s[50:51], s[0:1], 72')
    k(f'v_lshrrev_b32 v2, 6, v0')
    k(f'v_and_b32 v{vLANE}, 63, v0')
    k(f'v_readfirstlane_b32 s{sW}, v2')
    k(f'v_lshrrev_b32 v{vH}, 5, v{vLANE}')
    k(f'v_and_b32 v{vN}, 31, v{vLANE}')
    k(f's_and_b32 s{sT0}, s2, 7')
    k(f's_lshr_b32 s{sT1}, s2, 3')
    k(f's_and_b32 s{sRBK}, s{sT0}, 1')
    k(f's_lshl_b32 s{sRBK}, s{sRBK}, 3')
    k(f's_and_b32 s{sT2}, s{sT1}, 7')
    k(f's_add_u32 s{sRBK}, s{sRBK}, s{sT2}')
    k(f's_lshr_b32 s{sCG}, s{sT0}, 1')
    k(f's_mul_i32 s{sFB}, s{sCG}, 14')
    k(f's_lshl_b32 s{sCG}, s{sCG}, 2')
    k(f's_lshr_b32 s{sT2}, s{sT1}, 3')
    k(f's_add_u32 s{sCG}, s{sCG}, s{sT2}')
    k(f's_lshl_b32 s{sT0}, s{sT2}, 2')
    k(f's_add_u32 s{sFB}, s{sFB}, s{sT0}')
    k(f's_cmp_eq_u32 s{sT2}, 3')
    k(f's_cselect_b32 s{sNF}, 2, 4')
    k(f's_and_b32 s{sRB}, s{sW}, 3')
    k(f's_lshr_b32 s{sCH}, s{sW}, 2')
    k(f's_mul_i32 s{sQB}, s{sCG}, 3')
    k(f's_lshl_b32 s{sIDX}, s{sRB}, 2')
    k(f'v_lshrrev_b32 v2, 3, v{vLANE}')
    k(f'v_and_b32 v3, 7, v{vLANE}')
    k(f'v_lshrrev_b32 v4, 4, v{vLANE}')
    k(f'v_xor_b32 v5, v3, v4')
    k(f'v_lshlrev_b32 v5, 4, v5')
    k(f'v_lshl_add_u32 v{vOX0}, v2, 10, v5')
    k(f'v_xor_b32 v{vOX1}, 64, v{vOX0}')
    k(f'v_add_u32 v{vOX1}, 0x2000, v{vOX1}')
    k(f'v_and_b32 v3, 3, v{vLANE}')
    k(f'v_bfe_u32 v5, v{vLANE}, 2, 2')
    k(f'v_xor_b32 v5, v5, v4')
    k(f'v_lshlrev_b32 v6, 4, v3')
    k(f'v_lshl_add_u32 v6, v5, 6, v6')
    k(f'v_mul_u32_u24 v7, 3584, v4')
    k(f'v_add_u32 v{vOF}, v7, v6')
    k(f'v_mul_u32_u24 v7, 3072, v4')
    k(f'v_add_u32 v{vOQ}, v7, v6')
    k(f'v_mov_b32 v7, 0x7f000000')
    k(f'v_cmp_eq_u32 vcc, 3, v5')
    k(f'v_cmp_le_u32 s[72:73], s{sNF}, v5')
    k('s_nop 1')
    k(f'v_cndmask_b32 v{vOQ}, v{vOQ}, v7, vcc')
    k(f'v_cndmask_b32 v{vOF}, v{vOF}, v7, s[72:73]')
    k('s_waitcnt lgkmcnt(0)')
    k.srd(SX, 36, 37, 2048 * 512 * 2)
    k.srd(SW_, 44, 45, 512 * 3584)
    k.srd(SWQ, 38, 39, 512 * 3072)
    k(f's_lshl_b32 s{sXO}, s{sRBK}, 17')
    k(f's_lshl_b32 s{sT0}, s{sW}, 14')
    k(f's_add_u32 s{sXO}, s{sXO}, s{sT0}')
    k(f's_mul_i32 s{sFO}, s{sW}, {4*3584}')
    k(f's_lshl_b32 s{sT0}, s{sFB}, 6')
    k(f's_add_u32 s{sFO}, s{sFO}, s{sT0}')
    k(f's_mul_i32 s{sQO}, s{sW}, {4*3072}')
    k(f's_lshl_b32 s{sT0}, s{sQB}, 6')
    k(f's_add_u32 s{sQO}, s{sQO}, s{sT0}')
    k(f's_lshl_b32 s{sLX}, s{sW}, 10')
    k(f's_lshl_b32 s{sXD}, s{sW}, 11')
    k(f's_add_u32 s{sWD}, s{sLX}, {WRB}')
    k(f's_mov_b32 s{sC}, 0')
    def dmaX(force=False):
        if 'nodma' in EXP and not force: return []
        return [[f's_mov_b32 m0, s{sXD}', f's_cmp_lt_u32 s{sC}, 8', f's_cselect_b32 s{sT0}, s{sXO}, 0x7f000000',
                 f'buffer_load_dwordx4 v{vOX0}, s[{SX}:{SX+3}], s{sT0} offen lds'],
                [f's_add_u32 m0, s{sXD}, 1024', f's_add_u32 s{sXO}, s{sXO}, 128',
                 f'buffer_load_dwordx4 v{vOX1}, s[{SX}:{SX+3}], s{sT0} offen lds',
                 f's_add_u32 s{sC}, s{sC}, 1', f's_add_u32 s{sXD}, s{sXD}, {XSL}', f's_cmp_ge_u32 s{sXD}, {NXS*XSL}',
                 f's_cselect_b32 s{sT0}, {NXS*XSL}, 0', f's_sub_u32 s{sXD}, s{sXD}, s{sT0}']]
    def dmaW(force=False):
        if 'nodma' in EXP and not force: return []
        return [[f's_mov_b32 m0, s{sWD}', f's_add_u32 s{sT1}, s{sFO}, {32*3584}',
                 f'buffer_load_dwordx4 v{vOF}, s[{SW_}:{SW_+3}], s{sFO} offen lds', f's_mov_b32 s{sFO}, s{sT1}'],
                [f's_add_u32 m0, s{sWD}, 8192', f's_add_u32 s{sT1}, s{sQO}, {32*3072}',
                 f'buffer_load_dwordx4 v{vOQ}, s[{SWQ}:{SWQ+3}], s{sQO} offen lds', f's_mov_b32 s{sQO}, s{sT1}',
                 f's_add_u32 s{sWD}, s{sWD}, {WSL}', f's_cmp_ge_u32 s{sWD}, {WRB + NWS*WSL}',
                 f's_cselect_b32 s{sT1}, {NWS*WSL}, 0', f's_sub_u32 s{sWD}, s{sWD}, s{sT1}']]
    def emit(groups):
        for d in groups:
            for t in d: k(t)
    emit(dmaX(True)); emit(dmaW(True)); emit(dmaW(True))
    k.stamp()
    k(f'v_bfe_u32 v2, v{vN}, 1, 3')
    k(f'v_xor_b32 v2, v2, v{vH}')
    k(f'v_lshlrev_b32 v2, 4, v2')
    k(f'v_lshl_add_u32 v4, v{vN}, 7, v2')
    k(f'v_bfe_u32 v6, v{vLANE}, 2, 2')
    k(f'v_lshl_add_u32 v5, v{vH}, 3, v6')
    k(f'v_lshlrev_b32 v5, 8, v5')
    k(f'v_bfe_u32 v7, v{vLANE}, 4, 1')
    k(f'v_lshl_add_u32 v5, v7, 5, v5')
    k(f'v_and_b32 v7, 3, v{vLANE}')
    k(f'v_lshl_add_u32 v5, v7, 3, v5')
    k(f'v_add_u32 v5, {WRB}, v5')
    k(f'v_mov_b32 v2, 0')
    k(f'v_mov_b32 v3, 0x3f803f80')
    k(f'v_cmp_eq_u32 vcc, 0, v{vN}')
    k(f'v_cmp_eq_u32 s[72:73], 17, v{vN}')
    k('s_nop 1')
    k('s_or_b64 vcc, vcc, s[72:73]')
    k('s_nop 1')
    k(f'v_cndmask_b32 v{SEL}, v2, v3, vcc')
    for i in range(1, 4):
        k(f'v_mov_b32 v{SEL+i}, v{SEL}')
    k.srd(SWS, 50, 51, WS_SIZE)
    k.srd(SB, 46, 47, 1792 * 2)
    SWZ = [26, 184, 200]
    sZD = [60, 61, 62]
    def side_loads():
        k(f'v_lshlrev_b32 v2, 12, v{vH}')
        k(f'v_lshl_add_u32 v{vZ1}, v{vN}, 1, v2')
        k(f'v_add_u32 v{vZ2}, 0x2000, v{vZ1}')
        k(f's_and_b32 s{sT2}, s2, 3')
        k(f's_lshl_b32 s{sT2}, s{sT2}, 2')
        k(f's_add_u32 s{sT2}, s{sT2}, s{sRB}')
        for i in range(3):
            SKI = None
            if i == 2:
                SKI = k.newlabel('noswz3')
                k(f's_cmp_ge_u32 s2, 64')
                k(f's_cbranch_scc1 {SKI}')
            k(f's_lshr_b32 s{sT0}, s2, 2')
            if i: k(f's_add_u32 s{sT0}, s{sT0}, {64*i}')
            if i == 0:
                k(f's_cmp_lt_u32 s{sT0}, 32')
                k(f's_cselect_b32 s{SSZ}, s40, s48')
                k(f's_cselect_b32 s{SSZ+1}, s41, s49')
                k(f's_mov_b32 s{SSZ+2}, {1792*1024:#x}')
                k(f's_cselect_b32 s{SSZ+2}, {512*1024:#x}, s{SSZ+2}')
                k(f's_cselect_b32 s{sT1}, 0, 32')
                k(f's_and_b32 s{SSZ+1}, s{SSZ+1}, 0xffff')
                k(f's_mov_b32 s{SSZ+3}, 0x20000')
                k(f's_sub_u32 s{sT1}, s{sT0}, s{sT1}')
            else:
                if i == 1: k.srd(SSZ, 48, 49, 1792 * 1024)
                k(f's_sub_u32 s{sT1}, s{sT0}, 32')
            k(f's_lshl_b32 s{sT1}, s{sT1}, 14')
            k(f's_lshl_b32 s{sZD[i]}, s{sT2}, 6')
            k(f's_add_u32 s{sT1}, s{sT1}, s{sZD[i]}')
            for j in range(8):
                k(f'buffer_load_ushort v{SWZ[i]+j}, v{vZ1 if j < 4 else vZ2}, s[{SSZ}:{SSZ+3}], s{sT1} offen offset:{(j%4)*1024}')
            k(f's_lshl_b32 s{sZD[i]}, s{sT0}, 4')
            k(f's_add_u32 s{sZD[i]}, s{sZD[i]}, s{sT2}')
            k(f's_lshl_b32 s{sZD[i]}, s{sZD[i]}, 10')
            k(f's_add_u32 s{sZD[i]}, s{sZD[i]}, {WS_WF:#x}')
            if SKI: k.label(SKI)
    def side_stores():
        k(f'v_lshlrev_b32 v40, 4, v{vLANE}')
        for i in range(3):
            SKI = None
            if i == 2:
                SKI = k.newlabel('noswz3s')
                k(f's_cmp_ge_u32 s2, 64')
                k(f's_cbranch_scc1 {SKI}')
            for r in range(4):
                k(f'v_lshl_or_b32 v{36+r}, v{SWZ[i]+2*r+1}, 16, v{SWZ[i]+2*r}')
            k(f'buffer_store_dwordx4 v[36:39], v40, s[{SWS}:{SWS+3}], s{sZD[i]} offen {ST1}')
            k('s_nop 1')
            if SKI: k.label(SKI)
    k(f's_lshl_b32 s{sT0}, s{sFB}, 6')
    k(f'v_lshlrev_b32 v2, 1, v{vTID}')
    k(f'buffer_load_ushort v{vBIAS}, v2, s[{SB}:{SB+3}], s{sT0} offen')
    k(f's_mov_b32 s{sXR}, 0')
    k(f's_mov_b32 s{sWR}, 0')
    ROLE1 = k.newlabel('role1')
    k(f's_cmp_eq_u32 s{sCH}, 1')
    k(f's_cbranch_scc1 {ROLE1}')

    def role(rid, types):
        WB_ = 0 if rid == 0 else 8192
        if rid == 0:
            k(f's_lshr_b32 s{sT0}, s{sW}, 1')
            k(f's_and_b32 s{sT1}, s{sW}, 1')
            k(f's_lshl_b32 s{sTA}, s{sT0}, 1')
            k(f's_or_b32 s{sTA}, s{sTA}, s{sT1}')
            k(f's_xor_b32 s{sTB}, s{sTA}, 1')
            k(f's_lshl_b32 s{sSA}, s{sT1}, 1')
            k(f's_or_b32 s{sSA}, s{sSA}, s{sT0}')
            k(f's_xor_b32 s{sSB}, s{sSA}, 1')
            nx, nwf = 2, 2
            for i, st_ in enumerate((sTA, sTB)):
                k(f's_lshl_b32 s{sT0}, s{st_}, 12')
                k(f'v_add_u32 v{vX+4*i}, s{sT0}, v4')
                for kk in range(1, 4):
                    k(f'v_xor_b32 v{vX+4*i+kk}, {kk*32}, v{vX+4*i}')
            for j, ss in enumerate((sSA, sSB)):
                k(f'v_xor_b32 v7, s{ss}, v6')
                k(f'v_lshl_add_u32 v{vW+j}, v7, 6, v5')
            tiles = [(0, 0), (0, 1), (1, 0), (1, 1)]
        else:
            k(f's_mov_b32 s{sTA}, s{sRB}')
            nx, nwf = 1, 3
            k(f's_lshl_b32 s{sT0}, s{sRB}, 12')
            k(f'v_add_u32 v{vX}, s{sT0}, v4')
            for kk in range(1, 4):
                k(f'v_xor_b32 v{vX+kk}, {kk*32}, v{vX}')
            for j in range(3):
                k(f'v_xor_b32 v7, {j}, v6')
                k(f'v_lshl_add_u32 v{vW+j}, v7, 6, v5')
            tiles = [(0, 0), (0, 1), (0, 2)]
        nt = len(tiles)
        XR = [XA, XB]
        for i in range(16 * nt):
            k(f'v_mov_b32 v{ACC+i}, 0')
        for i in range(4):
            k(f'v_mov_b32 v{CS+i}, 0')
            k(f'v_mov_b32 v{RS+i}, 0')
        def rd_list(kk, ks, st):
            off = WB_ + ks * 4096
            def xr(i): return [f'ds_read_b128 {v(XR[i][st],4)}, v{vX+4*i+kk}']
            def wr(j): return [f'ds_read_b64_tr_b16 {v(WSET[st]+4*j,2)}, v{vW+j} offset:{off}',
                               f'ds_read_b64_tr_b16 {v(WSET[st]+4*j+2,2)}, v{vW+j} offset:{off+1024}']
            if rid == 0: return xr(0) + wr(0) + wr(1) + xr(1)
            return xr(0) + wr(0) + wr(1) + wr(2)
        need = [3, 5, 6, 6] if rid == 0 else [3, 5, 7]
        NOLD = 6 if rid == 0 else 7
        def advW():
            L = [f's_add_u32 s{sWR}, s{sWR}, {WSL}', f's_cmp_eq_u32 s{sWR}, {NWS*WSL}',
                 f's_mov_b32 s{sT2}, {WSL}', f's_cselect_b32 s{sT2}, {(WSL - NWS*WSL) & 0xffffffff:#x}, s{sT2}', f's_cselect_b32 s{sWR}, 0, s{sWR}']
            for j in range(nwf):
                L.append(f'v_add_u32 v{vW+j}, s{sT2}, v{vW+j}')
            return L
        def advX():
            L = [f's_add_u32 s{sXR}, s{sXR}, {XSL}', f's_cmp_eq_u32 s{sXR}, {NXS*XSL}',
                 f's_mov_b32 s{sSCALE}, {XSL}', f's_cselect_b32 s{sSCALE}, {(XSL - NXS*XSL) & 0xffffffff:#x}, s{sSCALE}', f's_cselect_b32 s{sXR}, 0, s{sXR}']
            for i in range(4 * nx):
                L.append(f'v_add_u32 v{vX+i}, s{sSCALE}, v{vX+i}')
            return L
        def kstep(st, nxt_reads, pre=(), dmas=None, post=()):
            dmas = list(dmas) if dmas else []
            if 'nocomp' in EXP:
                emit(dmas)
                for t in pre: k(t)
                for t in post: k(t)
                return
            rl = list(nxt_reads)
            st_ops = []
            for q in range(2):
                x = XR[0][st] + 2 * (1 - rid) + q
                st_ops += [f'v_and_b32 v{TMP+2*q}, 0xffff0000, v{x}', f'v_lshlrev_b32 v{TMP+2*q+1}, 16, v{x}']
            for q in range(2):
                st_ops += [f'v_add_f32 v{RS}, v{RS}, v{TMP+2*q}', f'v_fmac_f32 v{RS+2}, v{TMP+2*q}, v{TMP+2*q}',
                           f'v_add_f32 v{RS+1}, v{RS+1}, v{TMP+2*q+1}', f'v_fmac_f32 v{RS+3}, v{TMP+2*q+1}, v{TMP+2*q+1}']
            if 'nodot' in EXP: st_ops = []
            pre = list(pre)
            per = (len(rl) + nt - 1) // nt
            sper = (len(st_ops) + nt - 1) // nt
            dper = (len(dmas) + nt - 1) // nt
            new = 0
            for t, (xi, wj) in enumerate(tiles):
                X = v(XR[xi][st], 4); W = v(WSET[st] + 4 * wj, 4); A = v(ACC + 16 * t, 16)
                k(f's_waitcnt lgkmcnt({NOLD - need[t] + new})')
                ty = 'T' if rid == 0 else types[t]
                if ty == 'N': k(MFMA(A, X, W, A))
                else: k(MFMA(A, W, X, A))
                if t == 0:
                    for s_ in pre: k(s_)
                for _ in range(per):
                    if rl:
                        k(rl.pop(0)); new += 1
                for _ in range(dper):
                    if dmas:
                        for s_ in dmas.pop(0): k(s_)
                for _ in range(sper):
                    if st_ops: k(st_ops.pop(0))
                if 'nodot' not in EXP:
                    if rid == 0 and t == 1:
                        k(f'v_mfma_f32_16x16x32_bf16 {v(CS,4)}, {v(SEL,4)}, {v(WSET[st],4)}, {v(CS,4)}')
                    if rid == 1 and t == 2:
                        k(f's_set_gpr_idx_on s{sIDX}, gpr_idx(SRC0)')
                        k('s_nop 0')
                        for r in range(4):
                            k(f'v_mov_b32 v{CW+r}, v{WSET[st]+r}')
                        k('s_set_gpr_idx_off')
                        k('s_nop 1')
                        k(f'v_mfma_f32_16x16x32_bf16 {v(CS,4)}, {v(SEL,4)}, {v(CW,4)}, {v(CS,4)}')
            for s_ in post: k(s_)
            assert not rl and not st_ops and not dmas
        def iteration(par, vm, dmas0, dmas1=None, post=()):
            k(f's_waitcnt vmcnt({vm})')
            BAR()
            kstep(0, rd_list(2 * par + 1, 1, 1), dmas=dmas0)
            pre = advW() + (advX() if par == 1 else [])
            kstep(1, rd_list((2 * par + 2) % 4, 0, 0), pre=pre, dmas=dmas1, post=post)
        k(f's_waitcnt vmcnt(3)')
        BAR()
        k.stamp()
        for t in rd_list(0, 0, 0): k(t)
        iteration(0, 1, dmaX() + dmaW(), dmaW() + dmaW())
        iteration(1, 4, dmaX() + dmaW(), dmaW())
        LOOP = k.newlabel('loop')
        k.label(LOOP)
        iteration(0, 8, dmaX() + dmaW())
        iteration(1, 8, dmaW(), post=[f's_add_u32 s{sNF}, s{sNF}, 8', f's_cmp_lt_u32 s{sNF}, 56'])
        k(f's_cbranch_scc1 {LOOP}')
        k(f's_and_b32 s{sNF}, s{sNF}, 7')
        k('s_nop 7')
        k.stamp()
        if rid == 1: side_loads()
        k(f'v_add_f32 v{RS}, v{RS}, v{RS+1}')
        k(f'v_add_f32 v{RS+2}, v{RS+2}, v{RS+3}')
        k(f'v_mov_b32 v{RS+1}, v{RS}')
        k(f'v_mov_b32 v{RS+3}, v{RS+2}')
        k('s_nop 1')
        k(f'v_permlane32_swap_b32 v{RS}, v{RS+1}')
        k(f'v_permlane32_swap_b32 v{RS+2}, v{RS+3}')
        k('s_nop 1')
        k(f'v_add_f32 v{RS}, v{RS}, v{RS+1}')
        k(f'v_add_f32 v{RS+2}, v{RS+2}, v{RS+3}')
        k(f's_lshl_b32 s{sT0}, s{sTA}, 7')
        k(f'v_lshlrev_b32 v2, 2, v{vN}')
        k(f'v_add_u32 v2, s{sT0}, v2')
        k(f'v_add_u32 v2, {MISC}, v2')
        k(f'ds_write_b32 v2, v{RS} offset:{L_RSUM - MISC + rid*1024}')
        k(f'ds_write_b32 v2, v{RS+2} offset:{L_RSUM - MISC + rid*1024 + 512}')
        NS = k.newlabel('nosw')
        if rid == 1:
            k(f's_cmp_eq_u32 s{sRB}, 3')
            k(f's_cbranch_scc1 {NS}')
            k(f's_lshl_b32 s{sT0}, s{sRB}, 7')
            k(f's_add_u32 s{sT0}, s{sT0}, {L_SW + 512}')
        else:
            k(f's_lshl_b32 s{sT0}, s{sSA}, 7')
            k(f's_add_u32 s{sT0}, s{sT0}, {L_SW}')
        k(f'v_lshlrev_b32 v3, 2, v{vLANE}')
        k(f'v_add_u32 v3, s{sT0}, v3')
        k('s_mov_b64 exec, 0xffff')
        k(f'ds_write_b32 v3, v{CS}')
        k(f'ds_write_b32 v3, v{CS+1} offset:64')
        k('s_mov_b64 exec, -1')
        k.label(NS)
        if rid == 0:
            NB = k.newlabel('nobias')
            k(f's_cmp_ge_u32 s{sW}, 2')
            k(f's_cbranch_scc1 {NB}')
            k(f'v_lshlrev_b32 v3, 16, v{vBIAS}')
            k(f'v_mul_f32 v3, {fhex(LOG2E)}, v3')
            k(f'v_lshlrev_b32 v4, 2, v{vTID}')
            k(f'v_add_u32 v4, {L_BIAS}, v4')
            k(f'ds_write_b32 v4, v3')
            k.label(NB)
        k('s_waitcnt lgkmcnt(0)')
        BAR()
        k.stamp()
        def tokstats(stile, vR, vRM):
            k(f's_lshl_b32 s{sT0}, s{stile}, 7')
            k(f'v_lshlrev_b32 v4, 2, v{vN}')
            k(f'v_add_u32 v4, s{sT0}, v4')
            k(f'v_add_u32 v4, {L_RSUM}, v4')
            k(f'ds_read_b32 v5, v4')
            k(f'ds_read_b32 v6, v4 offset:512')
            k(f'ds_read_b32 v14, v4 offset:1024')
            k(f'ds_read_b32 v15, v4 offset:1536')
            k('s_waitcnt lgkmcnt(0)')
            k(f'v_add_f32 v5, v5, v14')
            k(f'v_add_f32 v6, v6, v15')
            k(f'v_mul_f32 v5, {fhex(1/512)}, v5')
            k(f'v_mul_f32 v6, {fhex(1/512)}, v6')
            k(f'v_fma_f32 v6, -v5, v5, v6')
            k(f'v_max_f32 v6, 0, v6')
            k(f'v_add_f32 v6, {fhex(1e-5)}, v6')
            k(f'v_rsq_f32 v{vR}, v6')
            k('s_nop 0')
            k(f'v_mul_f32 v{vRM}, v5, v{vR}')
        k(f'v_lshlrev_b32 v9, 4, v{vH}')
        k(f'v_add_u32 v9, {L_SW}, v9')
        k(f'v_lshlrev_b32 v8, 4, v{vLANE}')
        k(f's_lshl_b32 s{sC}, s{sRBK}, 2')
        if rid == 0:
            vRL2, vRML2, vC2 = 10, 12, 16
            tokstats(sTA, 2, 3)
            k(f'v_mul_f32 v{vRL2}, {fhex(LOG2E)}, v2')
            k(f'v_mul_f32 v{vRML2}, {fhex(LOG2E)}, v3')
            tokstats(sTB, 2, 3)
            k(f'v_mul_f32 v{vRL2+1}, {fhex(LOG2E)}, v2')
            k(f'v_mul_f32 v{vRML2+1}, {fhex(LOG2E)}, v3')
            k(f'v_mov_b32 v{vC2}, {fhex(-2*LN2)}')
            SWR, CLR, T, TT, XL = 36, 128, 144, 160, 48
            vRL, vRML = 17, 18
            k(f's_mov_b32 s{sXR}, 0')
            EL = k.newlabel('eloop'); ES = k.newlabel('eskip')
            k.label(EL)
            k(f's_and_b32 s{sT0}, s{sXR}, 1')
            k(f's_cmp_eq_u32 s{sT0}, 0')
            k(f's_cselect_b32 s{sWR}, s{sSA}, s{sSB}')
            k(f's_cmp_lt_u32 s{sXR}, 2')
            k(f's_cselect_b32 s{sXD}, s{sTA}, s{sTB}')
            k(f'v_mov_b32 v{vRL}, v{vRL2+1}')
            k(f'v_mov_b32 v{vRML}, v{vRML2+1}')
            NX = k.newlabel('nx')
            k(f's_cbranch_scc0 {NX}')
            k(f'v_mov_b32 v{vRL}, v{vRL2}')
            k(f'v_mov_b32 v{vRML}, v{vRML2}')
            k.label(NX)
            k(f's_cmp_ge_u32 s{sWR}, s{sNF}')
            k(f's_cbranch_scc1 {ES}')
            k(f's_lshl_b32 s{sT0}, s{sWR}, 7')
            k(f'v_add_u32 v7, s{sT0}, v9')
            for g_ in range(4):
                k(f'ds_read_b128 {v(SWR+0*16+4*g_ if False else 128+4*g_,4)}, v7 offset:{g_*32}')
            for g_ in range(4):
                k(f'ds_read_b128 {v(144+4*g_,4)}, v7 offset:{L_BIAS - L_SW + g_*32}')
            k(f's_lshl_b32 s{sT1}, s{sXR}, 4')
            k('s_waitcnt lgkmcnt(0)')
            for i in range(16):
                k(f'v_fma_f32 v{144+i}, -v{vRML}, v{128+i}, v{144+i}')
            k(f's_set_gpr_idx_on s{sT1}, gpr_idx(SRC0)')
            k('s_nop 0')
            for i in range(16):
                k(f'v_fma_f32 v{XL+i}, v{ACC+i}, v{vRL}, v{144+i}')
            k('s_set_gpr_idx_off')
            for i in range(16):
                k(f'v_exp_f32 v{128+i}, v{XL+i}')
            for i in range(16):
                k(f'v_add_f32 v{144+i}, 2.0, v{128+i}')
            for i in range(16):
                k(f'v_fma_f32 v{128+i}, v{128+i}, v{144+i}, 2.0')
            for i in range(16):
                k(f'v_rcp_f32 v{128+i}, v{128+i}')
            for i in range(16):
                k(f'v_fmaak_f32 v{128+i}, v{128+i}, v{vC2}, {fhex(LN2)}')
            for i in range(16):
                k(f'v_mul_f32 v{XL+i}, v{XL+i}, v{128+i}')
            for i in range(8):
                k(f'v_cvt_pk_bf16_f32 v{TT+i}, v{XL+2*i}, v{XL+2*i+1}')
            k(f's_add_u32 s{sT0}, s{sC}, s{sXD}')
            k(f's_mul_i32 s{sT0}, s{sT0}, 144')
            k(f's_add_u32 s{sT1}, s{sFB}, s{sWR}')
            k(f's_lshl_b32 s{sT1}, s{sT1}, 1')
            k(f's_add_u32 s{sT0}, s{sT0}, s{sT1}')
            k(f's_add_u32 s{sT0}, s{sT0}, 32')
            k(f's_lshl_b32 s{sT0}, s{sT0}, 10')
            k(f's_add_u32 s{sT0}, s{sT0}, {WS_TF:#x}')
            k(f'buffer_store_dwordx4 {v(TT,4)}, v8, s[{SWS}:{SWS+3}], s{sT0} offen {ST1}')
            k(f'buffer_store_dwordx4 {v(TT+4,4)}, v8, s[{SWS}:{SWS+3}], s{sT0} offen offset:1024 {ST1}')
            k.label(ES)
            k(f's_add_u32 s{sXR}, s{sXR}, 1')
            k(f's_cmp_lt_u32 s{sXR}, 4')
            k(f's_cbranch_scc1 {EL}')
        else:
            vR, vRM = 2, 3
            tokstats(sTA, vR, vRM)
            if 'N' in types:
                k(f's_lshl_b32 s{sT0}, s{sW}, 8')
                k(f'v_lshlrev_b32 v4, 2, v{vN}')
                k(f'v_add_u32 v4, s{sT0}, v4')
                k(f'v_add_u32 v4, {L_PRIV}, v4')
                k(f'ds_write_b32 v4, v{vR}')
                k(f'ds_write_b32 v4, v{vRM} offset:128')
                k(f'v_lshlrev_b32 v7, 4, v{vH}')
                k(f'v_add_u32 v7, s{sT0}, v7')
                k(f'v_add_u32 v7, {L_PRIV}, v7')
                k('s_waitcnt lgkmcnt(0)')
                for g_ in range(4):
                    k(f'ds_read_b128 {v(128+4*g_,4)}, v7 offset:{g_*32}')
                    k(f'ds_read_b128 {v(144+4*g_,4)}, v7 offset:{g_*32 + 128}')
                k(f'v_lshrrev_b32 v10, 4, v{vN}')
                k(f'v_lshlrev_b32 v10, 16, v10')
                k(f'v_lshl_add_u32 v10, v{vH}, 8, v10')
                k(f'v_and_b32 v11, 15, v{vN}')
                k(f'v_lshl_add_u32 v10, v11, 4, v10')
                k('s_waitcnt lgkmcnt(0)')
            k(f's_add_u32 s{sTB}, s{sC}, s{sTA}')
            for j in range(3):
                A = ACC + 16 * j
                SWR, T = 36, 52
                k(f's_add_u32 s{sT1}, s{sQB}, {j}')
                k(f's_lshl_b32 s{sT0}, s{sT1}, 17')
                k(f's_lshl_b32 s{sT2}, s{sTB}, 10')
                k(f's_add_u32 s{sT0}, s{sT0}, s{sT2}')
                if types[j] == 'T':
                    k(f's_cmp_lt_u32 s{sT1}, 16')
                    k(f's_cselect_b32 s{sSCALE}, {fhex(QSCALE)}, 1.0')
                    for g_ in range(4):
                        k(f'ds_read_b128 {v(SWR+4*g_,4)}, v9 offset:{(4+j)*128 + g_*32}')
                    k(f'v_mul_f32 v12, s{sSCALE}, v{vR}')
                    k(f'v_mul_f32 v13, s{sSCALE}, v{vRM}')
                    k('s_waitcnt lgkmcnt(0)')
                    for i in range(16):
                        k(f'v_mul_f32 v{SWR+i}, v13, v{SWR+i}')
                    for i in range(16):
                        k(f'v_fma_f32 v{A+i}, v{A+i}, v12, -v{SWR+i}')
                    for i in range(8):
                        k(f'v_cvt_pk_bf16_f32 v{T+i}, v{A+2*i}, v{A+2*i+1}')
                    k(f's_add_u32 s{sT2}, s{sT0}, 0x10000')
                    k(f'buffer_store_dwordx4 {v(T,4)}, v8, s[{SWS}:{SWS+3}], s{sT0} offen {ST1}')
                    k(f'buffer_store_dwordx4 {v(T+4,4)}, v8, s[{SWS}:{SWS+3}], s{sT2} offen {ST1}')
                    k('s_nop 1')
                else:
                    k(f'v_lshlrev_b32 v11, 2, v{vN}')
                    k(f'v_add_u32 v11, {L_SW}, v11')
                    k(f'ds_read_b32 v12, v11 offset:{(4+j)*128}')
                    k('s_waitcnt lgkmcnt(0)')
                    for i in range(16):
                        k(f'v_mul_f32 v{SWR+i}, v12, v{144+i}')
                    for i in range(16):
                        k(f'v_fma_f32 v{A+i}, v{A+i}, v{128+i}, -v{SWR+i}')
                    for i in range(8):
                        k(f'v_cvt_pk_bf16_f32 v{T+i}, v{A+2*i}, v{A+2*i+1}')
                    k(f'buffer_store_dwordx4 {v(T,4)}, v10, s[{SWS}:{SWS+3}], s{sT0} offen {ST1}')
                    k(f'buffer_store_dwordx4 {v(T+4,4)}, v10, s[{SWS}:{SWS+3}], s{sT0} offen offset:512 {ST1}')
                    k('s_nop 1')
        if rid == 1:
            k('s_waitcnt vmcnt(6)')
            side_stores()
        k.stamp()
        if k.st_en:
            k('s_waitcnt vmcnt(0)')
        k.stamp(); k.stamp(real=True)
        k.stamp_dump(0, sW, vtmp=3)
        k('s_endpgm')

    n0 = k.st_n
    role(0, None)
    k.label(ROLE1)
    V1 = k.newlabel('ttn'); V2 = k.newlabel('nnn')
    k(f's_cmp_eq_u32 s{sCG}, 10')
    k(f's_cbranch_scc1 {V1}')
    k(f's_cmp_gt_u32 s{sCG}, 10')
    k(f's_cbranch_scc1 {V2}')
    k.st_n = n0
    role(1, ['T', 'T', 'T'])
    k.label(V1)
    k.st_n = n0
    role(1, ['T', 'T', 'N'])
    k.label(V2)
    k.st_n = n0
    role(1, ['N', 'N', 'N'])
    k.label(END)
    k('s_endpgm')
    return k.text(208, 100 if DBG else 80)

K2_CONST = 131072
K2_LDS = K2_CONST + 8192 + 256
def gen_k2():
    k = Kern('k2_kernel')
    END = 'k2_end'
    SWS = 4
    sW, sHEAD, sQT, sIT, sT0, sT1, sFB = 8, 9, 10, 11, 12, 13, 14
    sKS, sVS, sLD = 22, 23, 24
    vLANE, vKA, vVA, vO16, vINC, vVA0 = 1, 2, 3, 4, 5, 6
    QF = 8
    NEGM = 16
    O = 32
    S = [48, 64]
    P = 80
    KF = [88, 92]
    VF = [96, 104]
    T = 112
    UN = 8
    k('s_cmp_ge_u32 s2, 256')
    k(f's_cbranch_scc1 {END}')
    k.stamp_init('2' in DBG)
    k.stamp(); k.stamp(real=True)
    k('s_load_dwordx2 s[20:21], s[0:1], 72')
    k('v_lshrrev_b32 v2, 6, v0')
    k(f'v_and_b32 v{vLANE}, 63, v0')
    k(f'v_readfirstlane_b32 s{sW}, v2')
    k(f's_and_b32 s{sHEAD}, s2, 31')
    k(f's_lshr_b32 s{sQT}, s2, 5')
    k(f's_lshl_b32 s{sQT}, s{sQT}, 3')
    k(f'v_lshlrev_b32 v{vO16}, 4, v{vLANE}')
    k(f's_add_u32 s{sQT}, s{sQT}, s{sW}')
    k(f's_lshl_b32 s{sT0}, s{sHEAD}, 16')
    k(f's_lshl_b32 s{sT1}, s{sQT}, 10')
    k(f's_add_u32 s25, s{sT1}, s{sT0}')
    k(f's_lshl_b32 s{sLD}, s{sW}, 10')
    k(f's_add_u32 s{sT0}, s{sT0}, s{sLD}')
    k(f's_add_u32 s{sKS}, s{sT0}, {32*65536:#x}')
    k(f's_add_u32 s{sVS}, s{sT0}, {64*65536:#x}')
    k('s_waitcnt lgkmcnt(0)')
    k.srd(SWS, 20, 21, WS_SIZE)
    k(f'buffer_load_dwordx4 {v(QF,4)}, v{vO16}, s[{SWS}:{SWS+3}], s25 offen')
    def dma_round(i):
        k(f's_add_u32 m0, s{sLD}, {i*8192}')
        k(f's_add_u32 s26, s{sKS}, {i*8192}')
        k(f'buffer_load_dwordx4 v{vO16}, s[{SWS}:{SWS+3}], s26 offen lds')
        k(f's_add_u32 m0, s{sLD}, {65536 + i*8192}')
        k(f's_add_u32 s26, s{sVS}, {i*8192}')
        k(f'buffer_load_dwordx4 v{vO16}, s[{SWS}:{SWS+3}], s26 offen lds')
    dma_round(0)
    dma_round(1)
    k('v_lshlrev_b32 v7, 4, v0')
    k(f'v_add_u32 v7, {K2_CONST}, v7')
    for i in range(4):
        k(f'v_mov_b32 v{T+i}, 0')
    k('v_and_b32 v12, 31, v0')
    k('v_cmp_eq_u32 vcc, 0, v12')
    k(f'v_mov_b32 v13, 0x3f803f80')
    k('s_nop 0')
    for i in range(4):
        k(f'v_cndmask_b32 v{T+i}, v{T+i}, v13, vcc')
    k(f'ds_write_b128 v7, {v(T,4)}')
    for i in range(4):
        k(f'v_mov_b32 v{T+4+i}, 0')
    k(f'v_mov_b32 v7, {K2_CONST + 8192}')
    k(f'v_lshl_add_u32 v7, v{vLANE}, 2, v7')
    k(f'ds_write_b32 v7, v{T+4}')
    k(f'v_lshrrev_b32 v7, 5, v{vLANE}')
    k(f'v_lshlrev_b32 v7, 8, v7')
    k(f'v_and_b32 v12, 15, v{vLANE}')
    k(f'v_lshl_add_u32 v7, v12, 4, v7')
    k(f'v_add_u32 v{vVA0}, 0x10000, v7')
    k(f'v_mov_b32 v{vINC}, {UN*1024}')
    k(f'v_and_b32 v12, 31, v{vLANE}')
    k(f'v_mov_b32 v13, {K2_CONST + 16}')
    k(f'v_mov_b32 v14, 0')
    k('v_cmp_lt_u32 vcc, 15, v12')
    k('s_nop 1')
    k(f'v_cndmask_b32 v{vVA0}, v{vVA0}, v13, vcc')
    k(f'v_cndmask_b32 v{vINC}, v{vINC}, v14, vcc')
    k(f'v_mov_b32 v13, {K2_CONST}')
    k('v_cmp_eq_u32 vcc, 16, v12')
    k('s_nop 1')
    k(f'v_cndmask_b32 v{vVA0}, v{vVA0}, v13, vcc')
    k(f'v_subrev_u32 v14, 20, v12')
    k(f'v_mov_b32 v13, {K2_CONST + 64}')
    k('v_cmp_gt_u32 vcc, 8, v14')
    k('s_nop 1')
    k(f'v_cndmask_b32 v{vVA0}, v{vVA0}, v13, vcc')
    k(f's_mov_b32 s{sFB}, 0')
    k('s_waitcnt vmcnt(0) lgkmcnt(0)')
    k('s_barrier')
    k.stamp()
    k(f'ds_read_b128 {v(KF[0],4)}, v{vO16}')
    k('s_waitcnt lgkmcnt(0)')
    k(MFMA(v(S[0],16), v(KF[0],4), v(QF,4), '0'))
    k('s_nop 15')
    k(f'v_max3_f32 v{T}, v{S[0]}, v{S[0]+1}, v{S[0]+2}')
    for i in range(3, 15, 2):
        k(f'v_max3_f32 v{T}, v{T}, v{S[0]+i}, v{S[0]+i+1}')
    k(f'v_max_f32 v{T}, v{T}, v{S[0]+15}')
    RESTART = k.newlabel('restart')
    k.label(RESTART)
    k(f'v_mov_b32 v{T+1}, v{T}')
    k(f'v_mov_b32 v{vKA}, v{vO16}')
    k(f'v_mov_b32 v{vVA}, v{vVA0}')
    k(f'v_permlane32_swap_b32 v{T}, v{T+1}')
    k(f'ds_read_b128 {v(KF[0],4)}, v{vKA}')
    k(f'ds_read_b128 {v(VF[0],4)}, v{vVA}')
    k(f'ds_read_b128 {v(VF[0]+4,4)}, v{vVA} offset:512')
    k(f'ds_read_b128 {v(KF[1],4)}, v{vKA} offset:1024')
    k(f'v_max_f32 v{T}, v{T}, v{T+1}')
    for i in range(16):
        k(f'v_sub_f32 v{NEGM+i}, 0, v{T}')
    for i in range(16):
        k(f'v_mov_b32 v{O+i}, 0')
    for i in range(8):
        k(f'v_mov_b32 v{VF[1]+i}, 0')
    for i in range(8):
        k(f'v_mov_b32 v{P+i}, 0')
    for i in range(12, 16):
        k(f'v_mov_b32 v{S[1]+i}, 0')
    k('s_waitcnt lgkmcnt(0)')
    k(MFMA(v(S[0],16), v(KF[0],4), v(QF,4), v(NEGM,16)))
    k('s_nop 15')
    def body(dma, prio=None):
        dq = []
        if dma:
            for i in range(2, 8):
                dq.append(i)
        nolds = 'nolds' in EXP
        def MF(*a):
            if 'nomfma' not in EXP: k(MFMA(*a))
        for j in range(UN):
            b = j & 1
            cur, nxt = S[b], S[b ^ 1]
            e = lambda i: k(f'v_exp_f32 v{cur+i}, v{cur+i}')
            c = lambda i: k(f'v_cvt_pk_bf16_f32 v{P+i}, v{cur+2*i}, v{cur+2*i+1}')
            cp = lambda i: k(f'v_cvt_pk_bf16_f32 v{P+i}, v{nxt+2*i}, v{nxt+2*i+1}')
            e(0)
            if prio is not None and (j == 0 or prio[j] != prio[j-1]):
                k(f's_setprio {prio[j]}')
            if j == UN - 1:
                k(f'v_add_u32 v{vVA}, v{vINC}, v{vVA}')
            cp(6); e(1); e(2); cp(7); e(3); e(4)
            MF(v(O,16), v(VF[b^1]+4,4), v(P+4,4), v(O,16))
            voff = ((j + 1) % UN) * 1024
            if not nolds: k(f'ds_read_b128 {v(VF[b^1],4)}, v{vVA} offset:{voff}')
            c(0); e(5); e(6); c(1)
            if not nolds: k('s_waitcnt lgkmcnt(1)')
            e(7)
            MF(v(nxt,16), v(KF[b^1],4), v(QF,4), v(NEGM,16))
            if not nolds: k(f'ds_read_b128 {v(VF[b^1]+4,4)}, v{vVA} offset:{voff+512}')
            e(8); c(2); e(9); e(10); c(3); e(11)
            if dq and j < 6:
                dma_round(dq.pop(0))
            e(12)
            MF(v(O,16), v(VF[b],4), v(P,4), v(O,16))
            if not nolds: k(f'ds_read_b128 {v(KF[b],4)}, v{vKA} offset:{(j+2)*1024}')
            c(4); e(13)
            if j == UN - 1:
                k(f'v_add_u32 v{vKA}, {UN*1024}, v{vKA}')
            e(14); c(5)
            if j == UN - 1:
                k(f's_add_u32 s{sIT}, s{sIT}, 1')
                k(f's_cmp_lt_u32 s{sIT}, {64//UN}')
            e(15)
    FIRST = k.newlabel('first'); LOOP = k.newlabel('loop'); LOOP2 = k.newlabel('loop2'); AFTER = k.newlabel('after'); R2 = k.newlabel('r2')
    k(f's_mov_b32 s{sIT}, 0')
    k(f's_cmp_eq_u32 s{sFB}, 1')
    k(f's_cbranch_scc1 {LOOP}')
    nh = int(os.environ.get('NH', '-1'))
    if nh >= 0:
        k(f's_cmp_ge_u32 s{sW}, 4')
        k(f's_cbranch_scc1 {R2}')
    body(True)
    k('s_waitcnt vmcnt(0)')
    k('s_barrier')
    k.label(LOOP)
    body(False)
    k(f's_cbranch_scc1 {LOOP}')
    if nh >= 0:
        k(f's_branch {AFTER}')
        k.label(R2)
        pr = [1] * nh + [0] * (UN - nh)
        body(True, pr)
        k('s_waitcnt vmcnt(0)')
        k('s_barrier')
        k.label(LOOP2)
        body(False, pr)
        k(f's_cbranch_scc1 {LOOP2}')
        k('s_setprio 0')
        k.label(AFTER)
    k('s_nop 1')
    k(f'v_cvt_pk_bf16_f32 v{P+6}, v{S[1]+12}, v{S[1]+13}')
    k(f'v_cvt_pk_bf16_f32 v{P+7}, v{S[1]+14}, v{S[1]+15}')
    k('s_nop 1')
    k(MFMA(v(O,16), v(VF[1]+4,4), v(P+4,4), v(O,16)))
    k('s_waitcnt lgkmcnt(0)')
    k('s_nop 15')
    k.stamp()
    k(f'v_mov_b32 v{T}, v{O+8}')
    k(f'v_mov_b32 v{T+1}, v{O+8}')
    k('s_nop 1')
    k(f'v_permlane32_swap_b32 v{T}, v{T+1}')
    k('s_nop 1')
    DONE = k.newlabel('done')
    k(f's_cmp_eq_u32 s{sFB}, 1')
    k(f's_cbranch_scc1 {DONE}')
    if EXP != ['']: k(f's_branch {DONE}')
    k(f'v_mov_b32 v{T+2}, {fhex(2.0**40)}')
    k(f'v_cmp_nlt_f32 vcc, v{T}, v{T+2}')
    k(f'v_mov_b32 v{T+1}, 0x207')
    for i in range(8):
        k(f'v_cmp_class_f32 s[26:27], v{O+i}, v{T+1}')
        k('s_or_b64 vcc, vcc, s[26:27]')
    k('s_cmp_eq_u64 vcc, 0')
    k(f's_cbranch_scc1 {DONE}')
    k(f's_mov_b32 s{sFB}, 1')
    k(f'v_mov_b32 v{vKA}, v{vO16}')
    k(f'v_mov_b32 v{T}, 0xff800000')
    k(f's_mov_b32 s{sIT}, 0')
    FL = k.newlabel('fbloop')
    k.label(FL)
    k(f'ds_read_b128 {v(KF[0],4)}, v{vKA}')
    k('s_waitcnt lgkmcnt(0)')
    k(MFMA(v(S[0],16), v(KF[0],4), v(QF,4), '0'))
    k('s_nop 15')
    for i in range(0, 16, 2):
        k(f'v_max3_f32 v{T}, v{T}, v{S[0]+i}, v{S[0]+i+1}')
    k(f'v_add_u32 v{vKA}, 0x400, v{vKA}')
    k(f's_add_u32 s{sIT}, s{sIT}, 1')
    k(f's_cmp_lt_u32 s{sIT}, 64')
    k(f's_cbranch_scc1 {FL}')
    k(f's_branch {RESTART}')
    k.label(DONE)
    k(f'v_rcp_f32 v{T}, v{T}')
    k('s_nop 0')
    for i in range(8):
        k(f'v_mul_f32 v{O+i}, v{O+i}, v{T}')
    for i in range(4):
        k(f'v_cvt_pk_bf16_f32 v{T+4+i}, v{O+2*i}, v{O+2*i+1}')
    k(f's_mul_i32 s{sT0}, s{sQT}, 144')
    k(f's_add_u32 s{sT0}, s{sT0}, s{sHEAD}')
    k(f's_lshl_b32 s{sT0}, s{sT0}, 10')
    k(f's_add_u32 s{sT0}, s{sT0}, {WS_TF:#x}')
    k(f'buffer_store_dwordx4 {v(T+4,4)}, v{vO16}, s[{SWS}:{SWS+3}], s{sT0} offen')
    if k.st_en:
        k('s_waitcnt vmcnt(0)')
    k.stamp(); k.stamp(real=True)
    k.stamp_dump(1, sW, vtmp=T+9)
    k.label(END)
    k('s_endpgm')
    return k.text(128, 100 if DBG else 32)

K3_ROW = 272
K3_REG = 64 * K3_ROW
K3_LDS = 8 * K3_REG
def gen_k3():
    k = Kern('k3_kernel')
    END = 'k3_end'
    SWS, SX, SO = 4, 8, 12
    sW, sTB, sNB, sT0, sT1, sTO, sWO = 16, 17, 18, 19, 20, 21, 22
    vLANE, vO16 = 1, 2
    ACC = 16
    BUF = 80
    XR = 224
    k('s_cmp_ge_u32 s2, 256')
    k(f's_cbranch_scc1 {END}')
    k.stamp_init('3' in DBG)
    k.stamp(); k.stamp(real=True)
    k('s_load_dwordx2 s[24:25], s[0:1], 0')
    k('s_load_dwordx2 s[26:27], s[0:1], 56')
    k('s_load_dwordx2 s[28:29], s[0:1], 72')
    k('v_lshrrev_b32 v2, 6, v0')
    k(f'v_and_b32 v{vLANE}, 63, v0')
    k(f'v_readfirstlane_b32 s{sW}, v2')
    k(f's_and_b32 s{sTB}, s2, 7')
    k(f's_lshr_b32 s{sT0}, s2, 3')
    k(f's_and_b32 s{sT0}, s{sT0}, 3')
    k(f's_lshl_b32 s{sT0}, s{sT0}, 3')
    k(f's_add_u32 s{sTB}, s{sTB}, s{sT0}')
    k(f's_lshr_b32 s{sNB}, s2, 5')
    k(f'v_lshlrev_b32 v{vO16}, 4, v{vLANE}')
    k('s_waitcnt lgkmcnt(0)')
    k.srd(SWS, 28, 29, WS_SIZE)
    k.srd(SX, 24, 25, 2048 * 1024)
    k.srd(SO, 26, 27, 2048 * 1024)
    k('v_lshrrev_b32 v3, 3, v0')
    k('v_and_b32 v4, 7, v0')
    k('v_lshlrev_b32 v5, 10, v3')
    k('v_lshl_add_u32 v5, v4, 4, v5')
    k(f's_lshl_b32 s{sT0}, s{sTB}, 16')
    k(f's_lshl_b32 s{sT1}, s{sNB}, 7')
    k(f's_add_u32 s30, s{sT0}, s{sT1}')
    k.vmop(f'buffer_load_dwordx4 {v(XR,4)}, v5, s[{SX}:{SX+3}], s30 offen', 'x')
    k(f's_mul_i32 s{sTO}, s{sTB}, {2*144}')
    k(f's_mul_i32 s{sT0}, s{sW}, 18')
    k(f's_add_u32 s{sTO}, s{sTO}, s{sT0}')
    k(f's_lshl_b32 s{sTO}, s{sTO}, 10')
    k(f's_add_u32 s{sTO}, s{sTO}, {WS_TF:#x}')
    k(f's_lshl_b32 s{sWO}, s{sT0}, 4')
    k(f's_lshl_b32 s{sT1}, s{sNB}, 1')
    k(f's_add_u32 s{sWO}, s{sWO}, s{sT1}')
    k(f's_lshl_b32 s{sWO}, s{sWO}, 10')
    k(f's_add_u32 s{sWO}, s{sWO}, {WS_WF:#x}')
    k(f's_add_u32 s31, s{sTO}, {144*1024}')
    def loads(ks):
        b = BUF + (ks % 9) * 16
        k.vmop(f'buffer_load_dwordx4 {v(b,4)}, v{vO16}, s[{SWS}:{SWS+3}], s{sTO} offen', ks)
        k.vmop(f'buffer_load_dwordx4 {v(b+4,4)}, v{vO16}, s[{SWS}:{SWS+3}], s31 offen', ks)
        k.vmop(f'buffer_load_dwordx4 {v(b+8,4)}, v{vO16}, s[{SWS}:{SWS+3}], s{sWO} offen', ks)
        k.vmop(f'buffer_load_dwordx4 {v(b+12,4)}, v{vO16}, s[{SWS}:{SWS+3}], s{sWO} offen offset:1024', ks)
        k(f's_add_u32 s{sTO}, s{sTO}, 1024')
        k(f's_add_u32 s31, s31, 1024')
        k(f's_add_u32 s{sWO}, s{sWO}, 16384')
    for ks in range(9):
        loads(ks)
    k.stamp()
    for i in range(64):
        k(f'v_mov_b32 v{ACC+i}, 0')
    for ks in range(18):
        k.vmwait(ks)
        if ks in (0, 9): k.stamp()
        b = BUF + (ks % 9) * 16
        for tt in range(2):
            for nb in range(2):
                A = v(ACC + (tt * 2 + nb) * 16, 16)
                k(MFMA(A, v(b + 8 + 4 * nb, 4), v(b + 4 * tt, 4), A))
        if ks + 9 < 18:
            loads(ks + 9)
    k('s_nop 15')
    k.stamp()
    k(f'v_and_b32 v6, 31, v{vLANE}')
    k(f'v_mul_u32_u24 v6, {K3_ROW}, v6')
    k(f'v_lshrrev_b32 v7, 5, v{vLANE}')
    k(f'v_lshl_add_u32 v6, v7, 4, v6')
    k(f's_mul_i32 s{sT0}, s{sW}, {K3_REG}')
    k(f'v_add_u32 v6, s{sT0}, v6')
    for tt in range(2):
        for nb in range(2):
            for g in range(4):
                r = ACC + (tt * 2 + nb) * 16 + 4 * g
                k(f'ds_write_b128 v6, {v(r,4)} offset:{tt*32*K3_ROW + nb*128 + g*32}')
    k('s_waitcnt lgkmcnt(0)')
    k('s_barrier')
    k(f'v_mul_u32_u24 v6, {K3_ROW}, v3')
    k('v_lshl_add_u32 v6, v4, 5, v6')
    R = 80
    k(f'v_add_u32 v7, {4*K3_REG}, v6')
    for w in range(8):
        base = 'v6' if w < 4 else 'v7'
        off = (w % 4) * K3_REG
        k(f'ds_read_b128 {v(R+8*w,4)}, {base} offset:{off}')
        k(f'ds_read_b128 {v(R+8*w+4,4)}, {base} offset:{off+16}')
        if w == 3:
            k('s_waitcnt lgkmcnt(4)')
    k('s_waitcnt lgkmcnt(0)')
    for w in range(1, 8):
        for i in range(8):
            k(f'v_add_f32 v{R+i}, v{R+i}, v{R+8*w+i}')
    k.vmwait('x')
    for i in range(4):
        k(f'v_lshlrev_b32 v{R+16+2*i}, 16, v{XR+i}')
        k(f'v_and_b32 v{R+17+2*i}, 0xffff0000, v{XR+i}')
    for i in range(8):
        k(f'v_add_f32 v{R+i}, v{R+i}, v{R+16+i}')
    for i in range(4):
        k(f'v_cvt_pk_bf16_f32 v{R+24+i}, v{R+2*i}, v{R+2*i+1}')
    k(f'buffer_store_dwordx4 {v(R+24,4)}, v5, s[{SO}:{SO+3}], s30 offen')
    k.stamp()
    if k.st_en:
        k('s_waitcnt vmcnt(0)')
    k.stamp(); k.stamp(real=True)
    k.stamp_dump(2, sW, vtmp=3)
    k.label(END)
    k('s_endpgm')
    return k.text(232, 100 if DBG else 40)

HEADER = open('parallel_sum__mha_block__dense_activation_mish__prompt.s.ref').read().split('; Override launch')[0]

def main(out):
    t1, d1 = gen_k1()
    t2, d2 = gen_k2()
    t3, d3 = gen_k3()
    s = HEADER
    s += f'; @launch kernel=k1_kernel grid=(256,1,1) block=(512,1,1) lds={K1_LDS}\n'
    s += f'; @launch kernel=k2_kernel grid=(256,1,1) block=(512,1,1) lds={K2_LDS}\n'
    s += f'; @launch kernel=k3_kernel grid=(256,1,1) block=(512,1,1) lds={K3_LDS}\n'
    s += '.amdgcn_target "amdgcn-amd-amdhsa--gfx950"\n'
    s += t1 + t2 + t3 + d1 + d2 + d3
    open(out, 'w').write(s)

if __name__ == '__main__':
    main(sys.argv[1] if len(sys.argv) > 1 else 'parallel_sum__mha_block__dense_activation_mish__prompt.s')
```

```python
import math, sys, os
DBG = os.environ.get('DBG', '')
EXP = os.environ.get('EXP', '').split(',')
ST1 = os.environ.get('ST1', 'sc0 sc1')
ST2 = os.environ.get('ST2', '')
from asmlib import *

LOG2E = 1.4426950408889634
LN2 = 0.6931471805599453
QSCALE = 0.25 * LOG2E

WS_QKV = 0
WS_TF = 0x600000
WS_WF = 0xF00000
WS_PART = 0x1200000
WS_SIZE = 0x10000000

def MFMA(d, A, B, C):
    return f'v_mfma_f32_32x32x16_bf16 {d}, {A}, {B}, {C}'

XSL, NXS = 16384, 3
WSL, NWS = 16384, 6
WRB = XSL * NXS
MISC = WRB + WSL * NWS
L_SW = MISC
L_RSUM = MISC + 1024
L_BIAS = MISC + 3072
L_PRIV = MISC + 3584
K1_LDS = MISC + 3584 + 2048

def gen_k1():
    k = Kern('k1_kernel')
    def BAR():
        if 'nobar' not in EXP: k('s_barrier')
    END = 'k1_end'
    SX, SW_, SWS, SSZ, SB, SWQ = 4, 8, 12, 16, 20, 64
    sW, sRB, sCH, sRBK, sCG = 24, 25, 26, 27, 28
    sC, sXD, sWD, sXO, sFO, sQO, sLX, sT0, sT1, sT2 = 29, 30, 31, 32, 33, 34, 35, 53, 54, 55
    sXR, sWR = 56, 63
    sFB, sQB, sTA, sSWZ1, sSWZ2, sSCALE = 57, 58, 59, 60, 61, 70
    sTB, sSA, sSB, sIDX, sNF = 42, 43, 52, 68, 69
    vTID, vLANE = 0, 1
    vX = 8
    vW = 16
    vOX0, vOX1, vOF, vOQ = 20, 21, 22, 23
    vZ1, vZ2 = 2, 3
    vBIAS = 25
    vS1 = 26
    vS2 = 184
    ACC = 64
    XA, XB = [128, 132], [136, 140]
    WSET = [144, 156]
    CW = 168
    CS = 172
    RS = 176
    TMP = 180
    vH, vN = 192, 193
    SEL = 196

    k(f's_cmp_ge_u32 s2, 256')
    k(f's_cbranch_scc1 {END}')
    k.stamp_init('1' in DBG, sbase=74)
    k.stamp(); k.stamp(real=True)
    k('s_load_dwordx4 s[36:39], s[0:1], 0')
    k('s_load_dwordx4 s[44:47], s[0:1], 32')
    k('s_load_dwordx2 s[40:41], s[0:1], 16')
    k('s_load_dwordx2 s[48:49], s[0:1], 48')
    k('s_load_dwordx2 s[50:51], s[0:1], 72')
    k(f'v_lshrrev_b32 v2, 6, v0')
    k(f'v_and_b32 v{vLANE}, 63, v0')
    k(f'v_readfirstlane_b32 s{sW}, v2')
    k(f'v_lshrrev_b32 v{vH}, 5, v{vLANE}')
    k(f'v_and_b32 v{vN}, 31, v{vLANE}')
    k(f's_and_b32 s{sT0}, s2, 7')
    k(f's_lshr_b32 s{sT1}, s2, 3')
    k(f's_and_b32 s{sRBK}, s{sT0}, 1')
    k(f's_lshl_b32 s{sRBK}, s{sRBK}, 3')
    k(f's_and_b32 s{sT2}, s{sT1}, 7')
    k(f's_add_u32 s{sRBK}, s{sRBK}, s{sT2}')
    k(f's_lshr_b32 s{sCG}, s{sT0}, 1')
    k(f's_mul_i32 s{sFB}, s{sCG}, 14')
    k(f's_lshl_b32 s{sCG}, s{sCG}, 2')
    k(f's_lshr_b32 s{sT2}, s{sT1}, 3')
    k(f's_add_u32 s{sCG}, s{sCG}, s{sT2}')
    k(f's_lshl_b32 s{sT0}, s{sT2}, 2')
    k(f's_add_u32 s{sFB}, s{sFB}, s{sT0}')
    k(f's_cmp_eq_u32 s{sT2}, 3')
    k(f's_cselect_b32 s{sNF}, 2, 4')
    k(f's_and_b32 s{sRB}, s{sW}, 3')
    k(f's_lshr_b32 s{sCH}, s{sW}, 2')
    k(f's_mul_i32 s{sQB}, s{sCG}, 3')
    k(f's_lshl_b32 s{sIDX}, s{sRB}, 2')
    k(f'v_lshrrev_b32 v2, 3, v{vLANE}')
    k(f'v_and_b32 v3, 7, v{vLANE}')
    k(f'v_lshrrev_b32 v4, 4, v{vLANE}')
    k(f'v_xor_b32 v5, v3, v4')
    k(f'v_lshlrev_b32 v5, 4, v5')
    k(f'v_lshl_add_u32 v{vOX0}, v2, 10, v5')
    k(f'v_xor_b32 v{vOX1}, 64, v{vOX0}')
    k(f'v_add_u32 v{vOX1}, 0x2000, v{vOX1}')
    k(f'v_and_b32 v3, 3, v{vLANE}')
    k(f'v_bfe_u32 v5, v{vLANE}, 2, 2')
    k(f'v_xor_b32 v5, v5, v4')
    k(f'v_lshlrev_b32 v6, 4, v3')
    k(f'v_lshl_add_u32 v6, v5, 6, v6')
    k(f'v_mul_u32_u24 v7, 3584, v4')
    k(f'v_add_u32 v{vOF}, v7, v6')
    k(f'v_mul_u32_u24 v7, 3072, v4')
    k(f'v_add_u32 v{vOQ}, v7, v6')
    k(f'v_mov_b32 v7, 0x7f000000')
    k(f'v_cmp_eq_u32 vcc, 3, v5')
    k(f'v_cmp_le_u32 s[72:73], s{sNF}, v5')
    k('s_nop 1')
    k(f'v_cndmask_b32 v{vOQ}, v{vOQ}, v7, vcc')
    k(f'v_cndmask_b32 v{vOF}, v{vOF}, v7, s[72:73]')
    k('s_waitcnt lgkmcnt(0)')
    k.srd(SX, 36, 37, 2048 * 512 * 2)
    k.srd(SW_, 44, 45, 512 * 3584)
    k.srd(SWQ, 38, 39, 512 * 3072)
    k(f's_lshl_b32 s{sXO}, s{sRBK}, 17')
    k(f's_lshl_b32 s{sT0}, s{sW}, 14')
    k(f's_add_u32 s{sXO}, s{sXO}, s{sT0}')
    k(f's_mul_i32 s{sFO}, s{sW}, {4*3584}')
    k(f's_lshl_b32 s{sT0}, s{sFB}, 6')
    k(f's_add_u32 s{sFO}, s{sFO}, s{sT0}')
    k(f's_mul_i32 s{sQO}, s{sW}, {4*3072}')
    k(f's_lshl_b32 s{sT0}, s{sQB}, 6')
    k(f's_add_u32 s{sQO}, s{sQO}, s{sT0}')
    k(f's_lshl_b32 s{sLX}, s{sW}, 10')
    k(f's_lshl_b32 s{sXD}, s{sW}, 11')
    k(f's_add_u32 s{sWD}, s{sLX}, {WRB}')
    k(f's_mov_b32 s{sC}, 0')
    def dmaX(force=False):
        if 'nodma' in EXP and not force: return []
        return [[f's_mov_b32 m0, s{sXD}', f's_cmp_lt_u32 s{sC}, 8', f's_cselect_b32 s{sT0}, s{sXO}, 0x7f000000',
                 f'buffer_load_dwordx4 v{vOX0}, s[{SX}:{SX+3}], s{sT0} offen lds'],
                [f's_add_u32 m0, s{sXD}, 1024', f's_add_u32 s{sXO}, s{sXO}, 128',
                 f'buffer_load_dwordx4 v{vOX1}, s[{SX}:{SX+3}], s{sT0} offen lds',
                 f's_add_u32 s{sC}, s{sC}, 1', f's_add_u32 s{sXD}, s{sXD}, {XSL}', f's_cmp_ge_u32 s{sXD}, {NXS*XSL}',
                 f's_cselect_b32 s{sT0}, {NXS*XSL}, 0', f's_sub_u32 s{sXD}, s{sXD}, s{sT0}']]
    def dmaW(force=False):
        if 'nodma' in EXP and not force: return []
        return [[f's_mov_b32 m0, s{sWD}', f's_add_u32 s{sT1}, s{sFO}, {32*3584}',
                 f'buffer_load_dwordx4 v{vOF}, s[{SW_}:{SW_+3}], s{sFO} offen lds', f's_mov_b32 s{sFO}, s{sT1}'],
                [f's_add_u32 m0, s{sWD}, 8192', f's_add_u32 s{sT1}, s{sQO}, {32*3072}',
                 f'buffer_load_dwordx4 v{vOQ}, s[{SWQ}:{SWQ+3}], s{sQO} offen lds', f's_mov_b32 s{sQO}, s{sT1}',
                 f's_add_u32 s{sWD}, s{sWD}, {WSL}', f's_cmp_ge_u32 s{sWD}, {WRB + NWS*WSL}',
                 f's_cselect_b32 s{sT1}, {NWS*WSL}, 0', f's_sub_u32 s{sWD}, s{sWD}, s{sT1}']]
    def emit(groups):
        for d in groups:
            for t in d: k(t)
    emit(dmaX(True)); emit(dmaW(True)); emit(dmaW(True))
    k.stamp()
    k(f'v_bfe_u32 v2, v{vN}, 1, 3')
    k(f'v_xor_b32 v2, v2, v{vH}')
    k(f'v_lshlrev_b32 v2, 4, v2')
    k(f'v_lshl_add_u32 v4, v{vN}, 7, v2')
    k(f'v_bfe_u32 v6, v{vLANE}, 2, 2')
    k(f'v_lshl_add_u32 v5, v{vH}, 3, v6')
    k(f'v_lshlrev_b32 v5, 8, v5')
    k(f'v_bfe_u32 v7, v{vLANE}, 4, 1')
    k(f'v_lshl_add_u32 v5, v7, 5, v5')
    k(f'v_and_b32 v7, 3, v{vLANE}')
    k(f'v_lshl_add_u32 v5, v7, 3, v5')
    k(f'v_add_u32 v5, {WRB}, v5')
    k(f'v_mov_b32 v2, 0')
    k(f'v_mov_b32 v3, 0x3f803f80')
    k(f'v_cmp_eq_u32 vcc, 0, v{vN}')
    k(f'v_cmp_eq_u32 s[72:73], 17, v{vN}')
    k('s_nop 1')
    k('s_or_b64 vcc, vcc, s[72:73]')
    k('s_nop 1')
    k(f'v_cndmask_b32 v{SEL}, v2, v3, vcc')
    for i in range(1, 4):
        k(f'v_mov_b32 v{SEL+i}, v{SEL}')
    k.srd(SWS, 50, 51, WS_SIZE)
    k.srd(SB, 46, 47, 1792 * 2)
    SWZ = [26, 184, 200]
    sZD = [60, 61, 62]
    def side_loads():
        k(f'v_lshlrev_b32 v2, 12, v{vH}')
        k(f'v_lshl_add_u32 v{vZ1}, v{vN}, 1, v2')
        k(f'v_add_u32 v{vZ2}, 0x2000, v{vZ1}')
        k(f's_and_b32 s{sT2}, s2, 3')
        k(f's_lshl_b32 s{sT2}, s{sT2}, 2')
        k(f's_add_u32 s{sT2}, s{sT2}, s{sRB}')
        for i in range(3):
            SKI = None
            if i == 2:
                SKI = k.newlabel('noswz3')
                k(f's_cmp_ge_u32 s2, 64')
                k(f's_cbranch_scc1 {SKI}')
            k(f's_lshr_b32 s{sT0}, s2, 2')
            if i: k(f's_add_u32 s{sT0}, s{sT0}, {64*i}')
            if i == 0:
                k(f's_cmp_lt_u32 s{sT0}, 32')
                k(f's_cselect_b32 s{SSZ}, s40, s48')
                k(f's_cselect_b32 s{SSZ+1}, s41, s49')
                k(f's_mov_b32 s{SSZ+2}, {1792*1024:#x}')
                k(f's_cselect_b32 s{SSZ+2}, {512*1024:#x}, s{SSZ+2}')
                k(f's_cselect_b32 s{sT1}, 0, 32')
                k(f's_and_b32 s{SSZ+1}, s{SSZ+1}, 0xffff')
                k(f's_mov_b32 s{SSZ+3}, 0x20000')
                k(f's_sub_u32 s{sT1}, s{sT0}, s{sT1}')
            else:
                if i == 1: k.srd(SSZ, 48, 49, 1792 * 1024)
                k(f's_sub_u32 s{sT1}, s{sT0}, 32')
            k(f's_lshl_b32 s{sT1}, s{sT1}, 14')
            k(f's_lshl_b32 s{sZD[i]}, s{sT2}, 6')
            k(f's_add_u32 s{sT1}, s{sT1}, s{sZD[i]}')
            for j in range(8):
                k(f'buffer_load_ushort v{SWZ[i]+j}, v{vZ1 if j < 4 else vZ2}, s[{SSZ}:{SSZ+3}], s{sT1} offen offset:{(j%4)*1024}')
            k(f's_lshl_b32 s{sZD[i]}, s{sT0}, 4')
            k(f's_add_u32 s{sZD[i]}, s{sZD[i]}, s{sT2}')
            k(f's_lshl_b32 s{sZD[i]}, s{sZD[i]}, 10')
            k(f's_add_u32 s{sZD[i]}, s{sZD[i]}, {WS_WF:#x}')
            if SKI: k.label(SKI)
    def side_stores():
        k(f'v_lshlrev_b32 v40, 4, v{vLANE}')
        for i in range(3):
            SKI = None
            if i == 2:
                SKI = k.newlabel('noswz3s')
                k(f's_cmp_ge_u32 s2, 64')
                k(f's_cbranch_scc1 {SKI}')
            for r in range(4):
                k(f'v_lshl_or_b32 v{36+r}, v{SWZ[i]+2*r+1}, 16, v{SWZ[i]+2*r}')
            k(f'buffer_store_dwordx4 v[36:39], v40, s[{SWS}:{SWS+3}], s{sZD[i]} offen {ST1}')
            k('s_nop 1')
            if SKI: k.label(SKI)
    k(f's_lshl_b32 s{sT0}, s{sFB}, 6')
    k(f'v_lshlrev_b32 v2, 1, v{vTID}')
    k(f'buffer_load_ushort v{vBIAS}, v2, s[{SB}:{SB+3}], s{sT0} offen')
    k(f's_mov_b32 s{sXR}, 0')
    k(f's_mov_b32 s{sWR}, 0')
    ROLE1 = k.newlabel('role1')
    k(f's_cmp_eq_u32 s{sCH}, 1')
    k(f's_cbranch_scc1 {ROLE1}')

    def role(rid, types):
        WB_ = 0 if rid == 0 else 8192
        if rid == 0:
            k(f's_lshr_b32 s{sT0}, s{sW}, 1')
            k(f's_and_b32 s{sT1}, s{sW}, 1')
            k(f's_lshl_b32 s{sTA}, s{sT0}, 1')
            k(f's_or_b32 s{sTA}, s{sTA}, s{sT1}')
            k(f's_xor_b32 s{sTB}, s{sTA}, 1')
            k(f's_lshl_b32 s{sSA}, s{sT1}, 1')
            k(f's_or_b32 s{sSA}, s{sSA}, s{sT0}')
            k(f's_xor_b32 s{sSB}, s{sSA}, 1')
            nx, nwf = 2, 2
            for i, st_ in enumerate((sTA, sTB)):
                k(f's_lshl_b32 s{sT0}, s{st_}, 12')
                k(f'v_add_u32 v{vX+4*i}, s{sT0}, v4')
                for kk in range(1, 4):
                    k(f'v_xor_b32 v{vX+4*i+kk}, {kk*32}, v{vX+4*i}')
            for j, ss in enumerate((sSA, sSB)):
                k(f'v_xor_b32 v7, s{ss}, v6')
                k(f'v_lshl_add_u32 v{vW+j}, v7, 6, v5')
            tiles = [(0, 0), (0, 1), (1, 0), (1, 1)]
        else:
            k(f's_mov_b32 s{sTA}, s{sRB}')
            nx, nwf = 1, 3
            k(f's_lshl_b32 s{sT0}, s{sRB}, 12')
            k(f'v_add_u32 v{vX}, s{sT0}, v4')
            for kk in range(1, 4):
                k(f'v_xor_b32 v{vX+kk}, {kk*32}, v{vX}')
            for j in range(3):
                k(f'v_xor_b32 v7, {j}, v6')
                k(f'v_lshl_add_u32 v{vW+j}, v7, 6, v5')
            tiles = [(0, 0), (0, 1), (0, 2)]
        nt = len(tiles)
        XR = [XA, XB]
        for i in range(16 * nt):
            k(f'v_mov_b32 v{ACC+i}, 0')
        for i in range(4):
            k(f'v_mov_b32 v{CS+i}, 0')
            k(f'v_mov_b32 v{RS+i}, 0')
        def rd_list(kk, ks, st):
            off = WB_ + ks * 4096
            def xr(i): return [f'ds_read_b128 {v(XR[i][st],4)}, v{vX+4*i+kk}']
            def wr(j): return [f'ds_read_b64_tr_b16 {v(WSET[st]+4*j,2)}, v{vW+j} offset:{off}',
                               f'ds_read_b64_tr_b16 {v(WSET[st]+4*j+2,2)}, v{vW+j} offset:{off+1024}']
            if rid == 0: return xr(0) + wr(0) + wr(1) + xr(1)
            return xr(0) + wr(0) + wr(1) + wr(2)
        need = [3, 5, 6, 6] if rid == 0 else [3, 5, 7]
        NOLD = 6 if rid == 0 else 7
        def advW():
            L = [f's_add_u32 s{sWR}, s{sWR}, {WSL}', f's_cmp_eq_u32 s{sWR}, {NWS*WSL}',
                 f's_mov_b32 s{sT2}, {WSL}', f's_cselect_b32 s{sT2}, {(WSL - NWS*WSL) & 0xffffffff:#x}, s{sT2}', f's_cselect_b32 s{sWR}, 0, s{sWR}']
            for j in range(nwf):
                L.append(f'v_add_u32 v{vW+j}, s{sT2}, v{vW+j}')
            return L
        def advX():
            L = [f's_add_u32 s{sXR}, s{sXR}, {XSL}', f's_cmp_eq_u32 s{sXR}, {NXS*XSL}',
                 f's_mov_b32 s{sSCALE}, {XSL}', f's_cselect_b32 s{sSCALE}, {(XSL - NXS*XSL) & 0xffffffff:#x}, s{sSCALE}', f's_cselect_b32 s{sXR}, 0, s{sXR}']
            for i in range(4 * nx):
                L.append(f'v_add_u32 v{vX+i}, s{sSCALE}, v{vX+i}')
            return L
        def kstep(st, nxt_reads, pre=(), dmas=None, post=()):
            dmas = list(dmas) if dmas else []
            if 'nocomp' in EXP:
                emit(dmas)
                for t in pre: k(t)
                for t in post: k(t)
                return
            rl = list(nxt_reads)
            st_ops = []
            for q in range(2):
                x = XR[0][st] + 2 * (1 - rid) + q
                st_ops += [f'v_and_b32 v{TMP+2*q}, 0xffff0000, v{x}', f'v_lshlrev_b32 v{TMP+2*q+1}, 16, v{x}']
            for q in range(2):
                st_ops += [f'v_add_f32 v{RS}, v{RS}, v{TMP+2*q}', f'v_fmac_f32 v{RS+2}, v{TMP+2*q}, v{TMP+2*q}',
                           f'v_add_f32 v{RS+1}, v{RS+1}, v{TMP+2*q+1}', f'v_fmac_f32 v{RS+3}, v{TMP+2*q+1}, v{TMP+2*q+1}']
            if 'nodot' in EXP: st_ops = []
            pre = list(pre)
            per = (len(rl) + nt - 1) // nt
            sper = (len(st_ops) + nt - 1) // nt
            dper = (len(dmas) + nt - 1) // nt
            new = 0
            for t, (xi, wj) in enumerate(tiles):
                X = v(XR[xi][st], 4); W = v(WSET[st] + 4 * wj, 4); A = v(ACC + 16 * t, 16)
                k(f's_waitcnt lgkmcnt({NOLD - need[t] + new})')
                ty = 'T' if rid == 0 else types[t]
                if ty == 'N': k(MFMA(A, X, W, A))
                else: k(MFMA(A, W, X, A))
                if t == 0:
                    for s_ in pre: k(s_)
                for _ in range(per):
                    if rl:
                        k(rl.pop(0)); new += 1
                for _ in range(dper):
                    if dmas:
                        for s_ in dmas.pop(0): k(s_)
                for _ in range(sper):
                    if st_ops: k(st_ops.pop(0))
                if 'nodot' not in EXP:
                    if rid == 0 and t == 1:
                        k(f'v_mfma_f32_16x16x32_bf16 {v(CS,4)}, {v(SEL,4)}, {v(WSET[st],4)}, {v(CS,4)}')
                    if rid == 1 and t == 2:
                        k(f's_set_gpr_idx_on s{sIDX}, gpr_idx(SRC0)')
                        k('s_nop 0')
                        for r in range(4):
                            k(f'v_mov_b32 v{CW+r}, v{WSET[st]+r}')
                        k('s_set_gpr_idx_off')
                        k('s_nop 1')
                        k(f'v_mfma_f32_16x16x32_bf16 {v(CS,4)}, {v(SEL,4)}, {v(CW,4)}, {v(CS,4)}')
            for s_ in post: k(s_)
            assert not rl and not st_ops and not dmas
        def iteration(par, vm, dmas0, dmas1=None, post=()):
            k(f's_waitcnt vmcnt({vm})')
            BAR()
            kstep(0, rd_list(2 * par + 1, 1, 1), dmas=dmas0)
            pre = advW() + (advX() if par == 1 else [])
            kstep(1, rd_list((2 * par + 2) % 4, 0, 0), pre=pre, dmas=dmas1, post=post)
        k(f's_waitcnt vmcnt(3)')
        BAR()
        k.stamp()
        for t in rd_list(0, 0, 0): k(t)
        iteration(0, 1, dmaX() + dmaW(), dmaW() + dmaW())
        iteration(1, 4, dmaX() + dmaW(), dmaW())
        LOOP = k.newlabel('loop')
        k.label(LOOP)
        iteration(0, 8, dmaX() + dmaW())
        iteration(1, 8, dmaW(), post=[f's_add_u32 s{sNF}, s{sNF}, 8', f's_cmp_lt_u32 s{sNF}, 56'])
        k(f's_cbranch_scc1 {LOOP}')
        k(f's_and_b32 s{sNF}, s{sNF}, 7')
        k('s_nop 7')
        k.stamp()
        if rid == 1: side_loads()
        k(f'v_add_f32 v{RS}, v{RS}, v{RS+1}')
        k(f'v_add_f32 v{RS+2}, v{RS+2}, v{RS+3}')
        k(f'v_mov_b32 v{RS+1}, v{RS}')
        k(f'v_mov_b32 v{RS+3}, v{RS+2}')
        k('s_nop 1')
        k(f'v_permlane32_swap_b32 v{RS}, v{RS+1}')
        k(f'v_permlane32_swap_b32 v{RS+2}, v{RS+3}')
        k('s_nop 1')
        k(f'v_add_f32 v{RS}, v{RS}, v{RS+1}')
        k(f'v_add_f32 v{RS+2}, v{RS+2}, v{RS+3}')
        k(f's_lshl_b32 s{sT0}, s{sTA}, 7')
        k(f'v_lshlrev_b32 v2, 2, v{vN}')
        k(f'v_add_u32 v2, s{sT0}, v2')
        k(f'v_add_u32 v2, {MISC}, v2')
        k(f'ds_write_b32 v2, v{RS} offset:{L_RSUM - MISC + rid*1024}')
        k(f'ds_write_b32 v2, v{RS+2} offset:{L_RSUM - MISC + rid*1024 + 512}')
        NS = k.newlabel('nosw')
        if rid == 1:
            k(f's_cmp_eq_u32 s{sRB}, 3')
            k(f's_cbranch_scc1 {NS}')
            k(f's_lshl_b32 s{sT0}, s{sRB}, 7')
            k(f's_add_u32 s{sT0}, s{sT0}, {L_SW + 512}')
        else:
            k(f's_lshl_b32 s{sT0}, s{sSA}, 7')
            k(f's_add_u32 s{sT0}, s{sT0}, {L_SW}')
        k(f'v_lshlrev_b32 v3, 2, v{vLANE}')
        k(f'v_add_u32 v3, s{sT0}, v3')
        k('s_mov_b64 exec, 0xffff')
        k(f'ds_write_b32 v3, v{CS}')
        k(f'ds_write_b32 v3, v{CS+1} offset:64')
        k('s_mov_b64 exec, -1')
        k.label(NS)
        if rid == 0:
            NB = k.newlabel('nobias')
            k(f's_cmp_ge_u32 s{sW}, 2')
            k(f's_cbranch_scc1 {NB}')
            k(f'v_lshlrev_b32 v3, 16, v{vBIAS}')
            k(f'v_mul_f32 v3, {fhex(LOG2E)}, v3')
            k(f'v_lshlrev_b32 v4, 2, v{vTID}')
            k(f'v_add_u32 v4, {L_BIAS}, v4')
            k(f'ds_write_b32 v4, v3')
            k.label(NB)
        k('s_waitcnt lgkmcnt(0)')
        BAR()
        k.stamp()
        def tokstats(stile, vR, vRM):
            k(f's_lshl_b32 s{sT0}, s{stile}, 7')
            k(f'v_lshlrev_b32 v4, 2, v{vN}')
            k(f'v_add_u32 v4, s{sT0}, v4')
            k(f'v_add_u32 v4, {L_RSUM}, v4')
            k(f'ds_read_b32 v5, v4')
            k(f'ds_read_b32 v6, v4 offset:512')
            k(f'ds_read_b32 v14, v4 offset:1024')
            k(f'ds_read_b32 v15, v4 offset:1536')
            k('s_waitcnt lgkmcnt(0)')
            k(f'v_add_f32 v5, v5, v14')
            k(f'v_add_f32 v6, v6, v15')
            k(f'v_mul_f32 v5, {fhex(1/512)}, v5')
            k(f'v_mul_f32 v6, {fhex(1/512)}, v6')
            k(f'v_fma_f32 v6, -v5, v5, v6')
            k(f'v_max_f32 v6, 0, v6')
            k(f'v_add_f32 v6, {fhex(1e-5)}, v6')
            k(f'v_rsq_f32 v{vR}, v6')
            k('s_nop 0')
            k(f'v_mul_f32 v{vRM}, v5, v{vR}')
        k(f'v_lshlrev_b32 v9, 4, v{vH}')
        k(f'v_add_u32 v9, {L_SW}, v9')
        k(f'v_lshlrev_b32 v8, 4, v{vLANE}')
        k(f's_lshl_b32 s{sC}, s{sRBK}, 2')
        if rid == 0:
            vRL2, vRML2, vC2 = 10, 12, 16
            tokstats(sTA, 2, 3)
            k(f'v_mul_f32 v{vRL2}, {fhex(LOG2E)}, v2')
            k(f'v_mul_f32 v{vRML2}, {fhex(LOG2E)}, v3')
            tokstats(sTB, 2, 3)
            k(f'v_mul_f32 v{vRL2+1}, {fhex(LOG2E)}, v2')
            k(f'v_mul_f32 v{vRML2+1}, {fhex(LOG2E)}, v3')
            k(f'v_mov_b32 v{vC2}, {fhex(-2*LN2)}')
            SWR, CLR, T, TT, XL = 36, 128, 144, 160, 48
            vRL, vRML = 17, 18
            k(f's_mov_b32 s{sXR}, 0')
            EL = k.newlabel('eloop'); ES = k.newlabel('eskip')
            k.label(EL)
            k(f's_and_b32 s{sT0}, s{sXR}, 1')
            k(f's_cmp_eq_u32 s{sT0}, 0')
            k(f's_cselect_b32 s{sWR}, s{sSA}, s{sSB}')
            k(f's_cmp_lt_u32 s{sXR}, 2')
            k(f's_cselect_b32 s{sXD}, s{sTA}, s{sTB}')
            k(f'v_mov_b32 v{vRL}, v{vRL2+1}')
            k(f'v_mov_b32 v{vRML}, v{vRML2+1}')
            NX = k.newlabel('nx')
            k(f's_cbranch_scc0 {NX}')
            k(f'v_mov_b32 v{vRL}, v{vRL2}')
            k(f'v_mov_b32 v{vRML}, v{vRML2}')
            k.label(NX)
            k(f's_cmp_ge_u32 s{sWR}, s{sNF}')
            k(f's_cbranch_scc1 {ES}')
            k(f's_lshl_b32 s{sT0}, s{sWR}, 7')
            k(f'v_add_u32 v7, s{sT0}, v9')
            for g_ in range(4):
                k(f'ds_read_b128 {v(SWR+0*16+4*g_ if False else 128+4*g_,4)}, v7 offset:{g_*32}')
            for g_ in range(4):
                k(f'ds_read_b128 {v(144+4*g_,4)}, v7 offset:{L_BIAS - L_SW + g_*32}')
            k(f's_lshl_b32 s{sT1}, s{sXR}, 4')
            k('s_waitcnt lgkmcnt(0)')
            for i in range(16):
                k(f'v_fma_f32 v{144+i}, -v{vRML}, v{128+i}, v{144+i}')
            k(f's_set_gpr_idx_on s{sT1}, gpr_idx(SRC0)')
            k('s_nop 0')
            for i in range(16):
                k(f'v_fma_f32 v{XL+i}, v{ACC+i}, v{vRL}, v{144+i}')
            k('s_set_gpr_idx_off')
            for i in range(16):
                k(f'v_exp_f32 v{128+i}, v{XL+i}')
            for i in range(16):
                k(f'v_add_f32 v{144+i}, 2.0, v{128+i}')
            for i in range(16):
                k(f'v_fma_f32 v{128+i}, v{128+i}, v{144+i}, 2.0')
            for i in range(16):
                k(f'v_rcp_f32 v{128+i}, v{128+i}')
            for i in range(16):
                k(f'v_fmaak_f32 v{128+i}, v{128+i}, v{vC2}, {fhex(LN2)}')
            for i in range(16):
                k(f'v_mul_f32 v{XL+i}, v{XL+i}, v{128+i}')
            for i in range(8):
                k(f'v_cvt_pk_bf16_f32 v{TT+i}, v{XL+2*i}, v{XL+2*i+1}')
            k(f's_add_u32 s{sT0}, s{sC}, s{sXD}')
            k(f's_mul_i32 s{sT0}, s{sT0}, 144')
            k(f's_add_u32 s{sT1}, s{sFB}, s{sWR}')
            k(f's_lshl_b32 s{sT1}, s{sT1}, 1')
            k(f's_add_u32 s{sT0}, s{sT0}, s{sT1}')
            k(f's_add_u32 s{sT0}, s{sT0}, 32')
            k(f's_lshl_b32 s{sT0}, s{sT0}, 10')
            k(f's_add_u32 s{sT0}, s{sT0}, {WS_TF:#x}')
            k(f'buffer_store_dwordx4 {v(TT,4)}, v8, s[{SWS}:{SWS+3}], s{sT0} offen {ST1}')
            k(f'buffer_store_dwordx4 {v(TT+4,4)}, v8, s[{SWS}:{SWS+3}], s{sT0} offen offset:1024 {ST1}')
            k.label(ES)
            k(f's_add_u32 s{sXR}, s{sXR}, 1')
            k(f's_cmp_lt_u32 s{sXR}, 4')
            k(f's_cbranch_scc1 {EL}')
        else:
            vR, vRM = 2, 3
            tokstats(sTA, vR, vRM)
            if 'N' in types:
                k(f's_lshl_b32 s{sT0}, s{sW}, 8')
                k(f'v_lshlrev_b32 v4, 2, v{vN}')
                k(f'v_add_u32 v4, s{sT0}, v4')
                k(f'v_add_u32 v4, {L_PRIV}, v4')
                k(f'ds_write_b32 v4, v{vR}')
                k(f'ds_write_b32 v4, v{vRM} offset:128')
                k(f'v_lshlrev_b32 v7, 4, v{vH}')
                k(f'v_add_u32 v7, s{sT0}, v7')
                k(f'v_add_u32 v7, {L_PRIV}, v7')
                k('s_waitcnt lgkmcnt(0)')
                for g_ in range(4):
                    k(f'ds_read_b128 {v(128+4*g_,4)}, v7 offset:{g_*32}')
                    k(f'ds_read_b128 {v(144+4*g_,4)}, v7 offset:{g_*32 + 128}')
                k(f'v_lshrrev_b32 v10, 4, v{vN}')
                k(f'v_lshlrev_b32 v10, 16, v10')
                k(f'v_lshl_add_u32 v10, v{vH}, 8, v10')
                k(f'v_and_b32 v11, 15, v{vN}')
                k(f'v_lshl_add_u32 v10, v11, 4, v10')
                k('s_waitcnt lgkmcnt(0)')
            k(f's_add_u32 s{sTB}, s{sC}, s{sTA}')
            for j in range(3):
                A = ACC + 16 * j
                SWR, T = 36, 52
                k(f's_add_u32 s{sT1}, s{sQB}, {j}')
                k(f's_lshl_b32 s{sT0}, s{sT1}, 17')
                k(f's_lshl_b32 s{sT2}, s{sTB}, 10')
                k(f's_add_u32 s{sT0}, s{sT0}, s{sT2}')
                if types[j] == 'T':
                    k(f's_cmp_lt_u32 s{sT1}, 16')
                    k(f's_cselect_b32 s{sSCALE}, {fhex(QSCALE)}, 1.0')
                    for g_ in range(4):
                        k(f'ds_read_b128 {v(SWR+4*g_,4)}, v9 offset:{(4+j)*128 + g_*32}')
                    k(f'v_mul_f32 v12, s{sSCALE}, v{vR}')
                    k(f'v_mul_f32 v13, s{sSCALE}, v{vRM}')
                    k('s_waitcnt lgkmcnt(0)')
                    for i in range(16):
                        k(f'v_mul_f32 v{SWR+i}, v13, v{SWR+i}')
                    for i in range(16):
                        k(f'v_fma_f32 v{A+i}, v{A+i}, v12, -v{SWR+i}')
                    for i in range(8):
                        k(f'v_cvt_pk_bf16_f32 v{T+i}, v{A+2*i}, v{A+2*i+1}')
                    k(f's_add_u32 s{sT2}, s{sT0}, 0x10000')
                    k(f'buffer_store_dwordx4 {v(T,4)}, v8, s[{SWS}:{SWS+3}], s{sT0} offen {ST1}')
                    k(f'buffer_store_dwordx4 {v(T+4,4)}, v8, s[{SWS}:{SWS+3}], s{sT2} offen {ST1}')
                    k('s_nop 1')
                else:
                    k(f'v_lshlrev_b32 v11, 2, v{vN}')
                    k(f'v_add_u32 v11, {L_SW}, v11')
                    k(f'ds_read_b32 v12, v11 offset:{(4+j)*128}')
                    k('s_waitcnt lgkmcnt(0)')
                    for i in range(16):
                        k(f'v_mul_f32 v{SWR+i}, v12, v{144+i}')
                    for i in range(16):
                        k(f'v_fma_f32 v{A+i}, v{A+i}, v{128+i}, -v{SWR+i}')
                    for i in range(8):
                        k(f'v_cvt_pk_bf16_f32 v{T+i}, v{A+2*i}, v{A+2*i+1}')
                    k(f'buffer_store_dwordx4 {v(T,4)}, v10, s[{SWS}:{SWS+3}], s{sT0} offen {ST1}')
                    k(f'buffer_store_dwordx4 {v(T+4,4)}, v10, s[{SWS}:{SWS+3}], s{sT0} offen offset:512 {ST1}')
                    k('s_nop 1')
        if rid == 1:
            k('s_waitcnt vmcnt(6)')
            side_stores()
        k.stamp()
        if k.st_en:
            k('s_waitcnt vmcnt(0)')
        k.stamp(); k.stamp(real=True)
        k.stamp_dump(0, sW, vtmp=3)
        k('s_endpgm')

    n0 = k.st_n
    role(0, None)
    k.label(ROLE1)
    V1 = k.newlabel('ttn'); V2 = k.newlabel('nnn')
    k(f's_cmp_eq_u32 s{sCG}, 10')
    k(f's_cbranch_scc1 {V1}')
    k(f's_cmp_gt_u32 s{sCG}, 10')
    k(f's_cbranch_scc1 {V2}')
    k.st_n = n0
    role(1, ['T', 'T', 'T'])
    k.label(V1)
    k.st_n = n0
    role(1, ['T', 'T', 'N'])
    k.label(V2)
    k.st_n = n0
    role(1, ['N', 'N', 'N'])
    k.label(END)
    k('s_endpgm')
    return k.text(208, 100 if DBG else 80)

K2_CONST = 131072
K2_LDS = K2_CONST + 8192 + 256 + 16384
def gen_k2():
    k = Kern('k2_kernel')
    END = 'k2_end'
    SWS = 4
    sW, sHEAD, sQT, sIT, sT0, sT1, sFB = 8, 9, 10, 11, 12, 13, 14
    sKS, sVS, sLD = 22, 23, 24
    vLANE, vKA, vVA, vO16, vINC, vVA0 = 1, 2, 3, 4, 5, 6
    QF = 8
    NEGM = 16
    O = 32
    S = [48, 64]
    P = 80
    KF = [88, 92]
    VF = [96, 104]
    T = 112
    FA = 128
    FB = 144
    sFT0, sFT1, sFW, sA0, sA1, sA2, sTB, sNBP = 28, 29, 30, 31, 32, 33, 34, 35
    sFT0i, sFT1i, sFWi = 36, 37, 38
    UN = 8
    k('s_cmp_ge_u32 s2, 256')
    k(f's_cbranch_scc1 {END}')
    k.stamp_init('2' in DBG)
    k.stamp(); k.stamp(real=True)
    k('s_load_dwordx2 s[20:21], s[0:1], 72')
    k('v_lshrrev_b32 v2, 6, v0')
    k(f'v_and_b32 v{vLANE}, 63, v0')
    k(f'v_readfirstlane_b32 s{sW}, v2')
    k(f's_and_b32 s{sHEAD}, s2, 31')
    k(f's_lshr_b32 s{sQT}, s2, 5')
    k(f's_lshl_b32 s{sQT}, s{sQT}, 3')
    k(f'v_lshlrev_b32 v{vO16}, 4, v{vLANE}')
    k(f's_add_u32 s{sQT}, s{sQT}, s{sW}')
    k(f's_lshl_b32 s{sT0}, s{sHEAD}, 16')
    k(f's_lshl_b32 s{sT1}, s{sQT}, 10')
    k(f's_add_u32 s25, s{sT1}, s{sT0}')
    k(f's_lshl_b32 s{sLD}, s{sW}, 10')
    k(f's_add_u32 s{sT0}, s{sT0}, s{sLD}')
    k(f's_add_u32 s{sKS}, s{sT0}, {32*65536:#x}')
    k(f's_add_u32 s{sVS}, s{sT0}, {64*65536:#x}')
    k('s_waitcnt lgkmcnt(0)')
    k.srd(SWS, 20, 21, WS_SIZE)
    k(f'buffer_load_dwordx4 {v(QF,4)}, v{vO16}, s[{SWS}:{SWS+3}], s25 offen')
    def dma_round(i):
        k(f's_add_u32 m0, s{sLD}, {i*8192}')
        k(f's_add_u32 s26, s{sKS}, {i*8192}')
        k.vmop(f'buffer_load_dwordx4 v{vO16}, s[{SWS}:{SWS+3}], s26 offen lds', 'dma')
        k(f's_add_u32 m0, s{sLD}, {65536 + i*8192}')
        k(f's_add_u32 s26, s{sVS}, {i*8192}')
        k.vmop(f'buffer_load_dwordx4 v{vO16}, s[{SWS}:{SWS+3}], s26 offen lds', 'dma')
    dma_round(0)
    dma_round(1)
    k('v_lshlrev_b32 v7, 4, v0')
    k(f'v_add_u32 v7, {K2_CONST}, v7')
    for i in range(4):
        k(f'v_mov_b32 v{T+i}, 0')
    k('v_and_b32 v12, 31, v0')
    k('v_cmp_eq_u32 vcc, 0, v12')
    k(f'v_mov_b32 v13, 0x3f803f80')
    k('s_nop 0')
    for i in range(4):
        k(f'v_cndmask_b32 v{T+i}, v{T+i}, v13, vcc')
    k(f'ds_write_b128 v7, {v(T,4)}')
    for i in range(4):
        k(f'v_mov_b32 v{T+4+i}, 0')
    k(f'v_mov_b32 v7, {K2_CONST + 8192}')
    k(f'v_lshl_add_u32 v7, v{vLANE}, 2, v7')
    k(f'ds_write_b32 v7, v{T+4}')
    k(f'v_lshrrev_b32 v7, 5, v{vLANE}')
    k(f'v_lshlrev_b32 v7, 8, v7')
    k(f'v_and_b32 v12, 15, v{vLANE}')
    k(f'v_lshl_add_u32 v7, v12, 4, v7')
    k(f'v_add_u32 v{vVA0}, 0x10000, v7')
    k(f'v_mov_b32 v{vINC}, {UN*1024}')
    k(f'v_and_b32 v12, 31, v{vLANE}')
    k(f'v_mov_b32 v13, {K2_CONST + 16}')
    k(f'v_mov_b32 v14, 0')
    k('v_cmp_lt_u32 vcc, 15, v12')
    k('s_nop 1')
    k(f'v_cndmask_b32 v{vVA0}, v{vVA0}, v13, vcc')
    k(f'v_cndmask_b32 v{vINC}, v{vINC}, v14, vcc')
    k(f'v_mov_b32 v13, {K2_CONST}')
    k('v_cmp_eq_u32 vcc, 16, v12')
    k('s_nop 1')
    k(f'v_cndmask_b32 v{vVA0}, v{vVA0}, v13, vcc')
    k(f'v_subrev_u32 v14, 20, v12')
    k(f'v_mov_b32 v13, {K2_CONST + 64}')
    k('v_cmp_gt_u32 vcc, 8, v14')
    k('s_nop 1')
    k(f'v_cndmask_b32 v{vVA0}, v{vVA0}, v13, vcc')
    k(f's_mov_b32 s{sFB}, 0')
    k(f's_and_b32 s{sTB}, s2, 7')
    k(f's_lshr_b32 s{sT0}, s2, 3')
    k(f's_and_b32 s{sT0}, s{sT0}, 3')
    k(f's_lshl_b32 s{sT0}, s{sT0}, 3')
    k(f's_add_u32 s{sTB}, s{sTB}, s{sT0}')
    k(f's_lshr_b32 s{sNBP}, s2, 5')
    k(f's_lshr_b32 s{sT0}, s{sW}, 2')
    k(f's_mul_i32 s{sT0}, s{sT0}, 56')
    k(f's_add_u32 s{sT0}, s{sT0}, 32')
    k(f's_lshl_b32 s{sFT0i}, s{sTB}, 1')
    k(f's_bfe_u32 s{sT1}, s{sW}, 0x10001')
    k(f's_add_u32 s{sFT0i}, s{sFT0i}, s{sT1}')
    k(f's_mul_i32 s{sFT0i}, s{sFT0i}, 144')
    k(f's_add_u32 s{sFT0i}, s{sFT0i}, s{sT0}')
    k(f's_lshl_b32 s{sFT0i}, s{sFT0i}, 10')
    k(f's_add_u32 s{sFT0i}, s{sFT0i}, {WS_TF:#x}')
    k(f's_lshl_b32 s{sFWi}, s{sT0}, 4')
    k(f's_lshl_b32 s{sT1}, s{sNBP}, 1')
    k(f's_add_u32 s{sFWi}, s{sFWi}, s{sT1}')
    k(f's_and_b32 s{sT1}, s{sW}, 1')
    k(f's_add_u32 s{sFWi}, s{sFWi}, s{sT1}')
    k(f's_lshl_b32 s{sFWi}, s{sFWi}, 10')
    k(f's_add_u32 s{sFWi}, s{sFWi}, {WS_WF:#x}')
    k('s_waitcnt vmcnt(0) lgkmcnt(0)')
    k('s_barrier')
    k.stamp()
    k(f'ds_read_b128 {v(KF[0],4)}, v{vO16}')
    k('s_waitcnt lgkmcnt(0)')
    k(MFMA(v(S[0],16), v(KF[0],4), v(QF,4), '0'))
    k('s_nop 15')
    k(f'v_max3_f32 v{T}, v{S[0]}, v{S[0]+1}, v{S[0]+2}')
    for i in range(3, 15, 2):
        k(f'v_max3_f32 v{T}, v{T}, v{S[0]+i}, v{S[0]+i+1}')
    k(f'v_max_f32 v{T}, v{T}, v{S[0]+15}')
    RESTART = k.newlabel('restart')
    k.label(RESTART)
    k(f'v_mov_b32 v{T+1}, v{T}')
    k(f'v_mov_b32 v{vKA}, v{vO16}')
    k(f'v_mov_b32 v{vVA}, v{vVA0}')
    k(f'v_permlane32_swap_b32 v{T}, v{T+1}')
    k(f'ds_read_b128 {v(KF[0],4)}, v{vKA}')
    k(f'ds_read_b128 {v(VF[0],4)}, v{vVA}')
    k(f'ds_read_b128 {v(VF[0]+4,4)}, v{vVA} offset:512')
    k(f'ds_read_b128 {v(KF[1],4)}, v{vKA} offset:1024')
    k(f'v_max_f32 v{T}, v{T}, v{T+1}')
    for i in range(16):
        k(f'v_sub_f32 v{NEGM+i}, 0, v{T}')
    for i in range(16):
        k(f'v_mov_b32 v{O+i}, 0')
    for i in range(8):
        k(f'v_mov_b32 v{VF[1]+i}, 0')
    for i in range(8):
        k(f'v_mov_b32 v{P+i}, 0')
    for i in range(12, 16):
        k(f'v_mov_b32 v{S[1]+i}, 0')
    for i in range(16):
        k(f'v_mov_b32 v{FA+i}, 0')
    k(f's_mov_b32 s{sFT0}, s{sFT0i}')
    k(f's_mul_i32 s{sFW}, s{sFB}, 16384')
    k(f's_sub_u32 s{sFW}, s{sFWi}, s{sFW}')
    k('s_waitcnt lgkmcnt(0)')
    k(MFMA(v(S[0],16), v(KF[0],4), v(QF,4), v(NEGM,16)))
    k('s_nop 15')
    def body(dma, prio=None):
        dq = []
        if dma:
            for i in range(2, 8):
                dq.append(i)
        nolds = 'nolds' in EXP
        noffn = 'noffn' in EXP
        k.vm = []
        def MF(*a):
            if 'nomfma' not in EXP: k(MFMA(*a))
        def floadW(j):
            if noffn: return
            if j == 0 and dma: return
            r = FB + 8 * ((j - 1) % 8)
            k(f'buffer_load_dwordx4 {v(r+4,4)}, v{vO16}, s[{SWS}:{SWS+3}], s{sFW} offen')
            k(f's_add_u32 s{sFW}, s{sFW}, 16384')
            if j == 0:
                k(f's_cmp_lt_u32 s{sIT}, 7')
                k(f's_cselect_b32 s{sFW}, s{sFW}, 0x7f000000')
                k(f's_cselect_b32 s{sFT0}, s{sFT0}, 0x7f000000')
        def floadT(q):
            if noffn: return
            r = FB + 8 * q
            k(f'buffer_load_dwordx4 {v(r,4)}, v{vO16}, s[{SWS}:{SWS+3}], s{sFT0} offen')
            k(f's_add_u32 s{sFT0}, s{sFT0}, 1024')
        def fmma(q):
            if noffn or dma: return
            r = FB + 8 * q
            k('s_waitcnt vmcnt(14)')
            MF(v(FA,16), v(r+4,4), v(r,4), v(FA,16))
        for j in range(UN):
            b = j & 1
            cur, nxt = S[b], S[b ^ 1]
            e = lambda i: k(f'v_exp_f32 v{cur+i}, v{cur+i}')
            c = lambda i: k(f'v_cvt_pk_bf16_f32 v{P+i}, v{cur+2*i}, v{cur+2*i+1}')
            cp = lambda i: k(f'v_cvt_pk_bf16_f32 v{P+i}, v{nxt+2*i}, v{nxt+2*i+1}')
            e(0)
            if prio is not None and (j == 0 or prio[j] != prio[j-1]):
                k(f's_setprio {prio[j]}')
            if j == UN - 1:
                k(f'v_add_u32 v{vVA}, v{vINC}, v{vVA}')
            cp(6); e(1); e(2)
            floadW(j)
            cp(7); e(3); e(4)
            MF(v(O,16), v(VF[b^1]+4,4), v(P+4,4), v(O,16))
            voff = ((j + 1) % UN) * 1024
            if not nolds: k(f'ds_read_b128 {v(VF[b^1],4)}, v{vVA} offset:{voff}')
            c(0); e(5); e(6); c(1)
            if not nolds: k('s_waitcnt lgkmcnt(1)')
            e(7)
            MF(v(nxt,16), v(KF[b^1],4), v(QF,4), v(NEGM,16))
            if not nolds: k(f'ds_read_b128 {v(VF[b^1]+4,4)}, v{vVA} offset:{voff+512}')
            e(8); c(2); e(9); e(10); c(3); e(11)
            if dq and j < 6:
                dma_round(dq.pop(0))
            e(12)
            MF(v(O,16), v(VF[b],4), v(P,4), v(O,16))
            if not nolds: k(f'ds_read_b128 {v(KF[b],4)}, v{vKA} offset:{(j+2)*1024}')
            c(4); e(13)
            if j == UN - 1:
                k(f'v_add_u32 v{vKA}, {UN*1024}, v{vKA}')
            e(14); c(5)
            fmma(j)
            floadT(j)
            if j == UN - 1:
                k(f's_add_u32 s{sIT}, s{sIT}, 1')
                k(f's_cmp_lt_u32 s{sIT}, {64//UN}')
            e(15)
    FIRST = k.newlabel('first'); LOOP = k.newlabel('loop'); LOOP2 = k.newlabel('loop2'); AFTER = k.newlabel('after'); R2 = k.newlabel('r2')
    k(f's_mov_b32 s{sIT}, 0')
    k(f's_cmp_eq_u32 s{sFB}, 1')
    k(f's_cbranch_scc1 {LOOP}')
    nh = int(os.environ.get('NH', '-1'))
    if nh >= 0:
        k(f's_cmp_ge_u32 s{sW}, 4')
        k(f's_cbranch_scc1 {R2}')
    body(True)
    k('s_waitcnt vmcnt(0)')
    k('s_barrier')
    k.label(LOOP)
    body(False)
    k(f's_cbranch_scc1 {LOOP}')
    if nh >= 0:
        k(f's_branch {AFTER}')
        k.label(R2)
        pr = [1] * nh + [0] * (UN - nh)
        body(True, pr)
        k('s_waitcnt vmcnt(0)')
        k('s_barrier')
        k.label(LOOP2)
        body(False, pr)
        k(f's_cbranch_scc1 {LOOP2}')
        k('s_setprio 0')
        k.label(AFTER)
    k('s_nop 1')
    k(f'v_cvt_pk_bf16_f32 v{P+6}, v{S[1]+12}, v{S[1]+13}')
    k(f'v_cvt_pk_bf16_f32 v{P+7}, v{S[1]+14}, v{S[1]+15}')
    k('s_nop 1')
    k(MFMA(v(O,16), v(VF[1]+4,4), v(P+4,4), v(O,16)))
    k('s_waitcnt lgkmcnt(0)')
    k('s_nop 15')
    k.stamp()
    k(f'v_mov_b32 v{T}, v{O+8}')
    k(f'v_mov_b32 v{T+1}, v{O+8}')
    k('s_nop 1')
    k(f'v_permlane32_swap_b32 v{T}, v{T+1}')
    k('s_nop 1')
    DONE = k.newlabel('done')
    k(f's_cmp_eq_u32 s{sFB}, 1')
    k(f's_cbranch_scc1 {DONE}')
    if EXP != ['']: k(f's_branch {DONE}')
    k(f'v_mov_b32 v{T+2}, {fhex(2.0**40)}')
    k(f'v_cmp_nlt_f32 vcc, v{T}, v{T+2}')
    k(f'v_mov_b32 v{T+1}, 0x207')
    for i in range(8):
        k(f'v_cmp_class_f32 s[26:27], v{O+i}, v{T+1}')
        k('s_or_b64 vcc, vcc, s[26:27]')
    k('s_cmp_eq_u64 vcc, 0')
    k(f's_cbranch_scc1 {DONE}')
    k(f's_mov_b32 s{sFB}, 1')
    k(f'v_mov_b32 v{vKA}, v{vO16}')
    k(f'v_mov_b32 v{T}, 0xff800000')
    k(f's_mov_b32 s{sIT}, 0')
    FL = k.newlabel('fbloop')
    k.label(FL)
    k(f'ds_read_b128 {v(KF[0],4)}, v{vKA}')
    k('s_waitcnt lgkmcnt(0)')
    k(MFMA(v(S[0],16), v(KF[0],4), v(QF,4), '0'))
    k('s_nop 15')
    for i in range(0, 16, 2):
        k(f'v_max3_f32 v{T}, v{T}, v{S[0]+i}, v{S[0]+i+1}')
    k(f'v_add_u32 v{vKA}, 0x400, v{vKA}')
    k(f's_add_u32 s{sIT}, s{sIT}, 1')
    k(f's_cmp_lt_u32 s{sIT}, 64')
    k(f's_cbranch_scc1 {FL}')
    k('s_waitcnt vmcnt(0)')
    for i in range(64):
        k(f'v_mov_b32 v{FB+i}, 0')
    k(f's_branch {RESTART}')
    k.label(DONE)
    k(f'v_rcp_f32 v{T}, v{T}')
    k('s_nop 0')
    for i in range(8):
        k(f'v_mul_f32 v{O+i}, v{O+i}, v{T}')
    for i in range(4):
        k(f'v_cvt_pk_bf16_f32 v{T+4+i}, v{O+2*i}, v{O+2*i+1}')
    k(f's_mul_i32 s{sT0}, s{sQT}, 144')
    k(f's_add_u32 s{sT0}, s{sT0}, s{sHEAD}')
    k(f's_lshl_b32 s{sT0}, s{sT0}, 10')
    k(f's_add_u32 s{sT0}, s{sT0}, {WS_TF:#x}')
    k(f'buffer_store_dwordx4 {v(T+4,4)}, v{vO16}, s[{SWS}:{SWS+3}], s{sT0} offen {ST2}')
    k.stamp()
    RED = K2_CONST + 8192 + 256
    k(f's_and_b32 s{sT0}, s{sW}, 3')
    k(f's_lshl_b32 s{sT0}, s{sT0}, 12')
    k(f's_add_u32 s{sT0}, s{sT0}, {RED}')
    k(f'v_add_u32 v{T}, s{sT0}, v{vO16}')
    HI = k.newlabel('hi')
    k(f's_cmp_ge_u32 s{sW}, 4')
    k(f's_cbranch_scc1 {HI}')
    for g_ in range(4):
        k(f'ds_write_b128 v{T}, {v(FA+4*g_,4)} offset:{g_*1024}')
    k('s_waitcnt lgkmcnt(0)')
    k('s_barrier')
    k(f's_branch {END}') if not k.st_en else None
    FIN = k.newlabel('fin')
    if k.st_en: k(f's_branch {FIN}')
    k.label(HI)
    k('s_barrier')
    for g_ in range(4):
        k(f'ds_read_b128 {v(FB+4*g_,4)}, v{T} offset:{g_*1024}')
    k(f's_lshl_b32 s{sA0}, s{sTB}, 3')
    k(f's_add_u32 s{sA0}, s{sA0}, s{sNBP}')
    k(f's_lshl_b32 s{sA0}, s{sA0}, 2')
    k(f's_and_b32 s{sA1}, s{sW}, 3')
    k(f's_add_u32 s{sA0}, s{sA0}, s{sA1}')
    k(f's_lshl_b32 s{sA0}, s{sA0}, 12')
    k(f's_add_u32 s{sA0}, s{sA0}, {WS_PART:#x}')
    k('s_waitcnt lgkmcnt(0)')
    for i in range(16):
        k(f'v_add_f32 v{FB+i}, v{FB+i}, v{FA+i}')
    for g_ in range(4):
        k(f'buffer_store_dwordx4 {v(FB+4*g_,4)}, v{vO16}, s[{SWS}:{SWS+3}], s{sA0} offen offset:{g_*1024} {ST2}')
    if k.st_en: k.label(FIN)
    if k.st_en:
        k('s_waitcnt vmcnt(0)')
    k.stamp(); k.stamp(real=True)
    k.stamp_dump(1, sW, vtmp=T+9)
    k.label(END)
    k('s_endpgm')
    return k.text(208, 100 if DBG else 48)

K3_LDS = 65536
def gen_k3():
    k = Kern('k3_kernel')
    END = 'k3_end'
    SWS, SX, SO = 4, 8, 12
    sW, sTB, sNBP, sT0, sT1, sTO, sT1O, sWO, sNB, sKQ, sXO = 16, 17, 18, 19, 20, 21, 22, 23, 30, 31, 32
    vLANE, vO16 = 1, 2
    ACC = 16
    BUF = 48
    PI = 144
    XR = 152
    k('s_cmp_ge_u32 s2, 256')
    k(f's_cbranch_scc1 {END}')
    k.stamp_init('3' in DBG)
    k.stamp(); k.stamp(real=True)
    k('s_load_dwordx2 s[28:29], s[0:1], 72')
    k('s_load_dwordx2 s[24:25], s[0:1], 0')
    k('s_load_dwordx2 s[26:27], s[0:1], 56')
    k('v_lshrrev_b32 v2, 6, v0')
    k(f'v_and_b32 v{vLANE}, 63, v0')
    k(f'v_readfirstlane_b32 s{sW}, v2')
    k(f's_and_b32 s{sTB}, s2, 7')
    k(f's_lshr_b32 s{sT0}, s2, 3')
    k(f's_and_b32 s{sT0}, s{sT0}, 3')
    k(f's_lshl_b32 s{sT0}, s{sT0}, 3')
    k(f's_add_u32 s{sTB}, s{sTB}, s{sT0}')
    k(f's_lshr_b32 s{sNBP}, s2, 5')
    k(f'v_lshlrev_b32 v{vO16}, 4, v{vLANE}')
    k(f's_and_b32 s{sNB}, s{sW}, 1')
    k(f's_lshr_b32 s{sKQ}, s{sW}, 1')
    k(f's_mul_i32 s{sTO}, s{sTB}, {2*144}')
    k(f's_lshl_b32 s{sT0}, s{sKQ}, 3')
    k(f's_add_u32 s{sTO}, s{sTO}, s{sT0}')
    k(f's_lshl_b32 s{sTO}, s{sTO}, 10')
    k(f's_add_u32 s{sTO}, s{sTO}, {WS_TF:#x}')
    k(f's_add_u32 s{sT1O}, s{sTO}, {144*1024}')
    k(f's_lshl_b32 s{sWO}, s{sT0}, 4')
    k(f's_lshl_b32 s{sT1}, s{sNBP}, 1')
    k(f's_add_u32 s{sWO}, s{sWO}, s{sT1}')
    k(f's_add_u32 s{sWO}, s{sWO}, s{sNB}')
    k(f's_lshl_b32 s{sWO}, s{sWO}, 10')
    k(f's_add_u32 s{sWO}, s{sWO}, {WS_WF:#x}')
    k('s_waitcnt lgkmcnt(0)')
    k.srd(SWS, 28, 29, WS_SIZE)
    for ks in range(8):
        b = BUF + ks * 12
        if ks == 4:
            k(f's_add_u32 s{sTO}, s{sTO}, 4096')
            k(f's_add_u32 s{sT1O}, s{sT1O}, 4096')
        k.vmop(f'buffer_load_dwordx4 {v(b+8,4)}, v{vO16}, s[{SWS}:{SWS+3}], s{sWO} offen', ks)
        k.vmop(f'buffer_load_dwordx4 {v(b,4)}, v{vO16}, s[{SWS}:{SWS+3}], s{sTO} offen offset:{(ks%4)*1024}', ks)
        k.vmop(f'buffer_load_dwordx4 {v(b+4,4)}, v{vO16}, s[{SWS}:{SWS+3}], s{sT1O} offen offset:{(ks%4)*1024}', ks)
        k(f's_add_u32 s{sWO}, s{sWO}, 16384')
    k.srd(SX, 24, 25, 2048 * 1024)
    k.srd(SO, 26, 27, 2048 * 1024)
    k(f's_lshl_b32 s{sT0}, s{sTB}, 3')
    k(f's_add_u32 s{sT0}, s{sT0}, s{sNBP}')
    k(f's_lshl_b32 s{sT0}, s{sT0}, 4')
    k(f's_lshl_b32 s{sT1}, s{sNB}, 2')
    k(f's_add_u32 s{sT0}, s{sT0}, s{sT1}')
    k(f's_add_u32 s{sT0}, s{sT0}, s{sKQ}')
    k(f's_lshl_b32 s{sT0}, s{sT0}, 10')
    k(f's_add_u32 s{sT0}, s{sT0}, {WS_PART:#x}')
    k(f's_add_u32 s{sT1}, s{sT0}, 8192')
    k.vmop(f'buffer_load_dwordx4 {v(PI,4)}, v{vO16}, s[{SWS}:{SWS+3}], s{sT0} offen', 'p')
    k.vmop(f'buffer_load_dwordx4 {v(PI+4,4)}, v{vO16}, s[{SWS}:{SWS+3}], s{sT1} offen', 'p')
    k(f'v_and_b32 v3, 31, v{vLANE}')
    k(f'v_lshlrev_b32 v3, 10, v3')
    k(f'v_lshrrev_b32 v4, 5, v{vLANE}')
    k(f'v_lshl_add_u32 v3, v4, 3, v3')
    k(f's_lshl_b32 s{sXO}, s{sTB}, 16')
    k(f's_lshl_b32 s{sT0}, s{sNBP}, 7')
    k(f's_add_u32 s{sXO}, s{sXO}, s{sT0}')
    k(f's_lshl_b32 s{sT0}, s{sNB}, 6')
    k(f's_add_u32 s{sXO}, s{sXO}, s{sT0}')
    k(f's_lshl_b32 s{sT0}, s{sKQ}, 4')
    k(f's_add_u32 s{sXO}, s{sXO}, s{sT0}')
    k(f's_add_u32 s33, s{sXO}, 32768')
    k.vmop(f'buffer_load_dwordx2 {v(XR,2)}, v3, s[{SX}:{SX+3}], s{sXO} offen', 'x')
    k.vmop(f'buffer_load_dwordx2 {v(XR+2,2)}, v3, s[{SX}:{SX+3}], s33 offen', 'x')
    k.stamp()
    for i in range(32):
        k(f'v_mov_b32 v{ACC+i}, 0')
    for ks in range(8):
        k.vmwait(ks)
        b = BUF + ks * 12
        for tt in range(2):
            A = v(ACC + 16 * tt, 16)
            k(MFMA(A, v(b + 8, 4), v(b + 4 * tt, 4), A))
    k('s_nop 15')
    k.stamp()
    k(f's_lshl_b32 s{sT0}, s{sNB}, 15')
    k(f's_lshl_b32 s{sT1}, s{sKQ}, 11')
    k(f's_add_u32 s{sT1}, s{sT1}, s{sT0}')
    k(f'v_add_u32 v5, s{sT1}, v{vO16}')
    for g_ in range(4):
        for tt in range(2):
            k(f'ds_write_b128 v5, {v(ACC+16*tt+4*g_,4)} offset:{g_*8192 + tt*1024}')
    k('s_waitcnt lgkmcnt(0)')
    k('s_barrier')
    k(f's_lshl_b32 s{sT1}, s{sKQ}, 13')
    k(f's_add_u32 s{sT1}, s{sT1}, s{sT0}')
    k(f'v_add_u32 v5, s{sT1}, v{vO16}')
    R = BUF
    for src in range(4):
        for tt in range(2):
            k(f'ds_read_b128 {v(R+8*src+4*tt,4)}, v5 offset:{src*2048 + tt*1024}')
    k.vmwait('x')
    for i in range(4):
        k(f'v_lshlrev_b32 v{R+32+2*i}, 16, v{XR+i}')
        k(f'v_and_b32 v{R+33+2*i}, 0xffff0000, v{XR+i}')
    for i in range(8):
        k(f'v_add_f32 v{PI+i}, v{PI+i}, v{R+32+i}')
    k('s_waitcnt lgkmcnt(0)')
    for src in range(4):
        for i in range(8):
            k(f'v_add_f32 v{PI+i}, v{PI+i}, v{R+8*src+i}')
    for i in range(4):
        k(f'v_cvt_pk_bf16_f32 v{R+40+i}, v{PI+2*i}, v{PI+2*i+1}')
    k(f'buffer_store_dwordx2 {v(R+40,2)}, v3, s[{SO}:{SO+3}], s{sXO} offen')
    k(f'buffer_store_dwordx2 {v(R+42,2)}, v3, s[{SO}:{SO+3}], s33 offen')
    k.stamp()
    if k.st_en:
        k('s_waitcnt vmcnt(0)')
    k.stamp(); k.stamp(real=True)
    k.stamp_dump(2, sW, vtmp=3)
    k.label(END)
    k('s_endpgm')
    return k.text(160, 100 if DBG else 40)

HEADER = open('parallel_sum__mha_block__dense_activation_mish__prompt.s.ref').read().split('; Override launch')[0]

def main(out):
    t1, d1 = gen_k1()
    t2, d2 = gen_k2()
    t3, d3 = gen_k3()
    s = HEADER
    s += f'; @launch kernel=k1_kernel grid=(256,1,1) block=(512,1,1) lds={K1_LDS}\n'
    s += f'; @launch kernel=k2_kernel grid=(256,1,1) block=(512,1,1) lds={K2_LDS}\n'
    s += f'; @launch kernel=k3_kernel grid=(256,1,1) block=(512,1,1) lds={K3_LDS}\n'
    s += '.amdgcn_target "amdgcn-amd-amdhsa--gfx950"\n'
    s += t1 + t2 + t3 + d1 + d2 + d3
    open(out, 'w').write(s)

if __name__ == '__main__':
    main(sys.argv[1] if len(sys.argv) > 1 else 'parallel_sum__mha_block__dense_activation_mish__prompt.s')
```

```python
import math, sys, os
DBG = os.environ.get('DBG', '')
EXP = os.environ.get('EXP', '').split(',')
ST1 = os.environ.get('ST1', 'sc0 sc1')
ST2 = os.environ.get('ST2', '')
POLLF = os.environ.get('POLLF', 'sc1')
OLF = os.environ.get('OLF', 'sc1')
SLP = int(os.environ.get('SLP', '4'))
from asmlib import *

LOG2E = 1.4426950408889634
LN2 = 0.6931471805599453
QSCALE = 0.25 * LOG2E

WS_QKV = 0
WS_TF = 0x600000
WS_WF = 0xF00000
WS_PART = 0x1200000
WS_CNT = 0x1180000
WS_SIZE = 0x10000000

def MFMA(d, A, B, C):
    return f'v_mfma_f32_32x32x16_bf16 {d}, {A}, {B}, {C}'

XSL, NXS = 16384, 3
WSL, NWS = 16384, 6
WRB = XSL * NXS
MISC = WRB + WSL * NWS
L_SW = MISC
L_RSUM = MISC + 1024
L_BIAS = MISC + 2048
L_PRIV = MISC + 2560
K1_LDS = MISC + 2560 + 1024

def gen_k1():
    k = Kern('k1_kernel')
    def BAR():
        if 'nobar' not in EXP: k('s_barrier')
    END = 'k1_end'
    SX, SW_, SWS, SSZ, SB, SWQ = 4, 8, 12, 16, 20, 64
    sW, sRB, sCH, sRBK, sCG = 24, 25, 26, 27, 28
    sC, sXD, sWD, sXO, sFO, sQO, sT0, sT1, sT2 = 29, 30, 31, 32, 33, 34, 53, 54, 55
    sXR, sWR = 56, 63
    sFB, sQB, sTA = 57, 58, 59
    sZD = [60, 61, 62]
    sTB, sSA, sSB, sIDX, sNF, sD1, sD2 = 42, 43, 52, 68, 69, 70, 71
    vTID, vLANE, vH, vN = 0, 1, 8, 9
    k(f's_cmp_ge_u32 s2, 256')
    k(f's_cbranch_scc1 {END}')
    k.stamp_init('1' in DBG, sbase=74)
    k.stamp(); k.stamp(real=True)
    k('s_load_dwordx4 s[36:39], s[0:1], 0')
    k('s_load_dwordx4 s[44:47], s[0:1], 32')
    k('s_load_dwordx2 s[40:41], s[0:1], 16')
    k('s_load_dwordx2 s[48:49], s[0:1], 48')
    k('s_load_dwordx2 s[50:51], s[0:1], 72')
    k(f'v_lshrrev_b32 v2, 6, v0')
    k(f'v_and_b32 v{vLANE}, 63, v0')
    k(f'v_readfirstlane_b32 s{sW}, v2')
    k(f'v_lshrrev_b32 v{vH}, 5, v{vLANE}')
    k(f'v_and_b32 v{vN}, 31, v{vLANE}')
    k(f's_and_b32 s{sT0}, s2, 7')
    k(f's_lshr_b32 s{sT1}, s2, 3')
    k(f's_and_b32 s{sRBK}, s{sT0}, 1')
    k(f's_lshl_b32 s{sRBK}, s{sRBK}, 3')
    k(f's_and_b32 s{sT2}, s{sT1}, 7')
    k(f's_add_u32 s{sRBK}, s{sRBK}, s{sT2}')
    k(f's_lshr_b32 s{sCG}, s{sT0}, 1')
    k(f's_mul_i32 s{sFB}, s{sCG}, 14')
    k(f's_lshl_b32 s{sCG}, s{sCG}, 2')
    k(f's_lshr_b32 s{sT2}, s{sT1}, 3')
    k(f's_add_u32 s{sCG}, s{sCG}, s{sT2}')
    k(f's_lshl_b32 s{sT0}, s{sT2}, 2')
    k(f's_add_u32 s{sFB}, s{sFB}, s{sT0}')
    k(f's_cmp_eq_u32 s{sT2}, 3')
    k(f's_cselect_b32 s{sNF}, 2, 4')
    k(f's_and_b32 s{sRB}, s{sW}, 3')
    k(f's_lshr_b32 s{sCH}, s{sW}, 2')
    k(f's_mul_i32 s{sQB}, s{sCG}, 3')
    PROD = k.newlabel('prod'); ROLE1 = k.newlabel('role1')
    k(f's_cmp_eq_u32 s{sCH}, 2')
    k(f's_cbranch_scc1 {PROD}')
    k(f'v_bfe_u32 v2, v{vN}, 1, 3')
    k(f'v_xor_b32 v2, v2, v{vH}')
    k(f'v_lshlrev_b32 v2, 4, v2')
    k(f'v_lshl_add_u32 v4, v{vN}, 7, v2')
    k(f'v_bfe_u32 v6, v{vLANE}, 2, 2')
    k(f'v_lshl_add_u32 v5, v{vH}, 3, v6')
    k(f'v_lshlrev_b32 v5, 8, v5')
    k(f'v_bfe_u32 v7, v{vLANE}, 4, 1')
    k(f'v_lshl_add_u32 v5, v7, 5, v5')
    k(f'v_and_b32 v7, 3, v{vLANE}')
    k(f'v_lshl_add_u32 v5, v7, 3, v5')
    k(f'v_add_u32 v5, {WRB}, v5')
    SEL, CS, ACC = 24, 28, 32
    vX, vW = 10, 18
    XA, XB = [96, 100], [104, 108]
    WSET = [112, 124]
    CW = 136
    k(f'v_mov_b32 v2, 0')
    k(f'v_mov_b32 v3, 0x3f803f80')
    k(f'v_cmp_eq_u32 vcc, 0, v{vN}')
    k(f'v_cmp_eq_u32 s[72:73], 17, v{vN}')
    k('s_nop 1')
    k('s_or_b64 vcc, vcc, s[72:73]')
    k('s_nop 1')
    k(f'v_cndmask_b32 v{SEL}, v2, v3, vcc')
    for i in range(1, 4):
        k(f'v_mov_b32 v{SEL+i}, v{SEL}')
    k(f's_mov_b32 s{sXR}, 0')
    k(f's_mov_b32 s{sWR}, 0')
    k(f's_lshl_b32 s{sIDX}, s{sRB}, 2')
    k('s_waitcnt lgkmcnt(0)')
    k.srd(SWS, 50, 51, WS_SIZE)
    k(f's_cmp_eq_u32 s{sCH}, 1')
    k(f's_cbranch_scc1 {ROLE1}')

    def role(rid, types):
        WB_ = 0 if rid == 0 else 8192
        rot = (rid == 1 and len(set(types)) == 1)
        if rid == 0:
            k.srd(SB, 46, 47, 1792 * 2)
            k(f's_lshl_b32 s{sT0}, s{sFB}, 6')
            k(f'v_lshlrev_b32 v2, 1, v{vTID}')
            k(f'buffer_load_ushort v21, v2, s[{SB}:{SB+3}], s{sT0} offen')
            k(f's_lshr_b32 s{sT0}, s{sW}, 1')
            k(f's_and_b32 s{sT1}, s{sW}, 1')
            k(f's_lshl_b32 s{sTA}, s{sT0}, 1')
            k(f's_or_b32 s{sTA}, s{sTA}, s{sT1}')
            k(f's_xor_b32 s{sTB}, s{sTA}, 1')
            k(f's_lshl_b32 s{sSA}, s{sT1}, 1')
            k(f's_or_b32 s{sSA}, s{sSA}, s{sT0}')
            k(f's_xor_b32 s{sSB}, s{sSA}, 1')
            nx, nwf = 2, 2
            for i, st_ in enumerate((sTA, sTB)):
                k(f's_lshl_b32 s{sT0}, s{st_}, 12')
                k(f'v_add_u32 v{vX+4*i}, s{sT0}, v4')
                for kk in range(1, 4):
                    k(f'v_xor_b32 v{vX+4*i+kk}, {kk*32}, v{vX+4*i}')
            for j, ss in enumerate((sSA, sSB)):
                k(f'v_xor_b32 v7, s{ss}, v6')
                k(f'v_lshl_add_u32 v{vW+j}, v7, 6, v5')
            tiles = [(0, 0), (0, 1), (1, 0), (1, 1)]
        else:
            k(f's_mov_b32 s{sTA}, s{sRB}')
            nx, nwf = 1, 3
            k(f's_lshl_b32 s{sT0}, s{sRB}, 12')
            k(f'v_add_u32 v{vX}, s{sT0}, v4')
            for kk in range(1, 4):
                k(f'v_xor_b32 v{vX+kk}, {kk*32}, v{vX}')
            SL = [sSA, sSB, sTB]
            for j in range(3):
                if rot:
                    k(f's_add_u32 s{SL[j]}, s{sRB}, {j}')
                    k(f's_cmp_ge_u32 s{SL[j]}, 3')
                    k(f's_cselect_b32 s{sT0}, 3, 0')
                    k(f's_sub_u32 s{SL[j]}, s{SL[j]}, s{sT0}')
                    k(f's_cmp_ge_u32 s{SL[j]}, 3')
                    k(f's_cselect_b32 s{sT0}, 3, 0')
                    k(f's_sub_u32 s{SL[j]}, s{SL[j]}, s{sT0}')
                else:
                    k(f's_mov_b32 s{SL[j]}, {j}')
                k(f'v_xor_b32 v7, s{SL[j]}, v6')
                k(f'v_lshl_add_u32 v{vW+j}, v7, 6, v5')
            tiles = [(0, 0), (0, 1), (0, 2)]
        nt = len(tiles)
        XR = [XA, XB]
        for i in range(16 * nt):
            k(f'v_mov_b32 v{ACC+i}, 0')
        for i in range(4):
            k(f'v_mov_b32 v{CS+i}, 0')
        def rd_list(kk, ks, st):
            off = WB_ + ks * 4096
            def xr(i): return [f'ds_read_b128 {v(XR[i][st],4)}, v{vX+4*i+kk}']
            def wr(j): return [f'ds_read_b64_tr_b16 {v(WSET[st]+4*j,2)}, v{vW+j} offset:{off}',
                               f'ds_read_b64_tr_b16 {v(WSET[st]+4*j+2,2)}, v{vW+j} offset:{off+1024}']
            if rid == 0: return xr(0) + wr(0) + wr(1) + xr(1)
            return xr(0) + wr(0) + wr(1) + wr(2)
        need = [3, 5, 6, 6] if rid == 0 else [3, 5, 7]
        NOLD = 6 if rid == 0 else 7
        def advW():
            L = [f's_add_u32 s{sWR}, s{sWR}, {WSL}', f's_cmp_eq_u32 s{sWR}, {NWS*WSL}',
                 f's_mov_b32 s{sT2}, {WSL}', f's_cselect_b32 s{sT2}, {(WSL - NWS*WSL) & 0xffffffff:#x}, s{sT2}', f's_cselect_b32 s{sWR}, 0, s{sWR}']
            for j in range(nwf):
                L.append(f'v_add_u32 v{vW+j}, s{sT2}, v{vW+j}')
            return L
        def advX():
            L = [f's_add_u32 s{sXR}, s{sXR}, {XSL}', f's_cmp_eq_u32 s{sXR}, {NXS*XSL}',
                 f's_mov_b32 s{sT1}, {XSL}', f's_cselect_b32 s{sT1}, {(XSL - NXS*XSL) & 0xffffffff:#x}, s{sT1}', f's_cselect_b32 s{sXR}, 0, s{sXR}']
            for i in range(4 * nx):
                L.append(f'v_add_u32 v{vX+i}, s{sT1}, v{vX+i}')
            return L
        def kstep(st, nxt_reads, pre=(), post=()):
            if 'nocomp' in EXP:
                for s_ in post: k(s_)
                return
            rl = list(nxt_reads)
            if 'nolds1' in EXP: rl = []
            pre = list(pre)
            per = (len(rl) + nt - 1) // nt
            pper = (len(pre) + nt - 2) // (nt - 1) if pre else 0
            new = 0
            for t, (xi, wj) in enumerate(tiles):
                X = v(XR[xi][st], 4); W = v(WSET[st] + 4 * wj, 4); A = v(ACC + 16 * t, 16)
                k(f's_waitcnt lgkmcnt({NOLD - need[t] + new})')
                ty = 'T' if rid == 0 else types[t]
                if ty == 'N': k(MFMA(A, X, W, A))
                else: k(MFMA(A, W, X, A))
                if t == 0:
                    for s_ in pre: k(s_)
                for _ in range(per):
                    if rl:
                        k(rl.pop(0)); new += 1
                if 'nodot' not in EXP and 'noh' not in EXP:
                    if t == 1 and (rid == 0 or rot):
                        k(f'v_mfma_f32_16x16x32_bf16 {v(CS,4)}, {v(SEL,4)}, {v(WSET[st],4)}, {v(CS,4)}')
                    if rid == 1 and not rot and t == 2:
                        k(f's_set_gpr_idx_on s{sIDX}, gpr_idx(SRC0)')
                        k('s_nop 0')
                        for r in range(4):
                            k(f'v_mov_b32 v{CW+r}, v{WSET[st]+r}')
                        k('s_set_gpr_idx_off')
                        k('s_nop 1')
                        k(f'v_mfma_f32_16x16x32_bf16 {v(CS,4)}, {v(SEL,4)}, {v(CW,4)}, {v(CS,4)}')
            for s_ in post: k(s_)
            assert not rl
        def iteration(par, post=()):
            BAR()
            kstep(0, rd_list(2 * par + 1, 1, 1))
            pre = advW() + (advX() if par == 1 else [])
            kstep(1, rd_list((2 * par + 2) % 4, 0, 0), pre=pre, post=post)
        k.stamp()
        BAR()
        k.stamp()
        for t in rd_list(0, 0, 0): k(t)
        LOOP = k.newlabel('loop')
        k(f's_mov_b32 s{sC}, 0')
        k.label(LOOP)
        iteration(0)
        iteration(1, post=[f's_add_u32 s{sC}, s{sC}, 1', f's_cmp_lt_u32 s{sC}, 8'])
        k(f's_cbranch_scc1 {LOOP}')
        k('s_nop 7')
        k.stamp()
        NS = k.newlabel('nosw')
        if rid == 0:
            k(f's_lshl_b32 s{sT0}, s{sSA}, 7')
            k(f's_add_u32 s{sT0}, s{sT0}, {L_SW}')
        elif rot:
            k(f's_lshl_b32 s{sT0}, s{sSA}, 7')
            k(f's_add_u32 s{sT0}, s{sT0}, {L_SW + 512}')
        else:
            k(f's_cmp_eq_u32 s{sRB}, 3')
            k(f's_cbranch_scc1 {NS}')
            k(f's_lshl_b32 s{sT0}, s{sRB}, 7')
            k(f's_add_u32 s{sT0}, s{sT0}, {L_SW + 512}')
        k(f'v_lshlrev_b32 v3, 2, v{vLANE}')
        k(f'v_add_u32 v3, s{sT0}, v3')
        k('s_mov_b64 exec, 0xffff')
        k(f'ds_write_b32 v3, v{CS}')
        k(f'ds_write_b32 v3, v{CS+1} offset:64')
        k('s_mov_b64 exec, -1')
        k.label(NS)
        if rid == 0:
            NB = k.newlabel('nobias')
            k(f's_cmp_ge_u32 s{sW}, 2')
            k(f's_cbranch_scc1 {NB}')
            k('s_waitcnt vmcnt(0)')
            k(f'v_lshlrev_b32 v3, 16, v21')
            k(f'v_mul_f32 v3, {fhex(LOG2E)}, v3')
            k(f'v_lshlrev_b32 v4, 2, v{vTID}')
            k(f'v_add_u32 v4, {L_BIAS}, v4')
            k(f'ds_write_b32 v4, v3')
            k.label(NB)
        k('s_waitcnt lgkmcnt(0)')
        BAR()
        k.stamp()
        def tokstats_issue(stile, r0):
            k(f's_lshl_b32 s{sT0}, s{stile}, 7')
            k(f'v_lshlrev_b32 v4, 2, v{vN}')
            k(f'v_add_u32 v4, s{sT0}, v4')
            k(f'v_add_u32 v4, {L_RSUM}, v4')
            k(f'ds_read_b32 v{r0}, v4')
            k(f'ds_read_b32 v{r0+1}, v4 offset:512')
        k(f'v_lshlrev_b32 v5, 4, v{vH}')
        k(f'v_add_u32 v5, {L_SW}, v5')
        k(f'v_lshlrev_b32 v6, 4, v{vLANE}')
        k(f's_lshl_b32 s{sC}, s{sRBK}, 2')
        if rid == 0:
            tokstats_issue(sTA, 10); tokstats_issue(sTB, 12)
            RL, RML = [14, 16], [18, 20]
            TWO, C2, LN2P = 22, 144, 146
            k(f'v_mov_b32 v{TWO}, 2.0'); k(f'v_mov_b32 v{TWO+1}, 2.0')
            k(f'v_mov_b32 v{C2}, {fhex(-2*LN2)}'); k(f'v_mov_b32 v{C2+1}, {fhex(-2*LN2)}')
            k(f'v_mov_b32 v{LN2P}, {fhex(LN2)}'); k(f'v_mov_b32 v{LN2P+1}, {fhex(LN2)}')
            k('s_waitcnt lgkmcnt(0)')
            for xi in range(2):
                for d in range(2):
                    k(f'v_mul_f32 v{RL[xi]+d}, {fhex(LOG2E)}, v{10+2*xi}')
                    k(f'v_mul_f32 v{RML[xi]+d}, {fhex(LOG2E)}, v{11+2*xi}')
            SWV, CLV, XL, E, U, TT = 96, 112, 128, 96, 112, 148
            for wj, ss in enumerate((sSA, sSB)):
                SKS = k.newlabel('noslot')
                k(f's_cmp_ge_u32 s{ss}, s{sNF}')
                k(f's_cbranch_scc1 {SKS}')
                k(f's_lshl_b32 s{sT0}, s{ss}, 7')
                k(f'v_add_u32 v7, s{sT0}, v5')
                for xi, stile in enumerate((sTA, sTB)):
                    A = ACC + 16 * tiles.index((xi, wj))
                    for g_ in range(4):
                        k(f'ds_read_b128 {v(SWV+4*g_,4)}, v7 offset:{g_*32}')
                        k(f'ds_read_b128 {v(CLV+4*g_,4)}, v7 offset:{L_BIAS - L_SW + g_*32}')
                    k(f's_add_u32 s{sT0}, s{sC}, s{stile}')
                    k(f's_mul_i32 s{sT0}, s{sT0}, 144')
                    k(f's_add_u32 s{sT1}, s{sFB}, s{ss}')
                    k(f's_lshl_b32 s{sT1}, s{sT1}, 1')
                    k(f's_add_u32 s{sT0}, s{sT0}, s{sT1}')
                    k(f's_add_u32 s{sT0}, s{sT0}, 32')
                    k(f's_lshl_b32 s{sT0}, s{sT0}, 10')
                    k(f's_add_u32 s{sT0}, s{sT0}, {WS_TF:#x}')
                    k('s_waitcnt lgkmcnt(0)')
                    P2 = lambda r: v(r, 2)
                    for i in range(0, 16, 2):
                        k(f'v_pk_fma_f32 {P2(CLV+i)}, {P2(RML[xi])}, {P2(SWV+i)}, {P2(CLV+i)} neg_lo:[1,0,0] neg_hi:[1,0,0]')
                    for i in range(0, 16, 2):
                        k(f'v_pk_fma_f32 {P2(XL+i)}, {P2(A+i)}, {P2(RL[xi])}, {P2(CLV+i)}')
                    for i in range(16):
                        k(f'v_exp_f32 v{E+i}, v{XL+i}')
                    for i in range(0, 16, 2):
                        k(f'v_pk_add_f32 {P2(U+i)}, {P2(E+i)}, {P2(TWO)}')
                    for i in range(0, 16, 2):
                        k(f'v_pk_fma_f32 {P2(E+i)}, {P2(E+i)}, {P2(U+i)}, {P2(TWO)}')
                    for i in range(16):
                        k(f'v_rcp_f32 v{E+i}, v{E+i}')
                    for i in range(0, 16, 2):
                        k(f'v_pk_fma_f32 {P2(E+i)}, {P2(E+i)}, {P2(C2)}, {P2(LN2P)}')
                    for i in range(0, 16, 2):
                        k(f'v_pk_mul_f32 {P2(XL+i)}, {P2(XL+i)}, {P2(E+i)}')
                    for i in range(8):
                        k(f'v_cvt_pk_bf16_f32 v{TT+i}, v{XL+2*i}, v{XL+2*i+1}')
                    k(f'buffer_store_dwordx4 {v(TT,4)}, v6, s[{SWS}:{SWS+3}], s{sT0} offen {ST1}')
                    k(f'buffer_store_dwordx4 {v(TT+4,4)}, v6, s[{SWS}:{SWS+3}], s{sT0} offen offset:1024 {ST1}')
                k.label(SKS)
        else:
            vR, vRM = 10, 11
            tokstats_issue(sTA, 10)
            if 'N' in types:
                k(f's_lshl_b32 s{sT0}, s{sTA}, 7')
                k(f'v_lshlrev_b32 v7, 4, v{vH}')
                k(f'v_add_u32 v7, s{sT0}, v7')
                k(f'v_add_u32 v7, {L_RSUM}, v7')
                for g_ in range(4):
                    k(f'ds_read_b128 {v(120+4*g_,4)}, v7 offset:{g_*32}')
                    k(f'ds_read_b128 {v(136+4*g_,4)}, v7 offset:{g_*32 + 512}')
                k(f'v_lshrrev_b32 v12, 4, v{vN}')
                k(f'v_lshlrev_b32 v12, 16, v12')
                k(f'v_lshl_add_u32 v12, v{vH}, 8, v12')
                k(f'v_and_b32 v13, 15, v{vN}')
                k(f'v_lshl_add_u32 v12, v13, 4, v12')
            k('s_waitcnt lgkmcnt(0)')
            k(f's_add_u32 s{sD1}, s{sC}, s{sTA}')
            SL = [sSA, sSB, sTB]
            for j in range(3):
                A = ACC + 16 * j
                SWR, T = 96, 112
                k(f's_add_u32 s{sT1}, s{sQB}, s{SL[j]}')
                k(f's_lshl_b32 s{sT0}, s{sT1}, 17')
                k(f's_lshl_b32 s{sT2}, s{sD1}, 10')
                k(f's_add_u32 s{sT0}, s{sT0}, s{sT2}')
                k(f's_lshl_b32 s{sD2}, s{SL[j]}, 7')
                if types[j] == 'T':
                    k(f'v_add_u32 v7, s{sD2}, v5')
                    for g_ in range(4):
                        k(f'ds_read_b128 {v(SWR+4*g_,4)}, v7 offset:{512 + g_*32}')
                    k(f's_cmp_lt_u32 s{sT1}, 16')
                    k(f's_cselect_b32 s{sD2}, {fhex(QSCALE)}, 1.0')
                    k(f'v_mul_f32 v14, s{sD2}, v{vR}')
                    k(f'v_mul_f32 v15, s{sD2}, v{vRM}')
                    k('s_waitcnt lgkmcnt(0)')
                    for i in range(16):
                        k(f'v_mul_f32 v{SWR+i}, v15, v{SWR+i}')
                    for i in range(16):
                        k(f'v_fma_f32 v{A+i}, v{A+i}, v14, -v{SWR+i}')
                    for i in range(8):
                        k(f'v_cvt_pk_bf16_f32 v{T+i}, v{A+2*i}, v{A+2*i+1}')
                    k(f's_add_u32 s{sT2}, s{sT0}, 0x10000')
                    k(f'buffer_store_dwordx4 {v(T,4)}, v6, s[{SWS}:{SWS+3}], s{sT0} offen {ST1}')
                    k(f'buffer_store_dwordx4 {v(T+4,4)}, v6, s[{SWS}:{SWS+3}], s{sT2} offen {ST1}')
                    k('s_nop 1')
                else:
                    k(f'v_lshlrev_b32 v13, 2, v{vN}')
                    k(f'v_add_u32 v13, s{sD2}, v13')
                    k(f'v_add_u32 v13, {L_SW + 512}, v13')
                    k(f'ds_read_b32 v14, v13')
                    k('s_waitcnt lgkmcnt(0)')
                    for i in range(16):
                        k(f'v_mul_f32 v{SWR+i}, v14, v{136+i}')
                    for i in range(16):
                        k(f'v_fma_f32 v{A+i}, v{A+i}, v{120+i}, -v{SWR+i}')
                    for i in range(8):
                        k(f'v_cvt_pk_bf16_f32 v{T+i}, v{A+2*i}, v{A+2*i+1}')
                    k(f'buffer_store_dwordx4 {v(T,4)}, v12, s[{SWS}:{SWS+3}], s{sT0} offen {ST1}')
                    k(f'buffer_store_dwordx4 {v(T+4,4)}, v12, s[{SWS}:{SWS+3}], s{sT0} offen offset:512 {ST1}')
                    k('s_nop 1')
        k.stamp()
        if k.st_en:
            k('s_waitcnt vmcnt(0)')
        k.stamp(); k.stamp(real=True)
        k.stamp_dump(0, sW, vtmp=3)
        k('s_endpgm')

    n0 = k.st_n
    role(0, None)
    k.label(ROLE1)
    V1 = k.newlabel('ttn'); V2 = k.newlabel('nnn')
    k(f's_cmp_eq_u32 s{sCG}, 10')
    k(f's_cbranch_scc1 {V1}')
    k(f's_cmp_gt_u32 s{sCG}, 10')
    k(f's_cbranch_scc1 {V2}')
    k.st_n = n0
    role(1, ['T', 'T', 'T'])
    k.label(V1)
    k.st_n = n0
    role(1, ['T', 'T', 'N'])
    k.label(V2)
    k.st_n = n0
    role(1, ['N', 'N', 'N'])

    k.label(PROD)
    k.st_n = n0
    if os.environ.get('PPRIO'): k(f's_setprio {os.environ["PPRIO"]}')
    vOX0, vOX1, vOF, vOQ = 10, 11, 12, 13
    vXs = 14
    XF = [20, 24]
    TMP = 28
    RS = 36
    SWZ = [40, 48, 56]
    vZ1, vZ2 = 64, 65
    k(f'v_lshrrev_b32 v2, 3, v{vLANE}')
    k(f'v_and_b32 v3, 7, v{vLANE}')
    k(f'v_lshrrev_b32 v4, 4, v{vLANE}')
    k(f'v_xor_b32 v5, v3, v4')
    k(f'v_lshlrev_b32 v5, 4, v5')
    k(f'v_lshl_add_u32 v{vOX0}, v2, 10, v5')
    k(f'v_xor_b32 v{vOX1}, 64, v{vOX0}')
    k(f'v_add_u32 v{vOX1}, 0x2000, v{vOX1}')
    k(f'v_and_b32 v3, 3, v{vLANE}')
    k(f'v_bfe_u32 v5, v{vLANE}, 2, 2')
    k(f'v_xor_b32 v5, v5, v4')
    k(f'v_lshlrev_b32 v6, 4, v3')
    k(f'v_lshl_add_u32 v6, v5, 6, v6')
    k(f'v_mul_u32_u24 v7, 3584, v4')
    k(f'v_add_u32 v{vOF}, v7, v6')
    k(f'v_mul_u32_u24 v7, 3072, v4')
    k(f'v_add_u32 v{vOQ}, v7, v6')
    k(f'v_mov_b32 v7, 0x7f000000')
    k(f'v_cmp_eq_u32 vcc, 3, v5')
    k(f'v_cmp_le_u32 s[72:73], s{sNF}, v5')
    k('s_nop 1')
    k(f'v_cndmask_b32 v{vOQ}, v{vOQ}, v7, vcc')
    k(f'v_cndmask_b32 v{vOF}, v{vOF}, v7, s[72:73]')
    k(f's_lshl_b32 s{sXO}, s{sRBK}, 17')
    k(f's_lshl_b32 s{sT0}, s{sRB}, 15')
    k(f's_add_u32 s{sXO}, s{sXO}, s{sT0}')
    k(f's_mul_i32 s{sFO}, s{sRB}, {8*3584}')
    k(f's_lshl_b32 s{sT0}, s{sFB}, 6')
    k(f's_add_u32 s{sFO}, s{sFO}, s{sT0}')
    k(f's_mul_i32 s{sQO}, s{sRB}, {8*3072}')
    k(f's_lshl_b32 s{sT0}, s{sQB}, 6')
    k(f's_add_u32 s{sQO}, s{sQO}, s{sT0}')
    k(f's_lshl_b32 s{sXD}, s{sRB}, 12')
    k(f's_lshl_b32 s{sWD}, s{sRB}, 11')
    k(f's_add_u32 s{sWD}, s{sWD}, {WRB}')
    k('s_waitcnt lgkmcnt(0)')
    k.srd(SX, 36, 37, 2048 * 512 * 2)
    k.srd(SW_, 44, 45, 512 * 3584)
    k.srd(SWQ, 38, 39, 512 * 3072)
    def dmaX_groups(tag):
        return [[f's_mov_b32 m0, s{sXD}', f's_add_u32 s{sT0}, s{sXO}, 16384', (f'buffer_load_dwordx4 v{vOX0}, s[{SX}:{SX+3}], s{sXO} offen lds', tag)],
                [f's_add_u32 m0, s{sXD}, 1024', 's_nop 0', (f'buffer_load_dwordx4 v{vOX1}, s[{SX}:{SX+3}], s{sXO} offen lds', tag)],
                [f's_add_u32 m0, s{sXD}, 2048', f's_add_u32 s{sXO}, s{sXO}, 128', (f'buffer_load_dwordx4 v{vOX0}, s[{SX}:{SX+3}], s{sT0} offen lds', tag)],
                [f's_add_u32 m0, s{sXD}, 3072', f's_add_u32 s{sXD}, s{sXD}, {XSL}', (f'buffer_load_dwordx4 v{vOX1}, s[{SX}:{SX+3}], s{sT0} offen lds', tag),
                 f's_cmp_ge_u32 s{sXD}, {NXS*XSL}', f's_cselect_b32 s{sT0}, {NXS*XSL}, 0', f's_sub_u32 s{sXD}, s{sXD}, s{sT0}']]
    def dmaW_groups(tag):
        return [[f's_mov_b32 m0, s{sWD}', f's_add_u32 s{sT2}, s{sFO}, {4*3584}', (f'buffer_load_dwordx4 v{vOF}, s[{SW_}:{SW_+3}], s{sFO} offen lds', tag)],
                [f's_add_u32 m0, s{sWD}, 1024', f's_add_u32 s{sFO}, s{sFO}, {32*3584}', (f'buffer_load_dwordx4 v{vOF}, s[{SW_}:{SW_+3}], s{sT2} offen lds', tag)],
                [f's_add_u32 m0, s{sWD}, 8192', f's_add_u32 s{sT2}, s{sQO}, {4*3072}', (f'buffer_load_dwordx4 v{vOQ}, s[{SWQ}:{SWQ+3}], s{sQO} offen lds', tag)],
                [f's_add_u32 m0, s{sWD}, 9216', f's_add_u32 s{sQO}, s{sQO}, {32*3072}', (f'buffer_load_dwordx4 v{vOQ}, s[{SWQ}:{SWQ+3}], s{sT2} offen lds', tag),
                 f's_add_u32 s{sWD}, s{sWD}, {WSL}', f's_cmp_ge_u32 s{sWD}, {WRB + NWS*WSL}', f's_cselect_b32 s{sT2}, {NWS*WSL}, 0', f's_sub_u32 s{sWD}, s{sWD}, s{sT2}']]
    def emit_group(gr):
        for t in gr:
            if isinstance(t, tuple): k.vmop(t[0], t[1])
            else: k(t)
    def dmaX(tag):
        for gr in dmaX_groups(tag): emit_group(gr)
    def dmaW(tag):
        for gr in dmaW_groups(tag): emit_group(gr)
    k.vm = []
    dmaX(('X', 0)); dmaW(('W', 0)); dmaW(('W', 1))
    k.stamp()
    dmaX(('X', 1)); dmaW(('W', 2))
    k(f'v_bfe_u32 v2, v{vN}, 1, 3')
    k(f'v_xor_b32 v2, v2, v{vH}')
    k(f'v_lshlrev_b32 v2, 4, v2')
    k(f'v_lshl_add_u32 v4, v{vN}, 7, v2')
    k(f's_lshl_b32 s{sT0}, s{sRB}, 12')
    k(f'v_add_u32 v{vXs}, s{sT0}, v4')
    for kk in range(1, 4):
        k(f'v_xor_b32 v{vXs+kk}, {kk*32}, v{vXs}')
    for i in range(4):
        k(f'v_mov_b32 v{RS+i}, 0')
    k(f's_mov_b32 s{sXR}, 0')
    k.srd(SWS, 50, 51, WS_SIZE)
    XFB = [[20, 24], [72, 76]]
    def stat_reads(par, buf):
        if 'nodot' in EXP or 'nostat' in EXP: return
        k(f'ds_read_b128 {v(XFB[buf][0],4)}, v{vXs+2*par}')
        k(f'ds_read_b128 {v(XFB[buf][1],4)}, v{vXs+2*par+1}')
        if par == 1:
            k(f's_add_u32 s{sXR}, s{sXR}, {XSL}')
            k(f's_cmp_eq_u32 s{sXR}, {NXS*XSL}')
            k(f's_mov_b32 s{sT1}, {XSL}')
            k(f's_cselect_b32 s{sT1}, {(XSL - NXS*XSL) & 0xffffffff:#x}, s{sT1}')
            k(f's_cselect_b32 s{sXR}, 0, s{sXR}')
            for i in range(4):
                k(f'v_add_u32 v{vXs+i}, s{sT1}, v{vXs+i}')
    def stat_ops(buf):
        if 'nodot' in EXP or 'nostat' in EXP: return []
        L = []
        for s_ in range(2):
            for q in range(4):
                x = XFB[buf][s_] + q
                L += [f'v_and_b32 v{TMP+2*q}, 0xffff0000, v{x}', f'v_lshlrev_b32 v{TMP+2*q+1}, 16, v{x}']
            for q in range(4):
                L += [f'v_add_f32 v{RS}, v{RS}, v{TMP+2*q}', f'v_fmac_f32 v{RS+2}, v{TMP+2*q}, v{TMP+2*q}',
                      f'v_add_f32 v{RS+1}, v{RS+1}, v{TMP+2*q+1}', f'v_fmac_f32 v{RS+3}, v{TMP+2*q+1}, v{TMP+2*q+1}']
        return L
    def side_loads():
        k(f'v_lshlrev_b32 v2, 12, v{vH}')
        k(f'v_lshl_add_u32 v{vZ1}, v{vN}, 1, v2')
        k(f'v_add_u32 v{vZ2}, 0x2000, v{vZ1}')
        k(f's_and_b32 s{sT2}, s2, 3')
        k(f's_lshl_b32 s{sT2}, s{sT2}, 2')
        k(f's_add_u32 s{sT2}, s{sT2}, s{sRB}')
        for i in range(3):
            SKI = None
            if i == 2:
                SKI = k.newlabel('noswz3')
                k(f's_cmp_ge_u32 s2, 64')
                k(f's_cbranch_scc1 {SKI}')
            k(f's_lshr_b32 s{sT0}, s2, 2')
            if i: k(f's_add_u32 s{sT0}, s{sT0}, {64*i}')
            if i == 0:
                k(f's_cmp_lt_u32 s{sT0}, 32')
                k(f's_cselect_b32 s{SSZ}, s40, s48')
                k(f's_cselect_b32 s{SSZ+1}, s41, s49')
                k(f's_mov_b32 s{SSZ+2}, {1792*1024:#x}')
                k(f's_cselect_b32 s{SSZ+2}, {512*1024:#x}, s{SSZ+2}')
                k(f's_cselect_b32 s{sT1}, 0, 32')
                k(f's_and_b32 s{SSZ+1}, s{SSZ+1}, 0xffff')
                k(f's_mov_b32 s{SSZ+3}, 0x20000')
                k(f's_sub_u32 s{sT1}, s{sT0}, s{sT1}')
            else:
                if i == 1: k.srd(SSZ, 48, 49, 1792 * 1024)
                k(f's_sub_u32 s{sT1}, s{sT0}, 32')
            k(f's_lshl_b32 s{sT1}, s{sT1}, 14')
            k(f's_lshl_b32 s{sZD[i]}, s{sT2}, 6')
            k(f's_add_u32 s{sT1}, s{sT1}, s{sZD[i]}')
            for j in range(8):
                k(f'buffer_load_ushort v{SWZ[i]+j}, v{vZ1 if j < 4 else vZ2}, s[{SSZ}:{SSZ+3}], s{sT1} offen offset:{(j%4)*1024}')
            k(f's_lshl_b32 s{sZD[i]}, s{sT0}, 4')
            k(f's_add_u32 s{sZD[i]}, s{sZD[i]}, s{sT2}')
            k(f's_lshl_b32 s{sZD[i]}, s{sZD[i]}, 10')
            k(f's_add_u32 s{sZD[i]}, s{sZD[i]}, {WS_WF:#x}')
            if SKI: k.label(SKI)
    def side_stores():
        k(f'v_lshlrev_b32 v2, 4, v{vLANE}')
        for i in range(3):
            SKI = None
            if i == 2:
                SKI = k.newlabel('noswz3s')
                k(f's_cmp_ge_u32 s2, 64')
                k(f's_cbranch_scc1 {SKI}')
            for r in range(4):
                k(f'v_lshl_or_b32 v{68+r}, v{SWZ[i]+2*r+1}, 16, v{SWZ[i]+2*r}')
            k(f'buffer_store_dwordx4 v[68:71], v2, s[{SWS}:{SWS+3}], s{sZD[i]} offen {ST1}')
            k('s_nop 1')
            if SKI: k.label(SKI)
    k.vmwait(('W', 0))
    BAR()
    k.stamp()
    dmaW(('W', 3)); dmaW(('W', 4))
    for c in range(16):
        if c + 1 < 16:
            tw, tx = ('W', c + 1), ('X', (c + 1) // 2)
            iw = max([i for i, t in enumerate(k.vm) if t == tw], default=-1)
            ix = max([i for i, t in enumerate(k.vm) if t == tx], default=-1)
            if max(iw, ix) >= 0:
                k.vmwait(tw if iw > ix else tx)
        BAR()
        stat_reads(c & 1, c & 1)
        groups = []
        if 'nodma' not in EXP:
            if c % 2 == 0 and c // 2 + 2 < 8: groups += dmaX_groups(('X', c // 2 + 2))
            if c + 5 < 16: groups += dmaW_groups(('W', c + 5))
        ops = stat_ops((c - 1) & 1) if c >= 1 else []
        per = (len(ops) + max(len(groups), 1) - 1) // max(len(groups), 1)
        for gr in groups:
            emit_group(gr)
            for _ in range(per):
                if ops: k(ops.pop(0))
        for t in ops: k(t)
        if c == 14:
            side_loads()
        k('s_waitcnt lgkmcnt(0)')
    for t in stat_ops(15 & 1): k(t)
    k.stamp()
    k(f'v_add_f32 v{RS}, v{RS}, v{RS+1}')
    k(f'v_add_f32 v{RS+2}, v{RS+2}, v{RS+3}')
    k(f'v_mov_b32 v{RS+1}, v{RS}')
    k(f'v_mov_b32 v{RS+3}, v{RS+2}')
    k('s_nop 1')
    k(f'v_permlane32_swap_b32 v{RS}, v{RS+1}')
    k(f'v_permlane32_swap_b32 v{RS+2}, v{RS+3}')
    k('s_nop 1')
    k(f'v_add_f32 v5, v{RS}, v{RS+1}')
    k(f'v_add_f32 v6, v{RS+2}, v{RS+3}')
    k(f'v_mul_f32 v5, {fhex(1/512)}, v5')
    k(f'v_mul_f32 v6, {fhex(1/512)}, v6')
    k(f'v_fma_f32 v6, -v5, v5, v6')
    k(f'v_max_f32 v6, 0, v6')
    k(f'v_add_f32 v6, {fhex(1e-5)}, v6')
    k(f'v_rsq_f32 v6, v6')
    k('s_nop 0')
    k(f'v_mul_f32 v5, v5, v6')
    k(f's_lshl_b32 s{sT0}, s{sRB}, 7')
    k(f'v_lshlrev_b32 v2, 2, v{vN}')
    k(f'v_add_u32 v2, s{sT0}, v2')
    k(f'v_add_u32 v2, {L_RSUM}, v2')
    k(f'ds_write_b32 v2, v6')
    k(f'ds_write_b32 v2, v5 offset:512')
    k('s_waitcnt lgkmcnt(0)')
    BAR()
    k.stamp()
    k('s_waitcnt vmcnt(0)')
    side_stores()
    NZ = k.newlabel('nozero')
    k(f's_cmp_ge_u32 s2, 32')
    k(f's_cbranch_scc1 {NZ}')
    k(f's_cmp_lg_u32 s{sRB}, 0')
    k(f's_cbranch_scc1 {NZ}')
    k(f's_lshl_b32 s{sT0}, s2, 8')
    k(f's_add_u32 s{sT0}, s{sT0}, {WS_CNT:#x}')
    k(f'v_lshlrev_b32 v2, 2, v{vLANE}')
    k(f'v_mov_b32 v3, 0')
    k(f'buffer_store_dword v3, v2, s[{SWS}:{SWS+3}], s{sT0} offen sc0 sc1')
    k.label(NZ)
    k.stamp()
    if k.st_en:
        k('s_waitcnt vmcnt(0)')
    k.stamp(); k.stamp(real=True)
    k.stamp_dump(0, sW, vtmp=3)
    k.label(END)
    k('s_endpgm')
    return k.text(160, 100 if DBG else 80)

K2_CONST = 131072
K2_LDS = K2_CONST + 8192 + 256 + 16384
def gen_k2():
    k = Kern('k2_kernel')
    END = 'k2_end'
    SWS = 4
    sW, sHEAD, sQT, sIT, sT0, sT1, sFB = 8, 9, 10, 11, 12, 13, 14
    sKS, sVS, sLD = 22, 23, 24
    vLANE, vKA, vVA, vO16, vINC, vVA0 = 1, 2, 3, 4, 5, 6
    QF = 8
    NEGM = 16
    O = 32
    S = [48, 64]
    P = 80
    KF = [88, 92]
    VF = [96, 104]
    T = 112
    FA = 128
    FB = 144
    sFT0, sFT1, sFW, sA0, sA1, sA2, sTB, sNBP = 28, 29, 30, 31, 32, 33, 34, 35
    sFT0i, sFT1i, sFWi = 36, 37, 38
    UN = 8
    k('s_cmp_ge_u32 s2, 256')
    k(f's_cbranch_scc1 {END}')
    k.stamp_init('2' in DBG)
    k.stamp(); k.stamp(real=True)
    k('s_load_dwordx2 s[20:21], s[0:1], 72')
    k('v_lshrrev_b32 v2, 6, v0')
    k(f'v_and_b32 v{vLANE}, 63, v0')
    k(f'v_readfirstlane_b32 s{sW}, v2')
    k(f's_and_b32 s{sHEAD}, s2, 31')
    k(f's_lshr_b32 s{sQT}, s2, 5')
    k(f's_lshl_b32 s{sQT}, s{sQT}, 3')
    k(f'v_lshlrev_b32 v{vO16}, 4, v{vLANE}')
    k(f's_add_u32 s{sQT}, s{sQT}, s{sW}')
    k(f's_lshl_b32 s{sT0}, s{sHEAD}, 16')
    k(f's_lshl_b32 s{sT1}, s{sQT}, 10')
    k(f's_add_u32 s25, s{sT1}, s{sT0}')
    k(f's_lshl_b32 s{sLD}, s{sW}, 10')
    k(f's_add_u32 s{sT0}, s{sT0}, s{sLD}')
    k(f's_add_u32 s{sKS}, s{sT0}, {32*65536:#x}')
    k(f's_add_u32 s{sVS}, s{sT0}, {64*65536:#x}')
    k('s_waitcnt lgkmcnt(0)')
    k.srd(SWS, 20, 21, WS_SIZE)
    k(f'buffer_load_dwordx4 {v(QF,4)}, v{vO16}, s[{SWS}:{SWS+3}], s25 offen')
    def dma_round(i):
        k(f's_add_u32 m0, s{sLD}, {i*8192}')
        k(f's_add_u32 s26, s{sKS}, {i*8192}')
        k.vmop(f'buffer_load_dwordx4 v{vO16}, s[{SWS}:{SWS+3}], s26 offen lds', 'dma')
        k(f's_add_u32 m0, s{sLD}, {65536 + i*8192}')
        k(f's_add_u32 s26, s{sVS}, {i*8192}')
        k.vmop(f'buffer_load_dwordx4 v{vO16}, s[{SWS}:{SWS+3}], s26 offen lds', 'dma')
    dma_round(0)
    dma_round(1)
    k('v_lshlrev_b32 v7, 4, v0')
    k(f'v_add_u32 v7, {K2_CONST}, v7')
    for i in range(4):
        k(f'v_mov_b32 v{T+i}, 0')
    k('v_and_b32 v12, 31, v0')
    k('v_cmp_eq_u32 vcc, 0, v12')
    k(f'v_mov_b32 v13, 0x3f803f80')
    k('s_nop 0')
    for i in range(4):
        k(f'v_cndmask_b32 v{T+i}, v{T+i}, v13, vcc')
    k(f'ds_write_b128 v7, {v(T,4)}')
    for i in range(4):
        k(f'v_mov_b32 v{T+4+i}, 0')
    k(f'v_mov_b32 v7, {K2_CONST + 8192}')
    k(f'v_lshl_add_u32 v7, v{vLANE}, 2, v7')
    k(f'ds_write_b32 v7, v{T+4}')
    k(f'v_lshrrev_b32 v7, 5, v{vLANE}')
    k(f'v_lshlrev_b32 v7, 8, v7')
    k(f'v_and_b32 v12, 15, v{vLANE}')
    k(f'v_lshl_add_u32 v7, v12, 4, v7')
    k(f'v_add_u32 v{vVA0}, 0x10000, v7')
    k(f'v_mov_b32 v{vINC}, {UN*1024}')
    k(f'v_and_b32 v12, 31, v{vLANE}')
    k(f'v_mov_b32 v13, {K2_CONST + 16}')
    k(f'v_mov_b32 v14, 0')
    k('v_cmp_lt_u32 vcc, 15, v12')
    k('s_nop 1')
    k(f'v_cndmask_b32 v{vVA0}, v{vVA0}, v13, vcc')
    k(f'v_cndmask_b32 v{vINC}, v{vINC}, v14, vcc')
    k(f'v_mov_b32 v13, {K2_CONST}')
    k('v_cmp_eq_u32 vcc, 16, v12')
    k('s_nop 1')
    k(f'v_cndmask_b32 v{vVA0}, v{vVA0}, v13, vcc')
    k(f'v_subrev_u32 v14, 20, v12')
    k(f'v_mov_b32 v13, {K2_CONST + 64}')
    k('v_cmp_gt_u32 vcc, 8, v14')
    k('s_nop 1')
    k(f'v_cndmask_b32 v{vVA0}, v{vVA0}, v13, vcc')
    k(f's_mov_b32 s{sFB}, 0')
    k(f's_and_b32 s{sTB}, s2, 7')
    k(f's_lshr_b32 s{sT0}, s2, 3')
    k(f's_and_b32 s{sT0}, s{sT0}, 3')
    k(f's_lshl_b32 s{sT0}, s{sT0}, 3')
    k(f's_add_u32 s{sTB}, s{sTB}, s{sT0}')
    k(f's_lshr_b32 s{sNBP}, s2, 5')
    k(f's_lshr_b32 s{sT0}, s{sW}, 2')
    k(f's_mul_i32 s{sT0}, s{sT0}, 56')
    k(f's_add_u32 s{sT0}, s{sT0}, 32')
    k(f's_lshl_b32 s{sFT0i}, s{sTB}, 1')
    k(f's_bfe_u32 s{sT1}, s{sW}, 0x10001')
    k(f's_add_u32 s{sFT0i}, s{sFT0i}, s{sT1}')
    k(f's_mul_i32 s{sFT0i}, s{sFT0i}, 144')
    k(f's_add_u32 s{sFT0i}, s{sFT0i}, s{sT0}')
    k(f's_lshl_b32 s{sFT0i}, s{sFT0i}, 10')
    k(f's_add_u32 s{sFT0i}, s{sFT0i}, {WS_TF:#x}')
    k(f's_lshl_b32 s{sFWi}, s{sT0}, 4')
    k(f's_lshl_b32 s{sT1}, s{sNBP}, 1')
    k(f's_add_u32 s{sFWi}, s{sFWi}, s{sT1}')
    k(f's_and_b32 s{sT1}, s{sW}, 1')
    k(f's_add_u32 s{sFWi}, s{sFWi}, s{sT1}')
    k(f's_lshl_b32 s{sFWi}, s{sFWi}, 10')
    k(f's_add_u32 s{sFWi}, s{sFWi}, {WS_WF:#x}')
    k('s_waitcnt vmcnt(0) lgkmcnt(0)')
    k('s_barrier')
    k.stamp()
    k(f'ds_read_b128 {v(KF[0],4)}, v{vO16}')
    k('s_waitcnt lgkmcnt(0)')
    k(MFMA(v(S[0],16), v(KF[0],4), v(QF,4), '0'))
    k('s_nop 15')
    k(f'v_max3_f32 v{T}, v{S[0]}, v{S[0]+1}, v{S[0]+2}')
    for i in range(3, 15, 2):
        k(f'v_max3_f32 v{T}, v{T}, v{S[0]+i}, v{S[0]+i+1}')
    k(f'v_max_f32 v{T}, v{T}, v{S[0]+15}')
    RESTART = k.newlabel('restart')
    k.label(RESTART)
    k(f'v_mov_b32 v{T+1}, v{T}')
    k(f'v_mov_b32 v{vKA}, v{vO16}')
    k(f'v_mov_b32 v{vVA}, v{vVA0}')
    k(f'v_permlane32_swap_b32 v{T}, v{T+1}')
    k(f'ds_read_b128 {v(KF[0],4)}, v{vKA}')
    k(f'ds_read_b128 {v(VF[0],4)}, v{vVA}')
    k(f'ds_read_b128 {v(VF[0]+4,4)}, v{vVA} offset:512')
    k(f'ds_read_b128 {v(KF[1],4)}, v{vKA} offset:1024')
    k(f'v_max_f32 v{T}, v{T}, v{T+1}')
    for i in range(16):
        k(f'v_sub_f32 v{NEGM+i}, 0, v{T}')
    for i in range(16):
        k(f'v_mov_b32 v{O+i}, 0')
    for i in range(8):
        k(f'v_mov_b32 v{VF[1]+i}, 0')
    for i in range(8):
        k(f'v_mov_b32 v{P+i}, 0')
    for i in range(12, 16):
        k(f'v_mov_b32 v{S[1]+i}, 0')
    for i in range(16):
        k(f'v_mov_b32 v{FA+i}, 0')
    k(f's_mov_b32 s{sFT0}, s{sFT0i}')
    k(f's_mul_i32 s{sFW}, s{sFB}, 16384')
    k(f's_sub_u32 s{sFW}, s{sFWi}, s{sFW}')
    k('s_waitcnt lgkmcnt(0)')
    k(MFMA(v(S[0],16), v(KF[0],4), v(QF,4), v(NEGM,16)))
    k('s_nop 15')
    def body(dma, prio=None):
        dq = []
        if dma:
            for i in range(2, 8):
                dq.append(i)
        nolds = 'nolds' in EXP
        noffn = 'noffn' in EXP
        k.vm = []
        def MF(*a):
            if 'nomfma' not in EXP: k(MFMA(*a))
        def floadW(j):
            if noffn: return
            if j == 0 and dma: return
            r = FB + 8 * ((j - 1) % 8)
            k(f'buffer_load_dwordx4 {v(r+4,4)}, v{vO16}, s[{SWS}:{SWS+3}], s{sFW} offen')
            k(f's_add_u32 s{sFW}, s{sFW}, 16384')
            if j == 0:
                k(f's_cmp_lt_u32 s{sIT}, 7')
                k(f's_cselect_b32 s{sFW}, s{sFW}, 0x7f000000')
                k(f's_cselect_b32 s{sFT0}, s{sFT0}, 0x7f000000')
        def floadT(q):
            if noffn: return
            r = FB + 8 * q
            k(f'buffer_load_dwordx4 {v(r,4)}, v{vO16}, s[{SWS}:{SWS+3}], s{sFT0} offen')
            k(f's_add_u32 s{sFT0}, s{sFT0}, 1024')
        def fmma(q):
            if noffn or dma: return
            r = FB + 8 * q
            k('s_waitcnt vmcnt(14)')
            MF(v(FA,16), v(r+4,4), v(r,4), v(FA,16))
        for j in range(UN):
            b = j & 1
            cur, nxt = S[b], S[b ^ 1]
            e = lambda i: k(f'v_exp_f32 v{cur+i}, v{cur+i}')
            c = lambda i: k(f'v_cvt_pk_bf16_f32 v{P+i}, v{cur+2*i}, v{cur+2*i+1}')
            cp = lambda i: k(f'v_cvt_pk_bf16_f32 v{P+i}, v{nxt+2*i}, v{nxt+2*i+1}')
            e(0)
            if prio is not None and (j == 0 or prio[j] != prio[j-1]):
                k(f's_setprio {prio[j]}')
            if j == UN - 1:
                k(f'v_add_u32 v{vVA}, v{vINC}, v{vVA}')
            cp(6); e(1); e(2)
            floadW(j)
            cp(7); e(3); e(4)
            MF(v(O,16), v(VF[b^1]+4,4), v(P+4,4), v(O,16))
            voff = ((j + 1) % UN) * 1024
            if not nolds: k(f'ds_read_b128 {v(VF[b^1],4)}, v{vVA} offset:{voff}')
            c(0); e(5); e(6); c(1)
            if not nolds: k('s_waitcnt lgkmcnt(1)')
            e(7)
            MF(v(nxt,16), v(KF[b^1],4), v(QF,4), v(NEGM,16))
            if not nolds: k(f'ds_read_b128 {v(VF[b^1]+4,4)}, v{vVA} offset:{voff+512}')
            e(8); c(2); e(9); e(10); c(3); e(11)
            if dq and j < 6:
                dma_round(dq.pop(0))
            e(12)
            MF(v(O,16), v(VF[b],4), v(P,4), v(O,16))
            if not nolds: k(f'ds_read_b128 {v(KF[b],4)}, v{vKA} offset:{(j+2)*1024}')
            c(4); e(13)
            if j == UN - 1:
                k(f'v_add_u32 v{vKA}, {UN*1024}, v{vKA}')
            e(14); c(5)
            fmma(j)
            floadT(j)
            if j == UN - 1:
                k(f's_add_u32 s{sIT}, s{sIT}, 1')
                k(f's_cmp_lt_u32 s{sIT}, {64//UN}')
            e(15)
    FIRST = k.newlabel('first'); LOOP = k.newlabel('loop'); LOOP2 = k.newlabel('loop2'); AFTER = k.newlabel('after'); R2 = k.newlabel('r2')
    k(f's_mov_b32 s{sIT}, 0')
    k(f's_cmp_eq_u32 s{sFB}, 1')
    k(f's_cbranch_scc1 {LOOP}')
    nh = int(os.environ.get('NH', '-1'))
    if nh >= 0:
        k(f's_cmp_ge_u32 s{sW}, 4')
        k(f's_cbranch_scc1 {R2}')
    body(True)
    k('s_waitcnt vmcnt(0)')
    k('s_barrier')
    k.label(LOOP)
    body(False)
    k(f's_cbranch_scc1 {LOOP}')
    if nh >= 0:
        k(f's_branch {AFTER}')
        k.label(R2)
        pr = [1] * nh + [0] * (UN - nh)
        body(True, pr)
        k('s_waitcnt vmcnt(0)')
        k('s_barrier')
        k.label(LOOP2)
        body(False, pr)
        k(f's_cbranch_scc1 {LOOP2}')
        k('s_setprio 0')
        k.label(AFTER)
    k('s_nop 1')
    k(f'v_cvt_pk_bf16_f32 v{P+6}, v{S[1]+12}, v{S[1]+13}')
    k(f'v_cvt_pk_bf16_f32 v{P+7}, v{S[1]+14}, v{S[1]+15}')
    k('s_nop 1')
    k(MFMA(v(O,16), v(VF[1]+4,4), v(P+4,4), v(O,16)))
    k('s_waitcnt lgkmcnt(0)')
    k('s_nop 15')
    k.stamp()
    k(f'v_mov_b32 v{T}, v{O+8}')
    k(f'v_mov_b32 v{T+1}, v{O+8}')
    k('s_nop 1')
    k(f'v_permlane32_swap_b32 v{T}, v{T+1}')
    k('s_nop 1')
    DONE = k.newlabel('done')
    k(f's_cmp_eq_u32 s{sFB}, 1')
    k(f's_cbranch_scc1 {DONE}')
    if EXP != ['']: k(f's_branch {DONE}')
    k(f'v_mov_b32 v{T+2}, {fhex(2.0**40)}')
    k(f'v_cmp_nlt_f32 vcc, v{T}, v{T+2}')
    k(f'v_mov_b32 v{T+1}, 0x207')
    for i in range(8):
        k(f'v_cmp_class_f32 s[26:27], v{O+i}, v{T+1}')
        k('s_or_b64 vcc, vcc, s[26:27]')
    k('s_cmp_eq_u64 vcc, 0')
    k(f's_cbranch_scc1 {DONE}')
    k(f's_mov_b32 s{sFB}, 1')
    k(f'v_mov_b32 v{vKA}, v{vO16}')
    k(f'v_mov_b32 v{T}, 0xff800000')
    k(f's_mov_b32 s{sIT}, 0')
    FL = k.newlabel('fbloop')
    k.label(FL)
    k(f'ds_read_b128 {v(KF[0],4)}, v{vKA}')
    k('s_waitcnt lgkmcnt(0)')
    k(MFMA(v(S[0],16), v(KF[0],4), v(QF,4), '0'))
    k('s_nop 15')
    for i in range(0, 16, 2):
        k(f'v_max3_f32 v{T}, v{T}, v{S[0]+i}, v{S[0]+i+1}')
    k(f'v_add_u32 v{vKA}, 0x400, v{vKA}')
    k(f's_add_u32 s{sIT}, s{sIT}, 1')
    k(f's_cmp_lt_u32 s{sIT}, 64')
    k(f's_cbranch_scc1 {FL}')
    k('s_waitcnt vmcnt(0)')
    for i in range(64):
        k(f'v_mov_b32 v{FB+i}, 0')
    k(f's_branch {RESTART}')
    k.label(DONE)
    k(f'v_rcp_f32 v{T}, v{T}')
    k('s_nop 0')
    for i in range(8):
        k(f'v_mul_f32 v{O+i}, v{O+i}, v{T}')
    for i in range(4):
        k(f'v_cvt_pk_bf16_f32 v{T+4+i}, v{O+2*i}, v{O+2*i+1}')
    k(f's_mul_i32 s{sT0}, s{sQT}, 144')
    k(f's_add_u32 s{sT0}, s{sT0}, s{sHEAD}')
    k(f's_lshl_b32 s{sT0}, s{sT0}, 10')
    k(f's_add_u32 s{sT0}, s{sT0}, {WS_TF:#x}')
    k(f'buffer_store_dwordx4 {v(T+4,4)}, v{vO16}, s[{SWS}:{SWS+3}], s{sT0} offen sc0 sc1')
    k.stamp()
    WOF, OF, XR = 16, FB, 80
    SX, SO, SD = 40, 44, 48
    sNB, sTT, sKH, sXO = 50, 51, 52, 53
    k('s_load_dwordx2 s[54:55], s[0:1], 0')
    k('s_load_dwordx2 s[56:57], s[0:1], 56')
    k(f's_load_dwordx2 s[{SD}:{SD+1}], s[0:1], 64')
    k(f's_and_b32 s{sNB}, s{sW}, 1')
    k(f's_bfe_u32 s{sTT}, s{sW}, 0x10001')
    k(f's_lshr_b32 s{sKH}, s{sW}, 2')
    k(f's_lshl_b32 s{sA0}, s{sKH}, 8')
    k(f's_lshl_b32 s{sA1}, s{sNBP}, 1')
    k(f's_add_u32 s{sA0}, s{sA0}, s{sA1}')
    k(f's_add_u32 s{sA0}, s{sA0}, s{sNB}')
    k(f's_lshl_b32 s{sA0}, s{sA0}, 10')
    k(f's_add_u32 s{sA0}, s{sA0}, {WS_WF:#x}')
    for j in range(16):
        k(f'buffer_load_dwordx4 {v(WOF+4*j,4)}, v{vO16}, s[{SWS}:{SWS+3}], s{sA0} offen')
        k(f's_add_u32 s{sA0}, s{sA0}, 16384')
    vXO = T + 8
    k(f'v_and_b32 v{vXO}, 31, v{vLANE}')
    k(f'v_lshlrev_b32 v{vXO}, 10, v{vXO}')
    k(f'v_lshrrev_b32 v{vXO+1}, 5, v{vLANE}')
    k(f'v_lshl_add_u32 v{vXO}, v{vXO+1}, 3, v{vXO}')
    k(f's_lshl_b32 s{sXO}, s{sTB}, 1')
    k(f's_add_u32 s{sXO}, s{sXO}, s{sTT}')
    k(f's_lshl_b32 s{sXO}, s{sXO}, 15')
    k(f's_lshl_b32 s{sA1}, s{sNBP}, 7')
    k(f's_add_u32 s{sXO}, s{sXO}, s{sA1}')
    k(f's_lshl_b32 s{sA1}, s{sNB}, 6')
    k(f's_add_u32 s{sXO}, s{sXO}, s{sA1}')
    k(f's_lshl_b32 s{sA1}, s{sKH}, 5')
    k(f's_add_u32 s{sXO}, s{sXO}, s{sA1}')
    k('s_waitcnt lgkmcnt(0)')
    k.srd(SX, 54, 55, 2048 * 1024)
    k.srd(SO, 56, 57, 2048 * 1024)
    k(f'buffer_load_dwordx2 {v(XR,2)}, v{vXO}, s[{SX}:{SX+3}], s{sXO} offen')
    k(f'buffer_load_dwordx2 {v(XR+2,2)}, v{vXO}, s[{SX}:{SX+3}], s{sXO} offen offset:16')
    k('s_waitcnt vmcnt(18)')
    k('s_barrier')
    k.stamp()
    NOTW0 = k.newlabel('notw0'); POLL = k.newlabel('poll'); PD = k.newlabel('polldone')
    k(f's_cmp_lg_u32 s{sW}, 0')
    k(f's_cbranch_scc1 {NOTW0}')
    k(f's_lshr_b32 s{sA0}, s2, 5')
    k(f's_lshl_b32 s{sA0}, s{sA0}, 10')
    k(f's_add_u32 s{sA0}, s{sA0}, {WS_CNT:#x}')
    k(f'v_lshlrev_b32 v{T}, 8, v{vLANE}')
    k(f'v_mov_b32 v{T+1}, 1')
    k('s_mov_b64 exec, 15')
    k(f'buffer_atomic_add v{T+1}, v{T}, s[{SWS}:{SWS+3}], s{sA0} offen sc1')
    k('s_mov_b64 exec, 1')
    k(f's_lshl_b32 s{sA0}, s{sTB}, 8')
    k(f's_add_u32 s{sA0}, s{sA0}, {WS_CNT:#x}')
    k(f'v_mov_b32 v{T}, 0')
    k(f's_mov_b32 s{sA1}, 0')
    k.label(POLL)
    k(f'buffer_load_dword v{T+1}, v{T}, s[{SWS}:{SWS+3}], s{sA0} offen {POLLF}')
    k('s_waitcnt vmcnt(0)')
    k(f'v_readfirstlane_b32 s{sA2}, v{T+1}')
    k(f's_add_u32 s{sA1}, s{sA1}, 1')
    k(f's_cmp_ge_u32 s{sA2}, 32')
    k(f's_cbranch_scc1 {PD}')
    k(f's_cmp_lt_u32 s{sA1}, {1 << 16}')
    k(f's_sleep {SLP}')
    k(f's_cbranch_scc1 {POLL}')
    k.label(PD)
    k('s_mov_b64 exec, -1')
    k.label(NOTW0)
    k('s_barrier')
    k.stamp()
    k(f's_lshl_b32 s{sA0}, s{sTB}, 1')
    k(f's_add_u32 s{sA0}, s{sA0}, s{sTT}')
    k(f's_mul_i32 s{sA0}, s{sA0}, 144')
    k(f's_lshl_b32 s{sA1}, s{sKH}, 4')
    k(f's_add_u32 s{sA0}, s{sA0}, s{sA1}')
    k(f's_lshl_b32 s{sA0}, s{sA0}, 10')
    k(f's_add_u32 s{sA0}, s{sA0}, {WS_TF:#x}')
    k.vm = []
    for j in range(16):
        if j and j % 4 == 0: k(f's_add_u32 s{sA0}, s{sA0}, 4096')
        k.vmop(f'buffer_load_dwordx4 {v(OF+4*j,4)}, v{vO16}, s[{SWS}:{SWS+3}], s{sA0} offen offset:{(j%4)*1024} {OLF}', j)
    for j in range(16):
        k.vmwait(j)
        k(MFMA(v(FA,16), v(WOF+4*j,4), v(OF+4*j,4), v(FA,16)))
    k('s_nop 15')
    k.stamp()
    RED = K2_CONST + 8192 + 256
    k(f's_and_b32 s{sA0}, s{sW}, 3')
    k(f's_lshl_b32 s{sA0}, s{sA0}, 12')
    k(f's_add_u32 s{sA0}, s{sA0}, {RED}')
    k(f'v_add_u32 v{T}, s{sA0}, v{vO16}')
    LO = k.newlabel('lo'); J = k.newlabel('j')
    R = OF
    k(f's_cmp_eq_u32 s{sKH}, 0')
    k(f's_cbranch_scc1 {LO}')
    k(f'ds_write_b128 v{T}, {v(FA,4)}')
    k(f'ds_write_b128 v{T}, {v(FA+4,4)} offset:1024')
    k('s_waitcnt lgkmcnt(0)')
    k('s_barrier')
    k(f'ds_read_b128 {v(R,4)}, v{T} offset:2048')
    k(f'ds_read_b128 {v(R+4,4)}, v{T} offset:3072')
    for i in range(8):
        k(f'v_mov_b32 v{R+8+i}, v{FA+8+i}')
    k(f's_branch {J}')
    k.label(LO)
    k(f'ds_write_b128 v{T}, {v(FA+8,4)} offset:2048')
    k(f'ds_write_b128 v{T}, {v(FA+12,4)} offset:3072')
    k('s_waitcnt lgkmcnt(0)')
    k('s_barrier')
    k(f'ds_read_b128 {v(R,4)}, v{T}')
    k(f'ds_read_b128 {v(R+4,4)}, v{T} offset:1024')
    for i in range(8):
        k(f'v_mov_b32 v{R+8+i}, v{FA+i}')
    k.label(J)
    for i in range(4):
        k(f'v_lshlrev_b32 v{R+16+2*i}, 16, v{XR+i}')
        k(f'v_and_b32 v{R+17+2*i}, 0xffff0000, v{XR+i}')
    for i in range(8):
        k(f'v_add_f32 v{R+8+i}, v{R+8+i}, v{R+16+i}')
    k('s_waitcnt lgkmcnt(0)')
    for i in range(8):
        k(f'v_add_f32 v{R+8+i}, v{R+8+i}, v{R+i}')
    for i in range(4):
        k(f'v_cvt_pk_bf16_f32 v{R+24+i}, v{R+8+2*i}, v{R+8+2*i+1}')
    k(f'buffer_store_dwordx2 {v(R+24,2)}, v{vXO}, s[{SO}:{SO+3}], s{sXO} offen')
    k(f'buffer_store_dwordx2 {v(R+26,2)}, v{vXO}, s[{SO}:{SO+3}], s{sXO} offen offset:16')
    k.stamp()
    if k.st_en:
        k('s_waitcnt vmcnt(0)')
    k.stamp(); k.stamp(real=True)
    k.stamp_dump(1, sW, vtmp=T+9+2)
    k.label(END)
    k('s_endpgm')
    return k.text(208, 100 if DBG else 64)

K3_LDS = 131072
def gen_k3():
    k = Kern('k3_kernel')
    END = 'k3_end'
    SWS, SX, SO = 4, 8, 12
    sW, sTB, sNBP, sT0, sT1, sTO, sWO, sNB, sTT, sKH, sXO, sL = 16, 17, 18, 19, 20, 21, 23, 30, 31, 32, 33, 34
    vLANE, vO16 = 1, 2
    ACC = 16
    BUF = 32
    PI = 96
    XR = 104
    k('s_cmp_ge_u32 s2, 256')
    k(f's_cbranch_scc1 {END}')
    k.stamp_init('3' in DBG)
    k.stamp(); k.stamp(real=True)
    k('s_load_dwordx2 s[28:29], s[0:1], 72')
    k('s_load_dwordx2 s[24:25], s[0:1], 0')
    k('s_load_dwordx2 s[26:27], s[0:1], 56')
    k('v_lshrrev_b32 v2, 6, v0')
    k(f'v_and_b32 v{vLANE}, 63, v0')
    k(f'v_readfirstlane_b32 s{sW}, v2')
    k(f's_and_b32 s{sTB}, s2, 7')
    k(f's_lshr_b32 s{sT0}, s2, 3')
    k(f's_and_b32 s{sT0}, s{sT0}, 3')
    k(f's_lshl_b32 s{sT0}, s{sT0}, 3')
    k(f's_add_u32 s{sTB}, s{sTB}, s{sT0}')
    k(f's_lshr_b32 s{sNBP}, s2, 5')
    k(f'v_lshlrev_b32 v{vO16}, 4, v{vLANE}')
    k(f's_and_b32 s{sNB}, s{sW}, 1')
    k(f's_bfe_u32 s{sTT}, s{sW}, 0x10001')
    k(f's_lshr_b32 s{sKH}, s{sW}, 2')
    k(f's_and_b32 s{sT0}, s{sW}, 3')
    k(f's_lshl_b32 s{sT0}, s{sT0}, 1')
    k(f's_lshl_b32 s{sT1}, s{sKH}, 4')
    k(f's_add_u32 s{sT0}, s{sT0}, s{sT1}')
    k(f's_mul_i32 s{sTO}, s{sTB}, {2*144}')
    k(f's_add_u32 s{sTO}, s{sTO}, s{sT0}')
    k(f's_lshl_b32 s{sTO}, s{sTO}, 10')
    k(f's_add_u32 s{sTO}, s{sTO}, {WS_TF:#x}')
    k(f's_lshl_b32 s{sWO}, s{sT0}, 4')
    k(f's_lshl_b32 s{sT1}, s{sNBP}, 1')
    k(f's_add_u32 s{sWO}, s{sWO}, s{sT1}')
    k(f's_lshl_b32 s{sWO}, s{sWO}, 10')
    k(f's_add_u32 s{sWO}, s{sWO}, {WS_WF:#x}')
    k(f's_lshl_b32 s{sL}, s{sT0}, 10')
    k('s_waitcnt lgkmcnt(0)')
    k.srd(SWS, 28, 29, WS_SIZE)
    for ph in range(2):
        for dk in range(2):
            ks = ph * 8 + dk
            for tt in range(2):
                k(f's_add_u32 m0, s{sL}, {tt*32768 + ks*1024}')
                k(f's_add_u32 s35, s{sTO}, {tt*144*1024 + ks*1024}')
                k.vmop(f'buffer_load_dwordx4 v{vO16}, s[{SWS}:{SWS+3}], s35 offen lds', ph)
            for nb in range(2):
                k(f's_add_u32 m0, s{sL}, {65536 + nb*32768 + ks*1024}')
                k(f's_add_u32 s35, s{sWO}, {ks*16384 + nb*1024}')
                k.vmop(f'buffer_load_dwordx4 v{vO16}, s[{SWS}:{SWS+3}], s35 offen lds', ph)
    k.srd(SX, 24, 25, 2048 * 1024)
    k.srd(SO, 26, 27, 2048 * 1024)
    k(f's_lshl_b32 s{sT0}, s{sTB}, 3')
    k(f's_add_u32 s{sT0}, s{sT0}, s{sNBP}')
    k(f's_lshl_b32 s{sT0}, s{sT0}, 2')
    k(f's_and_b32 s{sT1}, s{sW}, 3')
    k(f's_add_u32 s{sT0}, s{sT0}, s{sT1}')
    k(f's_lshl_b32 s{sT0}, s{sT0}, 12')
    k(f's_lshl_b32 s{sT1}, s{sKH}, 11')
    k(f's_add_u32 s{sT0}, s{sT0}, s{sT1}')
    k(f's_add_u32 s{sT0}, s{sT0}, {WS_PART:#x}')
    k.vmop(f'buffer_load_dwordx4 {v(PI,4)}, v{vO16}, s[{SWS}:{SWS+3}], s{sT0} offen', 'p')
    k.vmop(f'buffer_load_dwordx4 {v(PI+4,4)}, v{vO16}, s[{SWS}:{SWS+3}], s{sT0} offen offset:1024', 'p')
    k(f'v_and_b32 v3, 31, v{vLANE}')
    k(f'v_lshlrev_b32 v3, 10, v3')
    k(f'v_lshrrev_b32 v4, 5, v{vLANE}')
    k(f'v_lshl_add_u32 v3, v4, 3, v3')
    k(f's_lshl_b32 s{sXO}, s{sTB}, 1')
    k(f's_add_u32 s{sXO}, s{sXO}, s{sTT}')
    k(f's_lshl_b32 s{sXO}, s{sXO}, 15')
    k(f's_lshl_b32 s{sT0}, s{sNBP}, 7')
    k(f's_add_u32 s{sXO}, s{sXO}, s{sT0}')
    k(f's_lshl_b32 s{sT0}, s{sNB}, 6')
    k(f's_add_u32 s{sXO}, s{sXO}, s{sT0}')
    k(f's_lshl_b32 s{sT0}, s{sKH}, 5')
    k(f's_add_u32 s{sXO}, s{sXO}, s{sT0}')
    k.vmop(f'buffer_load_dwordx2 {v(XR,2)}, v3, s[{SX}:{SX+3}], s{sXO} offen', 'x')
    k.vmop(f'buffer_load_dwordx2 {v(XR+2,2)}, v3, s[{SX}:{SX+3}], s{sXO} offen offset:16', 'x')
    k(f's_lshl_b32 s{sT0}, s{sTT}, 15')
    k(f's_lshl_b32 s{sT1}, s{sKH}, 14')
    k(f's_add_u32 s{sT0}, s{sT0}, s{sT1}')
    k(f'v_add_u32 v5, s{sT0}, v{vO16}')
    k(f's_lshl_b32 s{sT0}, s{sNB}, 15')
    k(f's_add_u32 s{sT0}, s{sT0}, s{sT1}')
    k(f's_add_u32 s{sT0}, s{sT0}, 65536')
    k(f'v_add_u32 v6, s{sT0}, v{vO16}')
    for i in range(16):
        k(f'v_mov_b32 v{ACC+i}, 0')
    k.stamp()
    for ph in range(2):
        k.vmwait(ph)
        k('s_barrier')
        if ph == 0: k.stamp()
        for j in range(8):
            ks = ph * 8 + j
            k(f'ds_read_b128 {v(BUF+8*j,4)}, v5 offset:{ks*1024}')
            k(f'ds_read_b128 {v(BUF+8*j+4,4)}, v6 offset:{ks*1024}')
            if j == 6: k('s_waitcnt lgkmcnt(12)') if False else None
        for j in range(8):
            k(f's_waitcnt lgkmcnt({min(15, 14 - 2*j)})')
            k(MFMA(v(ACC,16), v(BUF+8*j+4,4), v(BUF+8*j,4), v(ACC,16)))
    k('s_nop 15')
    k.stamp()
    k('s_barrier')
    k(f's_and_b32 s{sT0}, s{sW}, 3')
    k(f's_lshl_b32 s{sT0}, s{sT0}, 12')
    k(f'v_add_u32 v5, s{sT0}, v{vO16}')
    LO = k.newlabel('lo'); J = k.newlabel('j')
    k(f's_cmp_eq_u32 s{sKH}, 0')
    k(f's_cbranch_scc1 {LO}')
    k(f'ds_write_b128 v5, {v(ACC,4)}')
    k(f'ds_write_b128 v5, {v(ACC+4,4)} offset:1024')
    k('s_waitcnt lgkmcnt(0)')
    k('s_barrier')
    k(f'ds_read_b128 {v(BUF,4)}, v5 offset:2048')
    k(f'ds_read_b128 {v(BUF+4,4)}, v5 offset:3072')
    for i in range(8):
        k(f'v_mov_b32 v{BUF+8+i}, v{ACC+8+i}')
    k(f's_branch {J}')
    k.label(LO)
    k(f'ds_write_b128 v5, {v(ACC+8,4)} offset:2048')
    k(f'ds_write_b128 v5, {v(ACC+12,4)} offset:3072')
    k('s_waitcnt lgkmcnt(0)')
    k('s_barrier')
    k(f'ds_read_b128 {v(BUF,4)}, v5')
    k(f'ds_read_b128 {v(BUF+4,4)}, v5 offset:1024')
    for i in range(8):
        k(f'v_mov_b32 v{BUF+8+i}, v{ACC+i}')
    k.label(J)
    k('s_waitcnt vmcnt(0)')
    for i in range(4):
        k(f'v_lshlrev_b32 v{BUF+16+2*i}, 16, v{XR+i}')
        k(f'v_and_b32 v{BUF+17+2*i}, 0xffff0000, v{XR+i}')
    for i in range(8):
        k(f'v_add_f32 v{PI+i}, v{PI+i}, v{BUF+16+i}')
        k(f'v_add_f32 v{PI+i}, v{PI+i}, v{BUF+8+i}')
    k('s_waitcnt lgkmcnt(0)')
    for i in range(8):
        k(f'v_add_f32 v{PI+i}, v{PI+i}, v{BUF+i}')
    for i in range(4):
        k(f'v_cvt_pk_bf16_f32 v{BUF+24+i}, v{PI+2*i}, v{PI+2*i+1}')
    k(f'buffer_store_dwordx2 {v(BUF+24,2)}, v3, s[{SO}:{SO+3}], s{sXO} offen')
    k(f'buffer_store_dwordx2 {v(BUF+26,2)}, v3, s[{SO}:{SO+3}], s{sXO} offen offset:16')
    k.stamp()
    if k.st_en:
        k('s_waitcnt vmcnt(0)')
    k.stamp(); k.stamp(real=True)
    k.stamp_dump(2, sW, vtmp=3)
    k.label(END)
    k('s_endpgm')
    return k.text(112, 100 if DBG else 40)

HEADER = open('parallel_sum__mha_block__dense_activation_mish__prompt.s.ref').read().split('; Override launch')[0]

def main(out):
    t1, d1 = gen_k1()
    t2, d2 = gen_k2()
    s = HEADER
    s += f'; @launch kernel=k1_kernel grid=(256,1,1) block=(768,1,1) lds={K1_LDS}\n'
    s += f'; @launch kernel=k2_kernel grid=(256,1,1) block=(512,1,1) lds={K2_LDS}\n'
    s += '.amdgcn_target "amdgcn-amd-amdhsa--gfx950"\n'
    s += t1 + t2 + d1 + d2
    open(out, 'w').write(s)

if __name__ == '__main__':
    main(sys.argv[1] if len(sys.argv) > 1 else 'parallel_sum__mha_block__dense_activation_mish__prompt.s')
```

```python
import math, sys, os
DBG = os.environ.get('DBG', '')
EXP = os.environ.get('EXP', '').split(',')
ST1 = os.environ.get('ST1', 'sc0 sc1')
ST2 = os.environ.get('ST2', '')
POLLF = os.environ.get('POLLF', 'sc1')
OLF = os.environ.get('OLF', 'sc1')
OSF = os.environ.get('OSF', 'sc0 sc1')
ODMA = os.environ.get('ODMA', '')
SLP = int(os.environ.get('SLP', '4'))
from asmlib import *

LOG2E = 1.4426950408889634
LN2 = 0.6931471805599453
QSCALE = 0.25 * LOG2E

WS_QKV = 0
WS_TF = 0x600000
WS_WF = 0xF00000
WS_PART = 0x1200000
WS_CNT = 0x1180000
WS_SIZE = 0x10000000

def MFMA(d, A, B, C):
    return f'v_mfma_f32_32x32x16_bf16 {d}, {A}, {B}, {C}'

XSL, NXS = 16384, 3
WSL, NWS = 16384, 6
WRB = XSL * NXS
MISC = WRB + WSL * NWS
L_SW = MISC
L_RSUM = MISC + 1024
L_BIAS = MISC + 2048
L_PRIV = MISC + 2560
K1_LDS = MISC + 2560 + 1024

def gen_k1():
    k = Kern('k1_kernel')
    def BAR():
        if 'nobar' not in EXP: k('s_barrier')
    END = 'k1_end'
    SX, SW_, SWS, SSZ, SB, SWQ = 4, 8, 12, 16, 20, 64
    sW, sRB, sCH, sRBK, sCG = 24, 25, 26, 27, 28
    sC, sXD, sWD, sXO, sFO, sQO, sT0, sT1, sT2 = 29, 30, 31, 32, 33, 34, 53, 54, 55
    sXR, sWR = 56, 63
    sFB, sQB, sTA = 57, 58, 59
    sZD = [60, 61, 62]
    sTB, sSA, sSB, sIDX, sNF, sD1, sD2 = 42, 43, 52, 68, 69, 70, 71
    vTID, vLANE, vH, vN = 0, 1, 8, 9
    k(f's_cmp_ge_u32 s2, 256')
    k(f's_cbranch_scc1 {END}')
    k.stamp_init('1' in DBG, sbase=74)
    k.stamp(); k.stamp(real=True)
    k('s_load_dwordx4 s[36:39], s[0:1], 0')
    k('s_load_dwordx4 s[44:47], s[0:1], 32')
    k('s_load_dwordx2 s[40:41], s[0:1], 16')
    k('s_load_dwordx2 s[48:49], s[0:1], 48')
    k('s_load_dwordx2 s[50:51], s[0:1], 72')
    k(f'v_lshrrev_b32 v2, 6, v0')
    k(f'v_and_b32 v{vLANE}, 63, v0')
    k(f'v_readfirstlane_b32 s{sW}, v2')
    k(f'v_lshrrev_b32 v{vH}, 5, v{vLANE}')
    k(f'v_and_b32 v{vN}, 31, v{vLANE}')
    k(f's_and_b32 s{sT0}, s2, 7')
    k(f's_lshr_b32 s{sT1}, s2, 3')
    k(f's_and_b32 s{sRBK}, s{sT0}, 1')
    k(f's_lshl_b32 s{sRBK}, s{sRBK}, 3')
    k(f's_and_b32 s{sT2}, s{sT1}, 7')
    k(f's_add_u32 s{sRBK}, s{sRBK}, s{sT2}')
    k(f's_lshr_b32 s{sCG}, s{sT0}, 1')
    k(f's_mul_i32 s{sFB}, s{sCG}, 14')
    k(f's_lshl_b32 s{sCG}, s{sCG}, 2')
    k(f's_lshr_b32 s{sT2}, s{sT1}, 3')
    k(f's_add_u32 s{sCG}, s{sCG}, s{sT2}')
    k(f's_lshl_b32 s{sT0}, s{sT2}, 2')
    k(f's_add_u32 s{sFB}, s{sFB}, s{sT0}')
    k(f's_cmp_eq_u32 s{sT2}, 3')
    k(f's_cselect_b32 s{sNF}, 2, 4')
    k(f's_and_b32 s{sRB}, s{sW}, 3')
    k(f's_lshr_b32 s{sCH}, s{sW}, 2')
    k(f's_mul_i32 s{sQB}, s{sCG}, 3')
    PROD = k.newlabel('prod'); ROLE1 = k.newlabel('role1')
    k(f's_cmp_eq_u32 s{sCH}, 2')
    k(f's_cbranch_scc1 {PROD}')
    k(f'v_bfe_u32 v2, v{vN}, 1, 3')
    k(f'v_xor_b32 v2, v2, v{vH}')
    k(f'v_lshlrev_b32 v2, 4, v2')
    k(f'v_lshl_add_u32 v4, v{vN}, 7, v2')
    k(f'v_bfe_u32 v6, v{vLANE}, 2, 2')
    k(f'v_lshl_add_u32 v5, v{vH}, 3, v6')
    k(f'v_lshlrev_b32 v5, 8, v5')
    k(f'v_bfe_u32 v7, v{vLANE}, 4, 1')
    k(f'v_lshl_add_u32 v5, v7, 5, v5')
    k(f'v_and_b32 v7, 3, v{vLANE}')
    k(f'v_lshl_add_u32 v5, v7, 3, v5')
    k(f'v_add_u32 v5, {WRB}, v5')
    SEL, CS, ACC = 24, 28, 32
    vX, vW = 10, 18
    XA, XB = [96, 100], [104, 108]
    WSET = [112, 124]
    CW = 136
    k(f'v_mov_b32 v2, 0')
    k(f'v_mov_b32 v3, 0x3f803f80')
    k(f'v_cmp_eq_u32 vcc, 0, v{vN}')
    k(f'v_cmp_eq_u32 s[72:73], 17, v{vN}')
    k('s_nop 1')
    k('s_or_b64 vcc, vcc, s[72:73]')
    k('s_nop 1')
    k(f'v_cndmask_b32 v{SEL}, v2, v3, vcc')
    for i in range(1, 4):
        k(f'v_mov_b32 v{SEL+i}, v{SEL}')
    k(f's_mov_b32 s{sXR}, 0')
    k(f's_mov_b32 s{sWR}, 0')
    k(f's_lshl_b32 s{sIDX}, s{sRB}, 2')
    k('s_waitcnt lgkmcnt(0)')
    k.srd(SWS, 50, 51, WS_SIZE)
    k(f's_cmp_eq_u32 s{sCH}, 1')
    k(f's_cbranch_scc1 {ROLE1}')

    def role(rid, types):
        WB_ = 0 if rid == 0 else 8192
        rot = (rid == 1 and len(set(types)) == 1)
        if rid == 0:
            k.srd(SB, 46, 47, 1792 * 2)
            k(f's_lshl_b32 s{sT0}, s{sFB}, 6')
            k(f'v_lshlrev_b32 v2, 1, v{vTID}')
            k(f'buffer_load_ushort v21, v2, s[{SB}:{SB+3}], s{sT0} offen')
            k(f's_lshr_b32 s{sT0}, s{sW}, 1')
            k(f's_and_b32 s{sT1}, s{sW}, 1')
            k(f's_lshl_b32 s{sTA}, s{sT0}, 1')
            k(f's_or_b32 s{sTA}, s{sTA}, s{sT1}')
            k(f's_xor_b32 s{sTB}, s{sTA}, 1')
            k(f's_lshl_b32 s{sSA}, s{sT1}, 1')
            k(f's_or_b32 s{sSA}, s{sSA}, s{sT0}')
            k(f's_xor_b32 s{sSB}, s{sSA}, 1')
            nx, nwf = 2, 2
            for i, st_ in enumerate((sTA, sTB)):
                k(f's_lshl_b32 s{sT0}, s{st_}, 12')
                k(f'v_add_u32 v{vX+4*i}, s{sT0}, v4')
                for kk in range(1, 4):
                    k(f'v_xor_b32 v{vX+4*i+kk}, {kk*32}, v{vX+4*i}')
            for j, ss in enumerate((sSA, sSB)):
                k(f'v_xor_b32 v7, s{ss}, v6')
                k(f'v_lshl_add_u32 v{vW+j}, v7, 6, v5')
            tiles = [(0, 0), (0, 1), (1, 0), (1, 1)]
        else:
            k(f's_mov_b32 s{sTA}, s{sRB}')
            nx, nwf = 1, 3
            k(f's_lshl_b32 s{sT0}, s{sRB}, 12')
            k(f'v_add_u32 v{vX}, s{sT0}, v4')
            for kk in range(1, 4):
                k(f'v_xor_b32 v{vX+kk}, {kk*32}, v{vX}')
            SL = [sSA, sSB, sTB]
            for j in range(3):
                if rot:
                    k(f's_add_u32 s{SL[j]}, s{sRB}, {j}')
                    k(f's_cmp_ge_u32 s{SL[j]}, 3')
                    k(f's_cselect_b32 s{sT0}, 3, 0')
                    k(f's_sub_u32 s{SL[j]}, s{SL[j]}, s{sT0}')
                    k(f's_cmp_ge_u32 s{SL[j]}, 3')
                    k(f's_cselect_b32 s{sT0}, 3, 0')
                    k(f's_sub_u32 s{SL[j]}, s{SL[j]}, s{sT0}')
                else:
                    k(f's_mov_b32 s{SL[j]}, {j}')
                k(f'v_xor_b32 v7, s{SL[j]}, v6')
                k(f'v_lshl_add_u32 v{vW+j}, v7, 6, v5')
            tiles = [(0, 0), (0, 1), (0, 2)]
        nt = len(tiles)
        XR = [XA, XB]
        for i in range(16 * nt):
            k(f'v_mov_b32 v{ACC+i}, 0')
        for i in range(4):
            k(f'v_mov_b32 v{CS+i}, 0')
        def rd_list(kk, ks, st):
            off = WB_ + ks * 4096
            def xr(i): return [f'ds_read_b128 {v(XR[i][st],4)}, v{vX+4*i+kk}']
            def wr(j): return [f'ds_read_b64_tr_b16 {v(WSET[st]+4*j,2)}, v{vW+j} offset:{off}',
                               f'ds_read_b64_tr_b16 {v(WSET[st]+4*j+2,2)}, v{vW+j} offset:{off+1024}']
            if rid == 0: return xr(0) + wr(0) + wr(1) + xr(1)
            return xr(0) + wr(0) + wr(1) + wr(2)
        need = [3, 5, 6, 6] if rid == 0 else [3, 5, 7]
        NOLD = 6 if rid == 0 else 7
        def advW():
            L = [f's_add_u32 s{sWR}, s{sWR}, {WSL}', f's_cmp_eq_u32 s{sWR}, {NWS*WSL}',
                 f's_mov_b32 s{sT2}, {WSL}', f's_cselect_b32 s{sT2}, {(WSL - NWS*WSL) & 0xffffffff:#x}, s{sT2}', f's_cselect_b32 s{sWR}, 0, s{sWR}']
            for j in range(nwf):
                L.append(f'v_add_u32 v{vW+j}, s{sT2}, v{vW+j}')
            return L
        def advX():
            L = [f's_add_u32 s{sXR}, s{sXR}, {XSL}', f's_cmp_eq_u32 s{sXR}, {NXS*XSL}',
                 f's_mov_b32 s{sT1}, {XSL}', f's_cselect_b32 s{sT1}, {(XSL - NXS*XSL) & 0xffffffff:#x}, s{sT1}', f's_cselect_b32 s{sXR}, 0, s{sXR}']
            for i in range(4 * nx):
                L.append(f'v_add_u32 v{vX+i}, s{sT1}, v{vX+i}')
            return L
        def kstep(st, nxt_reads, pre=(), post=()):
            if 'nocomp' in EXP:
                for s_ in post: k(s_)
                return
            rl = list(nxt_reads)
            if 'nolds1' in EXP: rl = []
            pre = list(pre)
            per = (len(rl) + nt - 1) // nt
            pper = (len(pre) + nt - 2) // (nt - 1) if pre else 0
            new = 0
            for t, (xi, wj) in enumerate(tiles):
                X = v(XR[xi][st], 4); W = v(WSET[st] + 4 * wj, 4); A = v(ACC + 16 * t, 16)
                k(f's_waitcnt lgkmcnt({NOLD - need[t] + new})')
                ty = 'T' if rid == 0 else types[t]
                if ty == 'N': k(MFMA(A, X, W, A))
                else: k(MFMA(A, W, X, A))
                if t == 0:
                    for s_ in pre: k(s_)
                for _ in range(per):
                    if rl:
                        k(rl.pop(0)); new += 1
                if 'nodot' not in EXP and 'noh' not in EXP:
                    if t == 1 and (rid == 0 or rot):
                        k(f'v_mfma_f32_16x16x32_bf16 {v(CS,4)}, {v(SEL,4)}, {v(WSET[st],4)}, {v(CS,4)}')
                    if rid == 1 and not rot and t == 2:
                        k(f's_set_gpr_idx_on s{sIDX}, gpr_idx(SRC0)')
                        k('s_nop 0')
                        for r in range(4):
                            k(f'v_mov_b32 v{CW+r}, v{WSET[st]+r}')
                        k('s_set_gpr_idx_off')
                        k('s_nop 1')
                        k(f'v_mfma_f32_16x16x32_bf16 {v(CS,4)}, {v(SEL,4)}, {v(CW,4)}, {v(CS,4)}')
            for s_ in post: k(s_)
            assert not rl
        def iteration(par, post=()):
            BAR()
            kstep(0, rd_list(2 * par + 1, 1, 1))
            pre = advW() + (advX() if par == 1 else [])
            kstep(1, rd_list((2 * par + 2) % 4, 0, 0), pre=pre, post=post)
        k.stamp()
        BAR()
        k.stamp()
        for t in rd_list(0, 0, 0): k(t)
        LOOP = k.newlabel('loop')
        k(f's_mov_b32 s{sC}, 0')
        k.label(LOOP)
        iteration(0)
        iteration(1, post=[f's_add_u32 s{sC}, s{sC}, 1', f's_cmp_lt_u32 s{sC}, 8'])
        k(f's_cbranch_scc1 {LOOP}')
        k('s_nop 7')
        k.stamp()
        NS = k.newlabel('nosw')
        if rid == 0:
            k(f's_lshl_b32 s{sT0}, s{sSA}, 7')
            k(f's_add_u32 s{sT0}, s{sT0}, {L_SW}')
        elif rot:
            k(f's_lshl_b32 s{sT0}, s{sSA}, 7')
            k(f's_add_u32 s{sT0}, s{sT0}, {L_SW + 512}')
        else:
            k(f's_cmp_eq_u32 s{sRB}, 3')
            k(f's_cbranch_scc1 {NS}')
            k(f's_lshl_b32 s{sT0}, s{sRB}, 7')
            k(f's_add_u32 s{sT0}, s{sT0}, {L_SW + 512}')
        k(f'v_lshlrev_b32 v3, 2, v{vLANE}')
        k(f'v_add_u32 v3, s{sT0}, v3')
        k('s_mov_b64 exec, 0xffff')
        k(f'ds_write_b32 v3, v{CS}')
        k(f'ds_write_b32 v3, v{CS+1} offset:64')
        k('s_mov_b64 exec, -1')
        k.label(NS)
        if rid == 0:
            NB = k.newlabel('nobias')
            k(f's_cmp_ge_u32 s{sW}, 2')
            k(f's_cbranch_scc1 {NB}')
            k('s_waitcnt vmcnt(0)')
            k(f'v_lshlrev_b32 v3, 16, v21')
            k(f'v_mul_f32 v3, {fhex(LOG2E)}, v3')
            k(f'v_lshlrev_b32 v4, 2, v{vTID}')
            k(f'v_add_u32 v4, {L_BIAS}, v4')
            k(f'ds_write_b32 v4, v3')
            k.label(NB)
        k('s_waitcnt lgkmcnt(0)')
        BAR()
        k.stamp()
        def tokstats_issue(stile, r0):
            k(f's_lshl_b32 s{sT0}, s{stile}, 7')
            k(f'v_lshlrev_b32 v4, 2, v{vN}')
            k(f'v_add_u32 v4, s{sT0}, v4')
            k(f'v_add_u32 v4, {L_RSUM}, v4')
            k(f'ds_read_b32 v{r0}, v4')
            k(f'ds_read_b32 v{r0+1}, v4 offset:512')
        k(f'v_lshlrev_b32 v5, 4, v{vH}')
        k(f'v_add_u32 v5, {L_SW}, v5')
        k(f'v_lshlrev_b32 v6, 4, v{vLANE}')
        k(f's_lshl_b32 s{sC}, s{sRBK}, 2')
        if rid == 0:
            tokstats_issue(sTA, 10); tokstats_issue(sTB, 12)
            RL, RML = [14, 16], [18, 20]
            TWO, C2, LN2P = 22, 144, 146
            k(f'v_mov_b32 v{TWO}, 2.0'); k(f'v_mov_b32 v{TWO+1}, 2.0')
            k(f'v_mov_b32 v{C2}, {fhex(-2*LN2)}'); k(f'v_mov_b32 v{C2+1}, {fhex(-2*LN2)}')
            k(f'v_mov_b32 v{LN2P}, {fhex(LN2)}'); k(f'v_mov_b32 v{LN2P+1}, {fhex(LN2)}')
            k('s_waitcnt lgkmcnt(0)')
            for xi in range(2):
                for d in range(2):
                    k(f'v_mul_f32 v{RL[xi]+d}, {fhex(LOG2E)}, v{10+2*xi}')
                    k(f'v_mul_f32 v{RML[xi]+d}, {fhex(LOG2E)}, v{11+2*xi}')
            SWV, CLV, XL, E, U, TT = 96, 112, 128, 96, 112, 148
            for wj, ss in enumerate((sSA, sSB)):
                SKS = k.newlabel('noslot')
                k(f's_cmp_ge_u32 s{ss}, s{sNF}')
                k(f's_cbranch_scc1 {SKS}')
                k(f's_lshl_b32 s{sT0}, s{ss}, 7')
                k(f'v_add_u32 v7, s{sT0}, v5')
                for xi, stile in enumerate((sTA, sTB)):
                    A = ACC + 16 * tiles.index((xi, wj))
                    for g_ in range(4):
                        k(f'ds_read_b128 {v(SWV+4*g_,4)}, v7 offset:{g_*32}')
                        k(f'ds_read_b128 {v(CLV+4*g_,4)}, v7 offset:{L_BIAS - L_SW + g_*32}')
                    k(f's_add_u32 s{sT0}, s{sC}, s{stile}')
                    k(f's_mul_i32 s{sT0}, s{sT0}, 144')
                    k(f's_add_u32 s{sT1}, s{sFB}, s{ss}')
                    k(f's_lshl_b32 s{sT1}, s{sT1}, 1')
                    k(f's_add_u32 s{sT0}, s{sT0}, s{sT1}')
                    k(f's_add_u32 s{sT0}, s{sT0}, 32')
                    k(f's_lshl_b32 s{sT0}, s{sT0}, 10')
                    k(f's_add_u32 s{sT0}, s{sT0}, {WS_TF:#x}')
                    k('s_waitcnt lgkmcnt(0)')
                    P2 = lambda r: v(r, 2)
                    for i in range(0, 16, 2):
                        k(f'v_pk_fma_f32 {P2(CLV+i)}, {P2(RML[xi])}, {P2(SWV+i)}, {P2(CLV+i)} neg_lo:[1,0,0] neg_hi:[1,0,0]')
                    for i in range(0, 16, 2):
                        k(f'v_pk_fma_f32 {P2(XL+i)}, {P2(A+i)}, {P2(RL[xi])}, {P2(CLV+i)}')
                    for i in range(16):
                        k(f'v_exp_f32 v{E+i}, v{XL+i}')
                    for i in range(0, 16, 2):
                        k(f'v_pk_add_f32 {P2(U+i)}, {P2(E+i)}, {P2(TWO)}')
                    for i in range(0, 16, 2):
                        k(f'v_pk_fma_f32 {P2(E+i)}, {P2(E+i)}, {P2(U+i)}, {P2(TWO)}')
                    for i in range(16):
                        k(f'v_rcp_f32 v{E+i}, v{E+i}')
                    for i in range(0, 16, 2):
                        k(f'v_pk_fma_f32 {P2(E+i)}, {P2(E+i)}, {P2(C2)}, {P2(LN2P)}')
                    for i in range(0, 16, 2):
                        k(f'v_pk_mul_f32 {P2(XL+i)}, {P2(XL+i)}, {P2(E+i)}')
                    for i in range(8):
                        k(f'v_cvt_pk_bf16_f32 v{TT+i}, v{XL+2*i}, v{XL+2*i+1}')
                    k(f'buffer_store_dwordx4 {v(TT,4)}, v6, s[{SWS}:{SWS+3}], s{sT0} offen {ST1}')
                    k(f'buffer_store_dwordx4 {v(TT+4,4)}, v6, s[{SWS}:{SWS+3}], s{sT0} offen offset:1024 {ST1}')
                k.label(SKS)
        else:
            vR, vRM = 10, 11
            tokstats_issue(sTA, 10)
            if 'N' in types:
                k(f's_lshl_b32 s{sT0}, s{sTA}, 7')
                k(f'v_lshlrev_b32 v7, 4, v{vH}')
                k(f'v_add_u32 v7, s{sT0}, v7')
                k(f'v_add_u32 v7, {L_RSUM}, v7')
                for g_ in range(4):
                    k(f'ds_read_b128 {v(120+4*g_,4)}, v7 offset:{g_*32}')
                    k(f'ds_read_b128 {v(136+4*g_,4)}, v7 offset:{g_*32 + 512}')
                k(f'v_lshrrev_b32 v12, 4, v{vN}')
                k(f'v_lshlrev_b32 v12, 16, v12')
                k(f'v_lshl_add_u32 v12, v{vH}, 8, v12')
                k(f'v_and_b32 v13, 15, v{vN}')
                k(f'v_lshl_add_u32 v12, v13, 4, v12')
            k('s_waitcnt lgkmcnt(0)')
            k(f's_add_u32 s{sD1}, s{sC}, s{sTA}')
            SL = [sSA, sSB, sTB]
            for j in range(3):
                A = ACC + 16 * j
                SWR, T = 96, 112
                k(f's_add_u32 s{sT1}, s{sQB}, s{SL[j]}')
                k(f's_lshl_b32 s{sT0}, s{sT1}, 17')
                k(f's_lshl_b32 s{sT2}, s{sD1}, 10')
                k(f's_add_u32 s{sT0}, s{sT0}, s{sT2}')
                k(f's_lshl_b32 s{sD2}, s{SL[j]}, 7')
                if types[j] == 'T':
                    k(f'v_add_u32 v7, s{sD2}, v5')
                    for g_ in range(4):
                        k(f'ds_read_b128 {v(SWR+4*g_,4)}, v7 offset:{512 + g_*32}')
                    k(f's_cmp_lt_u32 s{sT1}, 16')
                    k(f's_cselect_b32 s{sD2}, {fhex(QSCALE)}, 1.0')
                    k(f'v_mul_f32 v14, s{sD2}, v{vR}')
                    k(f'v_mul_f32 v15, s{sD2}, v{vRM}')
                    k('s_waitcnt lgkmcnt(0)')
                    for i in range(16):
                        k(f'v_mul_f32 v{SWR+i}, v15, v{SWR+i}')
                    for i in range(16):
                        k(f'v_fma_f32 v{A+i}, v{A+i}, v14, -v{SWR+i}')
                    for i in range(8):
                        k(f'v_cvt_pk_bf16_f32 v{T+i}, v{A+2*i}, v{A+2*i+1}')
                    k(f's_add_u32 s{sT2}, s{sT0}, 0x10000')
                    k(f'buffer_store_dwordx4 {v(T,4)}, v6, s[{SWS}:{SWS+3}], s{sT0} offen {ST1}')
                    k(f'buffer_store_dwordx4 {v(T+4,4)}, v6, s[{SWS}:{SWS+3}], s{sT2} offen {ST1}')
                    k('s_nop 1')
                else:
                    k(f'v_lshlrev_b32 v13, 2, v{vN}')
                    k(f'v_add_u32 v13, s{sD2}, v13')
                    k(f'v_add_u32 v13, {L_SW + 512}, v13')
                    k(f'ds_read_b32 v14, v13')
                    k('s_waitcnt lgkmcnt(0)')
                    for i in range(16):
                        k(f'v_mul_f32 v{SWR+i}, v14, v{136+i}')
                    for i in range(16):
                        k(f'v_fma_f32 v{A+i}, v{A+i}, v{120+i}, -v{SWR+i}')
                    for i in range(8):
                        k(f'v_cvt_pk_bf16_f32 v{T+i}, v{A+2*i}, v{A+2*i+1}')
                    k(f'buffer_store_dwordx4 {v(T,4)}, v12, s[{SWS}:{SWS+3}], s{sT0} offen {ST1}')
                    k(f'buffer_store_dwordx4 {v(T+4,4)}, v12, s[{SWS}:{SWS+3}], s{sT0} offen offset:512 {ST1}')
                    k('s_nop 1')
        k.stamp()
        if k.st_en:
            k('s_waitcnt vmcnt(0)')
        k.stamp(); k.stamp(real=True)
        k.stamp_dump(0, sW, vtmp=3)
        k('s_endpgm')

    n0 = k.st_n
    role(0, None)
    k.label(ROLE1)
    V1 = k.newlabel('ttn'); V2 = k.newlabel('nnn')
    k(f's_cmp_eq_u32 s{sCG}, 10')
    k(f's_cbranch_scc1 {V1}')
    k(f's_cmp_gt_u32 s{sCG}, 10')
    k(f's_cbranch_scc1 {V2}')
    k.st_n = n0
    role(1, ['T', 'T', 'T'])
    k.label(V1)
    k.st_n = n0
    role(1, ['T', 'T', 'N'])
    k.label(V2)
    k.st_n = n0
    role(1, ['N', 'N', 'N'])

    k.label(PROD)
    k.st_n = n0
    if os.environ.get('PPRIO'): k(f's_setprio {os.environ["PPRIO"]}')
    vOX0, vOX1, vOF, vOQ = 10, 11, 12, 13
    vXs = 14
    XF = [20, 24]
    TMP = 28
    RS = 36
    SWZ = [40, 48, 56]
    vZ1, vZ2 = 64, 65
    k(f'v_lshrrev_b32 v2, 3, v{vLANE}')
    k(f'v_and_b32 v3, 7, v{vLANE}')
    k(f'v_lshrrev_b32 v4, 4, v{vLANE}')
    k(f'v_xor_b32 v5, v3, v4')
    k(f'v_lshlrev_b32 v5, 4, v5')
    k(f'v_lshl_add_u32 v{vOX0}, v2, 10, v5')
    k(f'v_xor_b32 v{vOX1}, 64, v{vOX0}')
    k(f'v_add_u32 v{vOX1}, 0x2000, v{vOX1}')
    k(f'v_and_b32 v3, 3, v{vLANE}')
    k(f'v_bfe_u32 v5, v{vLANE}, 2, 2')
    k(f'v_xor_b32 v5, v5, v4')
    k(f'v_lshlrev_b32 v6, 4, v3')
    k(f'v_lshl_add_u32 v6, v5, 6, v6')
    k(f'v_mul_u32_u24 v7, 3584, v4')
    k(f'v_add_u32 v{vOF}, v7, v6')
    k(f'v_mul_u32_u24 v7, 3072, v4')
    k(f'v_add_u32 v{vOQ}, v7, v6')
    k(f'v_mov_b32 v7, 0x7f000000')
    k(f'v_cmp_eq_u32 vcc, 3, v5')
    k(f'v_cmp_le_u32 s[72:73], s{sNF}, v5')
    k('s_nop 1')
    k(f'v_cndmask_b32 v{vOQ}, v{vOQ}, v7, vcc')
    k(f'v_cndmask_b32 v{vOF}, v{vOF}, v7, s[72:73]')
    k(f's_lshl_b32 s{sXO}, s{sRBK}, 17')
    k(f's_lshl_b32 s{sT0}, s{sRB}, 15')
    k(f's_add_u32 s{sXO}, s{sXO}, s{sT0}')
    k(f's_mul_i32 s{sFO}, s{sRB}, {8*3584}')
    k(f's_lshl_b32 s{sT0}, s{sFB}, 6')
    k(f's_add_u32 s{sFO}, s{sFO}, s{sT0}')
    k(f's_mul_i32 s{sQO}, s{sRB}, {8*3072}')
    k(f's_lshl_b32 s{sT0}, s{sQB}, 6')
    k(f's_add_u32 s{sQO}, s{sQO}, s{sT0}')
    k(f's_lshl_b32 s{sXD}, s{sRB}, 12')
    k(f's_lshl_b32 s{sWD}, s{sRB}, 11')
    k(f's_add_u32 s{sWD}, s{sWD}, {WRB}')
    k('s_waitcnt lgkmcnt(0)')
    k.srd(SX, 36, 37, 2048 * 512 * 2)
    k.srd(SW_, 44, 45, 512 * 3584)
    k.srd(SWQ, 38, 39, 512 * 3072)
    def dmaX_groups(tag):
        return [[f's_mov_b32 m0, s{sXD}', f's_add_u32 s{sT0}, s{sXO}, 16384', (f'buffer_load_dwordx4 v{vOX0}, s[{SX}:{SX+3}], s{sXO} offen lds', tag)],
                [f's_add_u32 m0, s{sXD}, 1024', 's_nop 0', (f'buffer_load_dwordx4 v{vOX1}, s[{SX}:{SX+3}], s{sXO} offen lds', tag)],
                [f's_add_u32 m0, s{sXD}, 2048', f's_add_u32 s{sXO}, s{sXO}, 128', (f'buffer_load_dwordx4 v{vOX0}, s[{SX}:{SX+3}], s{sT0} offen lds', tag)],
                [f's_add_u32 m0, s{sXD}, 3072', f's_add_u32 s{sXD}, s{sXD}, {XSL}', (f'buffer_load_dwordx4 v{vOX1}, s[{SX}:{SX+3}], s{sT0} offen lds', tag),
                 f's_cmp_ge_u32 s{sXD}, {NXS*XSL}', f's_cselect_b32 s{sT0}, {NXS*XSL}, 0', f's_sub_u32 s{sXD}, s{sXD}, s{sT0}']]
    def dmaW_groups(tag):
        return [[f's_mov_b32 m0, s{sWD}', f's_add_u32 s{sT2}, s{sFO}, {4*3584}', (f'buffer_load_dwordx4 v{vOF}, s[{SW_}:{SW_+3}], s{sFO} offen lds', tag)],
                [f's_add_u32 m0, s{sWD}, 1024', f's_add_u32 s{sFO}, s{sFO}, {32*3584}', (f'buffer_load_dwordx4 v{vOF}, s[{SW_}:{SW_+3}], s{sT2} offen lds', tag)],
                [f's_add_u32 m0, s{sWD}, 8192', f's_add_u32 s{sT2}, s{sQO}, {4*3072}', (f'buffer_load_dwordx4 v{vOQ}, s[{SWQ}:{SWQ+3}], s{sQO} offen lds', tag)],
                [f's_add_u32 m0, s{sWD}, 9216', f's_add_u32 s{sQO}, s{sQO}, {32*3072}', (f'buffer_load_dwordx4 v{vOQ}, s[{SWQ}:{SWQ+3}], s{sT2} offen lds', tag),
                 f's_add_u32 s{sWD}, s{sWD}, {WSL}', f's_cmp_ge_u32 s{sWD}, {WRB + NWS*WSL}', f's_cselect_b32 s{sT2}, {NWS*WSL}, 0', f's_sub_u32 s{sWD}, s{sWD}, s{sT2}']]
    def emit_group(gr):
        for t in gr:
            if isinstance(t, tuple): k.vmop(t[0], t[1])
            else: k(t)
    def dmaX(tag):
        for gr in dmaX_groups(tag): emit_group(gr)
    def dmaW(tag):
        for gr in dmaW_groups(tag): emit_group(gr)
    k.vm = []
    dmaX(('X', 0)); dmaW(('W', 0)); dmaW(('W', 1))
    k.stamp()
    dmaX(('X', 1)); dmaW(('W', 2))
    k(f'v_bfe_u32 v2, v{vN}, 1, 3')
    k(f'v_xor_b32 v2, v2, v{vH}')
    k(f'v_lshlrev_b32 v2, 4, v2')
    k(f'v_lshl_add_u32 v4, v{vN}, 7, v2')
    k(f's_lshl_b32 s{sT0}, s{sRB}, 12')
    k(f'v_add_u32 v{vXs}, s{sT0}, v4')
    for kk in range(1, 4):
        k(f'v_xor_b32 v{vXs+kk}, {kk*32}, v{vXs}')
    for i in range(4):
        k(f'v_mov_b32 v{RS+i}, 0')
    k(f's_mov_b32 s{sXR}, 0')
    k.srd(SWS, 50, 51, WS_SIZE)
    XFB = [[20, 24], [72, 76]]
    def stat_reads(par, buf):
        if 'nodot' in EXP or 'nostat' in EXP: return
        k(f'ds_read_b128 {v(XFB[buf][0],4)}, v{vXs+2*par}')
        k(f'ds_read_b128 {v(XFB[buf][1],4)}, v{vXs+2*par+1}')
        if par == 1:
            k(f's_add_u32 s{sXR}, s{sXR}, {XSL}')
            k(f's_cmp_eq_u32 s{sXR}, {NXS*XSL}')
            k(f's_mov_b32 s{sT1}, {XSL}')
            k(f's_cselect_b32 s{sT1}, {(XSL - NXS*XSL) & 0xffffffff:#x}, s{sT1}')
            k(f's_cselect_b32 s{sXR}, 0, s{sXR}')
            for i in range(4):
                k(f'v_add_u32 v{vXs+i}, s{sT1}, v{vXs+i}')
    def stat_ops(buf):
        if 'nodot' in EXP or 'nostat' in EXP: return []
        L = []
        for s_ in range(2):
            for q in range(4):
                x = XFB[buf][s_] + q
                L += [f'v_and_b32 v{TMP+2*q}, 0xffff0000, v{x}', f'v_lshlrev_b32 v{TMP+2*q+1}, 16, v{x}']
            for q in range(4):
                L += [f'v_add_f32 v{RS}, v{RS}, v{TMP+2*q}', f'v_fmac_f32 v{RS+2}, v{TMP+2*q}, v{TMP+2*q}',
                      f'v_add_f32 v{RS+1}, v{RS+1}, v{TMP+2*q+1}', f'v_fmac_f32 v{RS+3}, v{TMP+2*q+1}, v{TMP+2*q+1}']
        return L
    def side_loads():
        k(f'v_lshlrev_b32 v2, 12, v{vH}')
        k(f'v_lshl_add_u32 v{vZ1}, v{vN}, 1, v2')
        k(f'v_add_u32 v{vZ2}, 0x2000, v{vZ1}')
        k(f's_and_b32 s{sT2}, s2, 3')
        k(f's_lshl_b32 s{sT2}, s{sT2}, 2')
        k(f's_add_u32 s{sT2}, s{sT2}, s{sRB}')
        for i in range(3):
            SKI = None
            if i == 2:
                SKI = k.newlabel('noswz3')
                k(f's_cmp_ge_u32 s2, 64')
                k(f's_cbranch_scc1 {SKI}')
            k(f's_lshr_b32 s{sT0}, s2, 2')
            if i: k(f's_add_u32 s{sT0}, s{sT0}, {64*i}')
            if i == 0:
                k(f's_cmp_lt_u32 s{sT0}, 32')
                k(f's_cselect_b32 s{SSZ}, s40, s48')
                k(f's_cselect_b32 s{SSZ+1}, s41, s49')
                k(f's_mov_b32 s{SSZ+2}, {1792*1024:#x}')
                k(f's_cselect_b32 s{SSZ+2}, {512*1024:#x}, s{SSZ+2}')
                k(f's_cselect_b32 s{sT1}, 0, 32')
                k(f's_and_b32 s{SSZ+1}, s{SSZ+1}, 0xffff')
                k(f's_mov_b32 s{SSZ+3}, 0x20000')
                k(f's_sub_u32 s{sT1}, s{sT0}, s{sT1}')
            else:
                if i == 1: k.srd(SSZ, 48, 49, 1792 * 1024)
                k(f's_sub_u32 s{sT1}, s{sT0}, 32')
            k(f's_lshl_b32 s{sT1}, s{sT1}, 14')
            k(f's_lshl_b32 s{sZD[i]}, s{sT2}, 6')
            k(f's_add_u32 s{sT1}, s{sT1}, s{sZD[i]}')
            for j in range(8):
                k(f'buffer_load_ushort v{SWZ[i]+j}, v{vZ1 if j < 4 else vZ2}, s[{SSZ}:{SSZ+3}], s{sT1} offen offset:{(j%4)*1024}')
            k(f's_lshl_b32 s{sZD[i]}, s{sT0}, 4')
            k(f's_add_u32 s{sZD[i]}, s{sZD[i]}, s{sT2}')
            k(f's_lshl_b32 s{sZD[i]}, s{sZD[i]}, 10')
            k(f's_add_u32 s{sZD[i]}, s{sZD[i]}, {WS_WF:#x}')
            if SKI: k.label(SKI)
    def side_stores():
        k(f'v_lshlrev_b32 v2, 4, v{vLANE}')
        for i in range(3):
            SKI = None
            if i == 2:
                SKI = k.newlabel('noswz3s')
                k(f's_cmp_ge_u32 s2, 64')
                k(f's_cbranch_scc1 {SKI}')
            for r in range(4):
                k(f'v_lshl_or_b32 v{68+r}, v{SWZ[i]+2*r+1}, 16, v{SWZ[i]+2*r}')
            k(f'buffer_store_dwordx4 v[68:71], v2, s[{SWS}:{SWS+3}], s{sZD[i]} offen {ST1}')
            k('s_nop 1')
            if SKI: k.label(SKI)
    k.vmwait(('W', 0))
    BAR()
    k.stamp()
    dmaW(('W', 3)); dmaW(('W', 4))
    for c in range(16):
        if c + 1 < 16:
            tw, tx = ('W', c + 1), ('X', (c + 1) // 2)
            iw = max([i for i, t in enumerate(k.vm) if t == tw], default=-1)
            ix = max([i for i, t in enumerate(k.vm) if t == tx], default=-1)
            if max(iw, ix) >= 0:
                k.vmwait(tw if iw > ix else tx)
        BAR()
        stat_reads(c & 1, c & 1)
        groups = []
        if 'nodma' not in EXP:
            if c % 2 == 0 and c // 2 + 2 < 8: groups += dmaX_groups(('X', c // 2 + 2))
            if c + 5 < 16: groups += dmaW_groups(('W', c + 5))
        ops = stat_ops((c - 1) & 1) if c >= 1 else []
        per = (len(ops) + max(len(groups), 1) - 1) // max(len(groups), 1)
        for gr in groups:
            emit_group(gr)
            for _ in range(per):
                if ops: k(ops.pop(0))
        for t in ops: k(t)
        if c == 14:
            side_loads()
        k('s_waitcnt lgkmcnt(0)')
    for t in stat_ops(15 & 1): k(t)
    k.stamp()
    k(f'v_add_f32 v{RS}, v{RS}, v{RS+1}')
    k(f'v_add_f32 v{RS+2}, v{RS+2}, v{RS+3}')
    k(f'v_mov_b32 v{RS+1}, v{RS}')
    k(f'v_mov_b32 v{RS+3}, v{RS+2}')
    k('s_nop 1')
    k(f'v_permlane32_swap_b32 v{RS}, v{RS+1}')
    k(f'v_permlane32_swap_b32 v{RS+2}, v{RS+3}')
    k('s_nop 1')
    k(f'v_add_f32 v5, v{RS}, v{RS+1}')
    k(f'v_add_f32 v6, v{RS+2}, v{RS+3}')
    k(f'v_mul_f32 v5, {fhex(1/512)}, v5')
    k(f'v_mul_f32 v6, {fhex(1/512)}, v6')
    k(f'v_fma_f32 v6, -v5, v5, v6')
    k(f'v_max_f32 v6, 0, v6')
    k(f'v_add_f32 v6, {fhex(1e-5)}, v6')
    k(f'v_rsq_f32 v6, v6')
    k('s_nop 0')
    k(f'v_mul_f32 v5, v5, v6')
    k(f's_lshl_b32 s{sT0}, s{sRB}, 7')
    k(f'v_lshlrev_b32 v2, 2, v{vN}')
    k(f'v_add_u32 v2, s{sT0}, v2')
    k(f'v_add_u32 v2, {L_RSUM}, v2')
    k(f'ds_write_b32 v2, v6')
    k(f'ds_write_b32 v2, v5 offset:512')
    k('s_waitcnt lgkmcnt(0)')
    BAR()
    k.stamp()
    k('s_waitcnt vmcnt(0)')
    side_stores()
    NZ = k.newlabel('nozero')
    k(f's_cmp_ge_u32 s2, 32')
    k(f's_cbranch_scc1 {NZ}')
    k(f's_cmp_lg_u32 s{sRB}, 0')
    k(f's_cbranch_scc1 {NZ}')
    k(f's_lshl_b32 s{sT0}, s2, 8')
    k(f's_add_u32 s{sT0}, s{sT0}, {WS_CNT:#x}')
    k(f'v_lshlrev_b32 v2, 2, v{vLANE}')
    k(f'v_mov_b32 v3, 0')
    k(f'buffer_store_dword v3, v2, s[{SWS}:{SWS+3}], s{sT0} offen sc0 sc1')
    k.label(NZ)
    k.stamp()
    if k.st_en:
        k('s_waitcnt vmcnt(0)')
    k.stamp(); k.stamp(real=True)
    k.stamp_dump(0, sW, vtmp=3)
    k.label(END)
    k('s_endpgm')
    return k.text(160, 100 if DBG else 80)

K2_CONST = 131072
K2_LDS = K2_CONST + 8192 + 256 + 16384
def gen_k2():
    k = Kern('k2_kernel')
    END = 'k2_end'
    SWS = 4
    sW, sHEAD, sQT, sIT, sT0, sT1, sFB = 8, 9, 10, 11, 12, 13, 14
    sKS, sVS, sLD = 22, 23, 24
    vLANE, vKA, vVA, vO16, vINC, vVA0 = 1, 2, 3, 4, 5, 6
    QF = 8
    NEGM = 16
    O = 32
    S = [48, 64]
    P = 80
    KF = [88, 92]
    VF = [96, 104]
    T = 112
    FA = 128
    FB = 144
    sFT0, sFT1, sFW, sA0, sA1, sA2, sTB, sNBP = 28, 29, 30, 31, 32, 33, 34, 35
    sFT0i, sFT1i, sFWi = 36, 37, 38
    sST, sSW, sWOB = 29, 39, 58
    UN = 8
    k('s_cmp_ge_u32 s2, 256')
    k(f's_cbranch_scc1 {END}')
    k.stamp_init('2' in DBG)
    k.stamp(); k.stamp(real=True)
    k('s_load_dwordx2 s[20:21], s[0:1], 72')
    k('v_lshrrev_b32 v2, 6, v0')
    k(f'v_and_b32 v{vLANE}, 63, v0')
    k(f'v_readfirstlane_b32 s{sW}, v2')
    k(f's_and_b32 s{sHEAD}, s2, 31')
    k(f's_lshr_b32 s{sQT}, s2, 5')
    k(f's_lshl_b32 s{sQT}, s{sQT}, 3')
    k(f'v_lshlrev_b32 v{vO16}, 4, v{vLANE}')
    k(f's_add_u32 s{sQT}, s{sQT}, s{sW}')
    k(f's_lshl_b32 s{sT0}, s{sHEAD}, 16')
    k(f's_lshl_b32 s{sT1}, s{sQT}, 10')
    k(f's_add_u32 s25, s{sT1}, s{sT0}')
    k(f's_lshl_b32 s{sLD}, s{sW}, 10')
    k(f's_add_u32 s{sT0}, s{sT0}, s{sLD}')
    k(f's_add_u32 s{sKS}, s{sT0}, {32*65536:#x}')
    k(f's_add_u32 s{sVS}, s{sT0}, {64*65536:#x}')
    k('s_waitcnt lgkmcnt(0)')
    k.srd(SWS, 20, 21, WS_SIZE)
    k(f'buffer_load_dwordx4 {v(QF,4)}, v{vO16}, s[{SWS}:{SWS+3}], s25 offen')
    def dma_round(i):
        k(f's_add_u32 m0, s{sLD}, {i*8192}')
        k(f's_add_u32 s26, s{sKS}, {i*8192}')
        k.vmop(f'buffer_load_dwordx4 v{vO16}, s[{SWS}:{SWS+3}], s26 offen lds', 'dma')
        k(f's_add_u32 m0, s{sLD}, {65536 + i*8192}')
        k(f's_add_u32 s26, s{sVS}, {i*8192}')
        k.vmop(f'buffer_load_dwordx4 v{vO16}, s[{SWS}:{SWS+3}], s26 offen lds', 'dma')
    dma_round(0)
    dma_round(1)
    k('v_lshlrev_b32 v7, 4, v0')
    k(f'v_add_u32 v7, {K2_CONST}, v7')
    for i in range(4):
        k(f'v_mov_b32 v{T+i}, 0')
    k('v_and_b32 v12, 31, v0')
    k('v_cmp_eq_u32 vcc, 0, v12')
    k(f'v_mov_b32 v13, 0x3f803f80')
    k('s_nop 0')
    for i in range(4):
        k(f'v_cndmask_b32 v{T+i}, v{T+i}, v13, vcc')
    k(f'ds_write_b128 v7, {v(T,4)}')
    for i in range(4):
        k(f'v_mov_b32 v{T+4+i}, 0')
    k(f'v_mov_b32 v7, {K2_CONST + 8192}')
    k(f'v_lshl_add_u32 v7, v{vLANE}, 2, v7')
    k(f'ds_write_b32 v7, v{T+4}')
    k(f'v_lshrrev_b32 v7, 5, v{vLANE}')
    k(f'v_lshlrev_b32 v7, 8, v7')
    k(f'v_and_b32 v12, 15, v{vLANE}')
    k(f'v_lshl_add_u32 v7, v12, 4, v7')
    k(f'v_add_u32 v{vVA0}, 0x10000, v7')
    k(f'v_mov_b32 v{vINC}, {UN*1024}')
    k(f'v_and_b32 v12, 31, v{vLANE}')
    k(f'v_mov_b32 v13, {K2_CONST + 16}')
    k(f'v_mov_b32 v14, 0')
    k('v_cmp_lt_u32 vcc, 15, v12')
    k('s_nop 1')
    k(f'v_cndmask_b32 v{vVA0}, v{vVA0}, v13, vcc')
    k(f'v_cndmask_b32 v{vINC}, v{vINC}, v14, vcc')
    k(f'v_mov_b32 v13, {K2_CONST}')
    k('v_cmp_eq_u32 vcc, 16, v12')
    k('s_nop 1')
    k(f'v_cndmask_b32 v{vVA0}, v{vVA0}, v13, vcc')
    k(f'v_subrev_u32 v14, 20, v12')
    k(f'v_mov_b32 v13, {K2_CONST + 64}')
    k('v_cmp_gt_u32 vcc, 8, v14')
    k('s_nop 1')
    k(f'v_cndmask_b32 v{vVA0}, v{vVA0}, v13, vcc')
    k(f's_mov_b32 s{sFB}, 0')
    k(f's_and_b32 s{sTB}, s2, 7')
    k(f's_lshr_b32 s{sT0}, s2, 3')
    k(f's_and_b32 s{sT0}, s{sT0}, 3')
    k(f's_lshl_b32 s{sT0}, s{sT0}, 3')
    k(f's_add_u32 s{sTB}, s{sTB}, s{sT0}')
    k(f's_lshr_b32 s{sNBP}, s2, 5')
    k(f's_lshr_b32 s{sT0}, s{sW}, 2')
    k(f's_mul_i32 s{sT0}, s{sT0}, 56')
    k(f's_add_u32 s{sT0}, s{sT0}, 32')
    k(f's_lshl_b32 s{sFT0i}, s{sTB}, 1')
    k(f's_bfe_u32 s{sT1}, s{sW}, 0x10001')
    k(f's_add_u32 s{sFT0i}, s{sFT0i}, s{sT1}')
    k(f's_mul_i32 s{sFT0i}, s{sFT0i}, 144')
    k(f's_add_u32 s{sFT0i}, s{sFT0i}, s{sT0}')
    k(f's_lshl_b32 s{sFT0i}, s{sFT0i}, 10')
    k(f's_add_u32 s{sFT0i}, s{sFT0i}, {WS_TF:#x}')
    k(f's_lshl_b32 s{sFWi}, s{sT0}, 4')
    k(f's_lshl_b32 s{sT1}, s{sNBP}, 1')
    k(f's_add_u32 s{sFWi}, s{sFWi}, s{sT1}')
    k(f's_and_b32 s{sT1}, s{sW}, 1')
    k(f's_add_u32 s{sFWi}, s{sFWi}, s{sT1}')
    k(f's_lshl_b32 s{sFWi}, s{sFWi}, 10')
    k(f's_add_u32 s{sFWi}, s{sFWi}, {WS_WF:#x}')
    k(f's_lshr_b32 s{sWOB}, s{sW}, 2')
    k(f's_lshl_b32 s{sWOB}, s{sWOB}, 8')
    k(f's_lshl_b32 s{sT1}, s{sNBP}, 1')
    k(f's_add_u32 s{sWOB}, s{sWOB}, s{sT1}')
    k(f's_and_b32 s{sT1}, s{sW}, 1')
    k(f's_add_u32 s{sWOB}, s{sWOB}, s{sT1}')
    k(f's_lshl_b32 s{sWOB}, s{sWOB}, 10')
    k(f's_add_u32 s{sWOB}, s{sWOB}, {WS_WF:#x}')
    k('s_waitcnt vmcnt(0) lgkmcnt(0)')
    k('s_barrier')
    k.stamp()
    k(f'ds_read_b128 {v(KF[0],4)}, v{vO16}')
    k('s_waitcnt lgkmcnt(0)')
    k(MFMA(v(S[0],16), v(KF[0],4), v(QF,4), '0'))
    k('s_nop 15')
    k(f'v_max3_f32 v{T}, v{S[0]}, v{S[0]+1}, v{S[0]+2}')
    for i in range(3, 15, 2):
        k(f'v_max3_f32 v{T}, v{T}, v{S[0]+i}, v{S[0]+i+1}')
    k(f'v_max_f32 v{T}, v{T}, v{S[0]+15}')
    RESTART = k.newlabel('restart')
    k.label(RESTART)
    k(f'v_mov_b32 v{T+1}, v{T}')
    k(f'v_mov_b32 v{vKA}, v{vO16}')
    k(f'v_mov_b32 v{vVA}, v{vVA0}')
    k(f'v_permlane32_swap_b32 v{T}, v{T+1}')
    k(f'ds_read_b128 {v(KF[0],4)}, v{vKA}')
    k(f'ds_read_b128 {v(VF[0],4)}, v{vVA}')
    k(f'ds_read_b128 {v(VF[0]+4,4)}, v{vVA} offset:512')
    k(f'ds_read_b128 {v(KF[1],4)}, v{vKA} offset:1024')
    k(f'v_max_f32 v{T}, v{T}, v{T+1}')
    for i in range(16):
        k(f'v_sub_f32 v{NEGM+i}, 0, v{T}')
    for i in range(16):
        k(f'v_mov_b32 v{O+i}, 0')
    for i in range(8):
        k(f'v_mov_b32 v{VF[1]+i}, 0')
    for i in range(8):
        k(f'v_mov_b32 v{P+i}, 0')
    for i in range(12, 16):
        k(f'v_mov_b32 v{S[1]+i}, 0')
    for i in range(16):
        k(f'v_mov_b32 v{FA+i}, 0')
    k(f's_mov_b32 s{sFT0}, s{sFT0i}')
    k(f's_mov_b32 s{sST}, 1024')
    k(f's_mov_b32 s{sSW}, 16384')
    k(f's_mul_i32 s{sFW}, s{sFB}, 16384')
    k(f's_sub_u32 s{sFW}, s{sFWi}, s{sFW}')
    k('s_waitcnt lgkmcnt(0)')
    k(MFMA(v(S[0],16), v(KF[0],4), v(QF,4), v(NEGM,16)))
    k('s_nop 15')
    def body(dma, prio=None):
        dq = []
        if dma:
            for i in range(2, 8):
                dq.append(i)
        nolds = 'nolds' in EXP
        noffn = 'noffn' in EXP
        k.vm = []
        def MF(*a):
            if 'nomfma' not in EXP: k(MFMA(*a))
        def floadW(j):
            if noffn: return
            if j == 0 and dma: return
            r = FB + 8 * ((j - 1) % 8)
            k(f'buffer_load_dwordx4 {v(r+4,4)}, v{vO16}, s[{SWS}:{SWS+3}], s{sFW} offen')
            k(f's_add_u32 s{sFW}, s{sFW}, s{sSW}')
            if j == 0:
                k(f's_add_u32 s{sA0}, s{sWOB}, 16384')
                k(f's_cmp_lt_u32 s{sIT}, 7')
                k(f's_cselect_b32 s{sFW}, s{sFW}, s{sA0}')
                k(f's_cselect_b32 s{sFT0}, s{sFT0}, s{sWOB}')
                k(f's_cselect_b32 s{sST}, s{sST}, 0x8000')
                k(f's_cselect_b32 s{sSW}, s{sSW}, 0x8000')
        def floadT(q):
            if noffn: return
            r = FB + 8 * q
            k(f'buffer_load_dwordx4 {v(r,4)}, v{vO16}, s[{SWS}:{SWS+3}], s{sFT0} offen')
            k(f's_add_u32 s{sFT0}, s{sFT0}, s{sST}')
        def fmma(q):
            if noffn or dma: return
            r = FB + 8 * q
            k('s_waitcnt vmcnt(14)')
            MF(v(FA,16), v(r+4,4), v(r,4), v(FA,16))
        for j in range(UN):
            b = j & 1
            cur, nxt = S[b], S[b ^ 1]
            e = lambda i: k(f'v_exp_f32 v{cur+i}, v{cur+i}')
            c = lambda i: k(f'v_cvt_pk_bf16_f32 v{P+i}, v{cur+2*i}, v{cur+2*i+1}')
            cp = lambda i: k(f'v_cvt_pk_bf16_f32 v{P+i}, v{nxt+2*i}, v{nxt+2*i+1}')
            e(0)
            if prio is not None and (j == 0 or prio[j] != prio[j-1]):
                k(f's_setprio {prio[j]}')
            if j == UN - 1:
                k(f'v_add_u32 v{vVA}, v{vINC}, v{vVA}')
            cp(6); e(1); e(2)
            floadW(j)
            cp(7); e(3); e(4)
            MF(v(O,16), v(VF[b^1]+4,4), v(P+4,4), v(O,16))
            voff = ((j + 1) % UN) * 1024
            if not nolds: k(f'ds_read_b128 {v(VF[b^1],4)}, v{vVA} offset:{voff}')
            c(0); e(5); e(6); c(1)
            if not nolds: k('s_waitcnt lgkmcnt(1)')
            e(7)
            MF(v(nxt,16), v(KF[b^1],4), v(QF,4), v(NEGM,16))
            if not nolds: k(f'ds_read_b128 {v(VF[b^1]+4,4)}, v{vVA} offset:{voff+512}')
            e(8); c(2); e(9); e(10); c(3); e(11)
            if dq and j < 6:
                dma_round(dq.pop(0))
            e(12)
            MF(v(O,16), v(VF[b],4), v(P,4), v(O,16))
            if not nolds: k(f'ds_read_b128 {v(KF[b],4)}, v{vKA} offset:{(j+2)*1024}')
            c(4); e(13)
            if j == UN - 1:
                k(f'v_add_u32 v{vKA}, {UN*1024}, v{vKA}')
            e(14); c(5)
            fmma(j)
            floadT(j)
            if j == UN - 1:
                k(f's_add_u32 s{sIT}, s{sIT}, 1')
                k(f's_cmp_lt_u32 s{sIT}, {64//UN}')
            e(15)
    FIRST = k.newlabel('first'); LOOP = k.newlabel('loop'); LOOP2 = k.newlabel('loop2'); AFTER = k.newlabel('after'); R2 = k.newlabel('r2')
    k(f's_mov_b32 s{sIT}, 0')
    k(f's_cmp_eq_u32 s{sFB}, 1')
    k(f's_cbranch_scc1 {LOOP}')
    nh = int(os.environ.get('NH', '6'))
    if nh >= 0:
        k(f's_cmp_ge_u32 s{sW}, 4')
        k(f's_cbranch_scc1 {R2}')
    body(True)
    k('s_waitcnt vmcnt(0)')
    k('s_barrier')
    k.label(LOOP)
    body(False)
    k(f's_cbranch_scc1 {LOOP}')
    if nh >= 0:
        k(f's_branch {AFTER}')
        k.label(R2)
        pr = [1] * nh + [0] * (UN - nh)
        body(True, pr)
        k('s_waitcnt vmcnt(0)')
        k('s_barrier')
        k.label(LOOP2)
        body(False, pr)
        k(f's_cbranch_scc1 {LOOP2}')
        k('s_setprio 0')
        k.label(AFTER)
    k('s_nop 1')
    k(f'v_cvt_pk_bf16_f32 v{P+6}, v{S[1]+12}, v{S[1]+13}')
    k(f'v_cvt_pk_bf16_f32 v{P+7}, v{S[1]+14}, v{S[1]+15}')
    k('s_nop 1')
    k(MFMA(v(O,16), v(VF[1]+4,4), v(P+4,4), v(O,16)))
    k('s_waitcnt lgkmcnt(0)')
    k('s_nop 15')
    k.stamp()
    k(f'v_mov_b32 v{T}, v{O+8}')
    k(f'v_mov_b32 v{T+1}, v{O+8}')
    k('s_nop 1')
    k(f'v_permlane32_swap_b32 v{T}, v{T+1}')
    k('s_nop 1')
    DONE = k.newlabel('done')
    k(f's_cmp_eq_u32 s{sFB}, 1')
    k(f's_cbranch_scc1 {DONE}')
    if EXP != ['']: k(f's_branch {DONE}')
    k(f'v_mov_b32 v{T+2}, {fhex(2.0**40)}')
    k(f'v_cmp_nlt_f32 vcc, v{T}, v{T+2}')
    k(f'v_mov_b32 v{T+1}, 0x207')
    for i in range(8):
        k(f'v_cmp_class_f32 s[26:27], v{O+i}, v{T+1}')
        k('s_or_b64 vcc, vcc, s[26:27]')
    k('s_cmp_eq_u64 vcc, 0')
    k(f's_cbranch_scc1 {DONE}')
    k(f's_mov_b32 s{sFB}, 1')
    k(f'v_mov_b32 v{vKA}, v{vO16}')
    k(f'v_mov_b32 v{T}, 0xff800000')
    k(f's_mov_b32 s{sIT}, 0')
    FL = k.newlabel('fbloop')
    k.label(FL)
    k(f'ds_read_b128 {v(KF[0],4)}, v{vKA}')
    k('s_waitcnt lgkmcnt(0)')
    k(MFMA(v(S[0],16), v(KF[0],4), v(QF,4), '0'))
    k('s_nop 15')
    for i in range(0, 16, 2):
        k(f'v_max3_f32 v{T}, v{T}, v{S[0]+i}, v{S[0]+i+1}')
    k(f'v_add_u32 v{vKA}, 0x400, v{vKA}')
    k(f's_add_u32 s{sIT}, s{sIT}, 1')
    k(f's_cmp_lt_u32 s{sIT}, 64')
    k(f's_cbranch_scc1 {FL}')
    k('s_waitcnt vmcnt(0)')
    for i in range(64):
        k(f'v_mov_b32 v{FB+i}, 0')
    k(f's_branch {RESTART}')
    k.label(DONE)
    k(f'v_rcp_f32 v{T}, v{T}')
    k('s_nop 0')
    for i in range(8):
        k(f'v_mul_f32 v{O+i}, v{O+i}, v{T}')
    for i in range(4):
        k(f'v_cvt_pk_bf16_f32 v{T+4+i}, v{O+2*i}, v{O+2*i+1}')
    k(f's_mul_i32 s{sT0}, s{sQT}, 144')
    k(f's_add_u32 s{sT0}, s{sT0}, s{sHEAD}')
    k(f's_lshl_b32 s{sT0}, s{sT0}, 10')
    k(f's_add_u32 s{sT0}, s{sT0}, {WS_TF:#x}')
    k(f'buffer_store_dwordx4 {v(T+4,4)}, v{vO16}, s[{SWS}:{SWS+3}], s{sT0} offen {OSF}')
    k.stamp(real=('r' in DBG))
    WOF, OF, XR = FB, 16, 80
    SX, SO, SD = 40, 44, 48
    sNB, sTT, sKH, sXO = 50, 51, 52, 53
    k('s_load_dwordx2 s[54:55], s[0:1], 0')
    k('s_load_dwordx2 s[56:57], s[0:1], 56')
    k(f's_load_dwordx2 s[{SD}:{SD+1}], s[0:1], 64')
    k(f's_and_b32 s{sNB}, s{sW}, 1')
    k(f's_bfe_u32 s{sTT}, s{sW}, 0x10001')
    k(f's_lshr_b32 s{sKH}, s{sW}, 2')
    k(f'buffer_load_dwordx4 {v(FB+60,4)}, v{vO16}, s[{SWS}:{SWS+3}], s{sFW} offen')
    vXO = T + 8
    k(f'v_and_b32 v{vXO}, 31, v{vLANE}')
    k(f'v_lshlrev_b32 v{vXO}, 10, v{vXO}')
    k(f'v_lshrrev_b32 v{vXO+1}, 5, v{vLANE}')
    k(f'v_lshl_add_u32 v{vXO}, v{vXO+1}, 3, v{vXO}')
    k(f's_lshl_b32 s{sXO}, s{sTB}, 1')
    k(f's_add_u32 s{sXO}, s{sXO}, s{sTT}')
    k(f's_lshl_b32 s{sXO}, s{sXO}, 15')
    k(f's_lshl_b32 s{sA1}, s{sNBP}, 7')
    k(f's_add_u32 s{sXO}, s{sXO}, s{sA1}')
    k(f's_lshl_b32 s{sA1}, s{sNB}, 6')
    k(f's_add_u32 s{sXO}, s{sXO}, s{sA1}')
    k(f's_lshl_b32 s{sA1}, s{sKH}, 5')
    k(f's_add_u32 s{sXO}, s{sXO}, s{sA1}')
    k('s_waitcnt lgkmcnt(0)')
    k.srd(SX, 54, 55, 2048 * 1024)
    k.srd(SO, 56, 57, 2048 * 1024)
    k(f'buffer_load_dwordx2 {v(XR,2)}, v{vXO}, s[{SX}:{SX+3}], s{sXO} offen')
    k(f'buffer_load_dwordx2 {v(XR+2,2)}, v{vXO}, s[{SX}:{SX+3}], s{sXO} offen offset:16')
    k('s_waitcnt vmcnt(3)')
    k('s_barrier')
    k.stamp()
    NOTW0 = k.newlabel('notw0'); POLL = k.newlabel('poll'); PD = k.newlabel('polldone')
    k(f's_cmp_lg_u32 s{sW}, 0')
    k(f's_cbranch_scc1 {NOTW0}')
    k(f's_lshr_b32 s{sA0}, s2, 5')
    k(f's_lshl_b32 s{sA0}, s{sA0}, 10')
    k(f's_add_u32 s{sA0}, s{sA0}, {WS_CNT:#x}')
    k(f'v_lshlrev_b32 v{T}, 8, v{vLANE}')
    k(f'v_mov_b32 v{T+1}, 1')
    k('s_mov_b64 exec, 15')
    k(f'buffer_atomic_add v{T+1}, v{T}, s[{SWS}:{SWS+3}], s{sA0} offen sc1')
    k('s_mov_b64 exec, 1')
    k(f's_lshl_b32 s{sA0}, s{sTB}, 8')
    k(f's_add_u32 s{sA0}, s{sA0}, {WS_CNT:#x}')
    k(f'v_mov_b32 v{T}, 0')
    k(f's_mov_b32 s{sA1}, 0')
    k.label(POLL)
    k(f'buffer_load_dword v{T+1}, v{T}, s[{SWS}:{SWS+3}], s{sA0} offen {POLLF}')
    k('s_waitcnt vmcnt(0)')
    k(f'v_readfirstlane_b32 s{sA2}, v{T+1}')
    k(f's_add_u32 s{sA1}, s{sA1}, 1')
    k(f's_cmp_ge_u32 s{sA2}, 32')
    k(f's_cbranch_scc1 {PD}')
    k(f's_cmp_lt_u32 s{sA1}, {1 << 16}')
    k(f's_sleep {SLP}')
    k(f's_cbranch_scc1 {POLL}')
    k.label(PD)
    k('s_mov_b64 exec, -1')
    k.label(NOTW0)
    k('s_barrier')
    k.stamp()
    if not ODMA:
        k(f's_lshl_b32 s{sA0}, s{sTB}, 1')
        k(f's_add_u32 s{sA0}, s{sA0}, s{sTT}')
        k(f's_mul_i32 s{sA0}, s{sA0}, 144')
        k(f's_lshl_b32 s{sA1}, s{sKH}, 4')
        k(f's_add_u32 s{sA0}, s{sA0}, s{sA1}')
        k(f's_lshl_b32 s{sA0}, s{sA0}, 10')
        k(f's_add_u32 s{sA0}, s{sA0}, {WS_TF:#x}')
        k.vm = []
        for j in range(16):
            if j and j % 4 == 0: k(f's_add_u32 s{sA0}, s{sA0}, 4096')
            k.vmop(f'buffer_load_dwordx4 {v(OF+4*j,4)}, v{vO16}, s[{SWS}:{SWS+3}], s{sA0} offen offset:{(j%4)*1024} {OLF}', j)
        for j in range(16):
            k.vmwait(j)
            k(MFMA(v(FA,16), v(WOF+4*j,4), v(OF+4*j,4), v(FA,16)))
    else:
        k(f's_lshl_b32 s{sA0}, s{sTB}, 1')
        k(f's_add_u32 s{sA0}, s{sA0}, s{sKH}')
        k(f's_mul_i32 s{sA0}, s{sA0}, 144')
        k(f's_and_b32 s{sA1}, s{sW}, 3')
        k(f's_lshl_b32 s{sA1}, s{sA1}, 3')
        k(f's_add_u32 s{sA0}, s{sA0}, s{sA1}')
        k(f's_lshl_b32 s{sA0}, s{sA0}, 10')
        k(f's_add_u32 s{sA0}, s{sA0}, {WS_TF:#x}')
        k(f's_lshl_b32 s{sA1}, s{sW}, 13')
        for j in range(8):
            k(f's_add_u32 m0, s{sA1}, {j*1024}')
            k(f's_add_u32 s{sA2}, s{sA0}, {j*1024}')
            k(f'buffer_load_dwordx4 v{vO16}, s[{SWS}:{SWS+3}], s{sA2} offen {OLF} lds')
        k(f's_lshl_b32 s{sA0}, s{sTT}, 15')
        k(f's_lshl_b32 s{sA1}, s{sKH}, 14')
        k(f's_add_u32 s{sA0}, s{sA0}, s{sA1}')
        k(f'v_add_u32 v{T}, s{sA0}, v{vO16}')
        k('s_waitcnt vmcnt(0)')
        k('s_barrier')
        for j in range(16):
            k(f'ds_read_b128 {v(OF+4*j,4)}, v{T} offset:{j*1024}')
            if j == 7: k('s_waitcnt lgkmcnt(4)')
        for j in range(16):
            k(f's_waitcnt lgkmcnt({min(15, 15 - j)})')
            k(MFMA(v(FA,16), v(WOF+4*j,4), v(OF+4*j,4), v(FA,16)))
    k('s_nop 15')
    k.stamp()
    RED = K2_CONST + 8192 + 256
    k(f's_and_b32 s{sA0}, s{sW}, 3')
    k(f's_lshl_b32 s{sA0}, s{sA0}, 12')
    k(f's_add_u32 s{sA0}, s{sA0}, {RED}')
    k(f'v_add_u32 v{T}, s{sA0}, v{vO16}')
    LO = k.newlabel('lo'); J = k.newlabel('j')
    R = FB
    k(f's_cmp_eq_u32 s{sKH}, 0')
    k(f's_cbranch_scc1 {LO}')
    k(f'ds_write_b128 v{T}, {v(FA,4)}')
    k(f'ds_write_b128 v{T}, {v(FA+4,4)} offset:1024')
    k('s_waitcnt lgkmcnt(0)')
    k('s_barrier')
    k(f'ds_read_b128 {v(R,4)}, v{T} offset:2048')
    k(f'ds_read_b128 {v(R+4,4)}, v{T} offset:3072')
    for i in range(8):
        k(f'v_mov_b32 v{R+8+i}, v{FA+8+i}')
    k(f's_branch {J}')
    k.label(LO)
    k(f'ds_write_b128 v{T}, {v(FA+8,4)} offset:2048')
    k(f'ds_write_b128 v{T}, {v(FA+12,4)} offset:3072')
    k('s_waitcnt lgkmcnt(0)')
    k('s_barrier')
    k(f'ds_read_b128 {v(R,4)}, v{T}')
    k(f'ds_read_b128 {v(R+4,4)}, v{T} offset:1024')
    for i in range(8):
        k(f'v_mov_b32 v{R+8+i}, v{FA+i}')
    k.label(J)
    for i in range(4):
        k(f'v_lshlrev_b32 v{R+16+2*i}, 16, v{XR+i}')
        k(f'v_and_b32 v{R+17+2*i}, 0xffff0000, v{XR+i}')
    for i in range(8):
        k(f'v_add_f32 v{R+8+i}, v{R+8+i}, v{R+16+i}')
    k('s_waitcnt lgkmcnt(0)')
    for i in range(8):
        k(f'v_add_f32 v{R+8+i}, v{R+8+i}, v{R+i}')
    for i in range(4):
        k(f'v_cvt_pk_bf16_f32 v{R+24+i}, v{R+8+2*i}, v{R+8+2*i+1}')
    k(f'buffer_store_dwordx2 {v(R+24,2)}, v{vXO}, s[{SO}:{SO+3}], s{sXO} offen')
    k(f'buffer_store_dwordx2 {v(R+26,2)}, v{vXO}, s[{SO}:{SO+3}], s{sXO} offen offset:16')
    k.stamp()
    if k.st_en:
        k('s_waitcnt vmcnt(0)')
    k.stamp(); k.stamp(real=True)
    k.stamp_dump(1, sW, vtmp=T+9+2)
    k.label(END)
    k('s_endpgm')
    return k.text(208, 100 if DBG else 64)

K3_LDS = 131072
def gen_k3():
    k = Kern('k3_kernel')
    END = 'k3_end'
    SWS, SX, SO = 4, 8, 12
    sW, sTB, sNBP, sT0, sT1, sTO, sWO, sNB, sTT, sKH, sXO, sL = 16, 17, 18, 19, 20, 21, 23, 30, 31, 32, 33, 34
    vLANE, vO16 = 1, 2
    ACC = 16
    BUF = 32
    PI = 96
    XR = 104
    k('s_cmp_ge_u32 s2, 256')
    k(f's_cbranch_scc1 {END}')
    k.stamp_init('3' in DBG)
    k.stamp(); k.stamp(real=True)
    k('s_load_dwordx2 s[28:29], s[0:1], 72')
    k('s_load_dwordx2 s[24:25], s[0:1], 0')
    k('s_load_dwordx2 s[26:27], s[0:1], 56')
    k('v_lshrrev_b32 v2, 6, v0')
    k(f'v_and_b32 v{vLANE}, 63, v0')
    k(f'v_readfirstlane_b32 s{sW}, v2')
    k(f's_and_b32 s{sTB}, s2, 7')
    k(f's_lshr_b32 s{sT0}, s2, 3')
    k(f's_and_b32 s{sT0}, s{sT0}, 3')
    k(f's_lshl_b32 s{sT0}, s{sT0}, 3')
    k(f's_add_u32 s{sTB}, s{sTB}, s{sT0}')
    k(f's_lshr_b32 s{sNBP}, s2, 5')
    k(f'v_lshlrev_b32 v{vO16}, 4, v{vLANE}')
    k(f's_and_b32 s{sNB}, s{sW}, 1')
    k(f's_bfe_u32 s{sTT}, s{sW}, 0x10001')
    k(f's_lshr_b32 s{sKH}, s{sW}, 2')
    k(f's_and_b32 s{sT0}, s{sW}, 3')
    k(f's_lshl_b32 s{sT0}, s{sT0}, 1')
    k(f's_lshl_b32 s{sT1}, s{sKH}, 4')
    k(f's_add_u32 s{sT0}, s{sT0}, s{sT1}')
    k(f's_mul_i32 s{sTO}, s{sTB}, {2*144}')
    k(f's_add_u32 s{sTO}, s{sTO}, s{sT0}')
    k(f's_lshl_b32 s{sTO}, s{sTO}, 10')
    k(f's_add_u32 s{sTO}, s{sTO}, {WS_TF:#x}')
    k(f's_lshl_b32 s{sWO}, s{sT0}, 4')
    k(f's_lshl_b32 s{sT1}, s{sNBP}, 1')
    k(f's_add_u32 s{sWO}, s{sWO}, s{sT1}')
    k(f's_lshl_b32 s{sWO}, s{sWO}, 10')
    k(f's_add_u32 s{sWO}, s{sWO}, {WS_WF:#x}')
    k(f's_lshl_b32 s{sL}, s{sT0}, 10')
    k('s_waitcnt lgkmcnt(0)')
    k.srd(SWS, 28, 29, WS_SIZE)
    for ph in range(2):
        for dk in range(2):
            ks = ph * 8 + dk
            for tt in range(2):
                k(f's_add_u32 m0, s{sL}, {tt*32768 + ks*1024}')
                k(f's_add_u32 s35, s{sTO}, {tt*144*1024 + ks*1024}')
                k.vmop(f'buffer_load_dwordx4 v{vO16}, s[{SWS}:{SWS+3}], s35 offen lds', ph)
            for nb in range(2):
                k(f's_add_u32 m0, s{sL}, {65536 + nb*32768 + ks*1024}')
                k(f's_add_u32 s35, s{sWO}, {ks*16384 + nb*1024}')
                k.vmop(f'buffer_load_dwordx4 v{vO16}, s[{SWS}:{SWS+3}], s35 offen lds', ph)
    k.srd(SX, 24, 25, 2048 * 1024)
    k.srd(SO, 26, 27, 2048 * 1024)
    k(f's_lshl_b32 s{sT0}, s{sTB}, 3')
    k(f's_add_u32 s{sT0}, s{sT0}, s{sNBP}')
    k(f's_lshl_b32 s{sT0}, s{sT0}, 2')
    k(f's_and_b32 s{sT1}, s{sW}, 3')
    k(f's_add_u32 s{sT0}, s{sT0}, s{sT1}')
    k(f's_lshl_b32 s{sT0}, s{sT0}, 12')
    k(f's_lshl_b32 s{sT1}, s{sKH}, 11')
    k(f's_add_u32 s{sT0}, s{sT0}, s{sT1}')
    k(f's_add_u32 s{sT0}, s{sT0}, {WS_PART:#x}')
    k.vmop(f'buffer_load_dwordx4 {v(PI,4)}, v{vO16}, s[{SWS}:{SWS+3}], s{sT0} offen', 'p')
    k.vmop(f'buffer_load_dwordx4 {v(PI+4,4)}, v{vO16}, s[{SWS}:{SWS+3}], s{sT0} offen offset:1024', 'p')
    k(f'v_and_b32 v3, 31, v{vLANE}')
    k(f'v_lshlrev_b32 v3, 10, v3')
    k(f'v_lshrrev_b32 v4, 5, v{vLANE}')
    k(f'v_lshl_add_u32 v3, v4, 3, v3')
    k(f's_lshl_b32 s{sXO}, s{sTB}, 1')
    k(f's_add_u32 s{sXO}, s{sXO}, s{sTT}')
    k(f's_lshl_b32 s{sXO}, s{sXO}, 15')
    k(f's_lshl_b32 s{sT0}, s{sNBP}, 7')
    k(f's_add_u32 s{sXO}, s{sXO}, s{sT0}')
    k(f's_lshl_b32 s{sT0}, s{sNB}, 6')
    k(f's_add_u32 s{sXO}, s{sXO}, s{sT0}')
    k(f's_lshl_b32 s{sT0}, s{sKH}, 5')
    k(f's_add_u32 s{sXO}, s{sXO}, s{sT0}')
    k.vmop(f'buffer_load_dwordx2 {v(XR,2)}, v3, s[{SX}:{SX+3}], s{sXO} offen', 'x')
    k.vmop(f'buffer_load_dwordx2 {v(XR+2,2)}, v3, s[{SX}:{SX+3}], s{sXO} offen offset:16', 'x')
    k(f's_lshl_b32 s{sT0}, s{sTT}, 15')
    k(f's_lshl_b32 s{sT1}, s{sKH}, 14')
    k(f's_add_u32 s{sT0}, s{sT0}, s{sT1}')
    k(f'v_add_u32 v5, s{sT0}, v{vO16}')
    k(f's_lshl_b32 s{sT0}, s{sNB}, 15')
    k(f's_add_u32 s{sT0}, s{sT0}, s{sT1}')
    k(f's_add_u32 s{sT0}, s{sT0}, 65536')
    k(f'v_add_u32 v6, s{sT0}, v{vO16}')
    for i in range(16):
        k(f'v_mov_b32 v{ACC+i}, 0')
    k.stamp()
    for ph in range(2):
        k.vmwait(ph)
        k('s_barrier')
        if ph == 0: k.stamp()
        for j in range(8):
            ks = ph * 8 + j
            k(f'ds_read_b128 {v(BUF+8*j,4)}, v5 offset:{ks*1024}')
            k(f'ds_read_b128 {v(BUF+8*j+4,4)}, v6 offset:{ks*1024}')
            if j == 6: k('s_waitcnt lgkmcnt(12)') if False else None
        for j in range(8):
            k(f's_waitcnt lgkmcnt({min(15, 14 - 2*j)})')
            k(MFMA(v(ACC,16), v(BUF+8*j+4,4), v(BUF+8*j,4), v(ACC,16)))
    k('s_nop 15')
    k.stamp()
    k('s_barrier')
    k(f's_and_b32 s{sT0}, s{sW}, 3')
    k(f's_lshl_b32 s{sT0}, s{sT0}, 12')
    k(f'v_add_u32 v5, s{sT0}, v{vO16}')
    LO = k.newlabel('lo'); J = k.newlabel('j')
    k(f's_cmp_eq_u32 s{sKH}, 0')
    k(f's_cbranch_scc1 {LO}')
    k(f'ds_write_b128 v5, {v(ACC,4)}')
    k(f'ds_write_b128 v5, {v(ACC+4,4)} offset:1024')
    k('s_waitcnt lgkmcnt(0)')
    k('s_barrier')
    k(f'ds_read_b128 {v(BUF,4)}, v5 offset:2048')
    k(f'ds_read_b128 {v(BUF+4,4)}, v5 offset:3072')
    for i in range(8):
        k(f'v_mov_b32 v{BUF+8+i}, v{ACC+8+i}')
    k(f's_branch {J}')
    k.label(LO)
    k(f'ds_write_b128 v5, {v(ACC+8,4)} offset:2048')
    k(f'ds_write_b128 v5, {v(ACC+12,4)} offset:3072')
    k('s_waitcnt lgkmcnt(0)')
    k('s_barrier')
    k(f'ds_read_b128 {v(BUF,4)}, v5')
    k(f'ds_read_b128 {v(BUF+4,4)}, v5 offset:1024')
    for i in range(8):
        k(f'v_mov_b32 v{BUF+8+i}, v{ACC+i}')
    k.label(J)
    k('s_waitcnt vmcnt(0)')
    for i in range(4):
        k(f'v_lshlrev_b32 v{BUF+16+2*i}, 16, v{XR+i}')
        k(f'v_and_b32 v{BUF+17+2*i}, 0xffff0000, v{XR+i}')
    for i in range(8):
        k(f'v_add_f32 v{PI+i}, v{PI+i}, v{BUF+16+i}')
        k(f'v_add_f32 v{PI+i}, v{PI+i}, v{BUF+8+i}')
    k('s_waitcnt lgkmcnt(0)')
    for i in range(8):
        k(f'v_add_f32 v{PI+i}, v{PI+i}, v{BUF+i}')
    for i in range(4):
        k(f'v_cvt_pk_bf16_f32 v{BUF+24+i}, v{PI+2*i}, v{PI+2*i+1}')
    k(f'buffer_store_dwordx2 {v(BUF+24,2)}, v3, s[{SO}:{SO+3}], s{sXO} offen')
    k(f'buffer_store_dwordx2 {v(BUF+26,2)}, v3, s[{SO}:{SO+3}], s{sXO} offen offset:16')
    k.stamp()
    if k.st_en:
        k('s_waitcnt vmcnt(0)')
    k.stamp(); k.stamp(real=True)
    k.stamp_dump(2, sW, vtmp=3)
    k.label(END)
    k('s_endpgm')
    return k.text(112, 100 if DBG else 40)

HEADER = open('parallel_sum__mha_block__dense_activation_mish__prompt.s.ref').read().split('; Override launch')[0]

def main(out):
    t1, d1 = gen_k1()
    t2, d2 = gen_k2()
    s = HEADER
    s += f'; @launch kernel=k1_kernel grid=(256,1,1) block=(768,1,1) lds={K1_LDS}\n'
    s += f'; @launch kernel=k2_kernel grid=(256,1,1) block=(512,1,1) lds={K2_LDS}\n'
    s += '.amdgcn_target "amdgcn-amd-amdhsa--gfx950"\n'
    s += t1 + t2 + d1 + d2
    open(out, 'w').write(s)

if __name__ == '__main__':
    main(sys.argv[1] if len(sys.argv) > 1 else 'parallel_sum__mha_block__dense_activation_mish__prompt.s')
```

```python
import math, sys, os
DBG = os.environ.get('DBG', '')
EXP = os.environ.get('EXP', '').split(',')
ST1 = os.environ.get('ST1', 'sc0 sc1')
ST2 = os.environ.get('ST2', '')
POLLF = os.environ.get('POLLF', 'sc1')
OLF = os.environ.get('OLF', 'sc1')
OSF = os.environ.get('OSF', 'sc0 sc1')
ODMA = os.environ.get('ODMA', '')
SLP = int(os.environ.get('SLP', '4'))
from asmlib import *

LOG2E = 1.4426950408889634
LN2 = 0.6931471805599453
QSCALE = 0.25 * LOG2E

WS_QKV = 0
WS_TF = 0x600000
WS_WF = 0xF00000
WS_PART = 0x1200000
WS_CNT = 0x1180000
WS_SIZE = 0x10000000

def MFMA(d, A, B, C):
    return f'v_mfma_f32_32x32x16_bf16 {d}, {A}, {B}, {C}'

XSL, NXS = 16384, 3
WSL, NWS = 16384, 6
WRB = XSL * NXS
MISC = WRB + WSL * NWS
L_SW = MISC
L_RSUM = MISC + 1024
L_BIAS = MISC + 2048
L_PRIV = MISC + 2560
K1_LDS = MISC + 2560 + 1024

def gen_k1():
    k = Kern('k1_kernel')
    def BAR():
        if 'nobar' not in EXP: k('s_barrier')
    END = 'k1_end'
    SX, SW_, SWS, SSZ, SB, SWQ = 4, 8, 12, 16, 20, 64
    sW, sRB, sCH, sRBK, sCG = 24, 25, 26, 27, 28
    sC, sXD, sWD, sXO, sFO, sQO, sT0, sT1, sT2 = 29, 30, 31, 32, 33, 34, 53, 54, 55
    sXR, sWR = 56, 63
    sFB, sQB, sTA = 57, 58, 59
    sZD = [60, 61, 62]
    sTB, sSA, sSB, sIDX, sNF, sD1, sD2 = 42, 43, 52, 68, 69, 70, 71
    vTID, vLANE, vH, vN = 0, 1, 8, 9
    k(f's_cmp_ge_u32 s2, 256')
    k(f's_cbranch_scc1 {END}')
    k.stamp_init('1' in DBG, sbase=74)
    k.stamp(); k.stamp(real=True)
    k('s_load_dwordx4 s[36:39], s[0:1], 0')
    k('s_load_dwordx4 s[44:47], s[0:1], 32')
    k('s_load_dwordx2 s[40:41], s[0:1], 16')
    k('s_load_dwordx2 s[48:49], s[0:1], 48')
    k('s_load_dwordx2 s[50:51], s[0:1], 72')
    k(f'v_lshrrev_b32 v2, 6, v0')
    k(f'v_and_b32 v{vLANE}, 63, v0')
    k(f'v_readfirstlane_b32 s{sW}, v2')
    k(f'v_lshrrev_b32 v{vH}, 5, v{vLANE}')
    k(f'v_and_b32 v{vN}, 31, v{vLANE}')
    k(f's_and_b32 s{sT0}, s2, 7')
    k(f's_lshr_b32 s{sT1}, s2, 3')
    k(f's_and_b32 s{sRBK}, s{sT0}, 1')
    k(f's_lshl_b32 s{sRBK}, s{sRBK}, 3')
    k(f's_and_b32 s{sT2}, s{sT1}, 7')
    k(f's_add_u32 s{sRBK}, s{sRBK}, s{sT2}')
    k(f's_lshr_b32 s{sCG}, s{sT0}, 1')
    k(f's_mul_i32 s{sFB}, s{sCG}, 14')
    k(f's_lshl_b32 s{sCG}, s{sCG}, 2')
    k(f's_lshr_b32 s{sT2}, s{sT1}, 3')
    k(f's_add_u32 s{sCG}, s{sCG}, s{sT2}')
    k(f's_lshl_b32 s{sT0}, s{sT2}, 2')
    k(f's_add_u32 s{sFB}, s{sFB}, s{sT0}')
    k(f's_cmp_eq_u32 s{sT2}, 3')
    k(f's_cselect_b32 s{sNF}, 2, 4')
    k(f's_and_b32 s{sRB}, s{sW}, 3')
    k(f's_lshr_b32 s{sCH}, s{sW}, 2')
    k(f's_mul_i32 s{sQB}, s{sCG}, 3')
    PROD = k.newlabel('prod'); ROLE1 = k.newlabel('role1')
    k(f's_cmp_eq_u32 s{sCH}, 2')
    k(f's_cbranch_scc1 {PROD}')
    k(f'v_bfe_u32 v2, v{vN}, 1, 3')
    k(f'v_xor_b32 v2, v2, v{vH}')
    k(f'v_lshlrev_b32 v2, 4, v2')
    k(f'v_lshl_add_u32 v4, v{vN}, 7, v2')
    k(f'v_bfe_u32 v6, v{vLANE}, 2, 2')
    k(f'v_lshl_add_u32 v5, v{vH}, 3, v6')
    k(f'v_lshlrev_b32 v5, 8, v5')
    k(f'v_bfe_u32 v7, v{vLANE}, 4, 1')
    k(f'v_lshl_add_u32 v5, v7, 5, v5')
    k(f'v_and_b32 v7, 3, v{vLANE}')
    k(f'v_lshl_add_u32 v5, v7, 3, v5')
    k(f'v_add_u32 v5, {WRB}, v5')
    SEL, CS, ACC = 24, 28, 32
    vX, vW = 10, 18
    XA, XB = [96, 100], [104, 108]
    WSET = [112, 124]
    CW = 136
    k(f'v_mov_b32 v2, 0')
    k(f'v_mov_b32 v3, 0x3f803f80')
    k(f'v_cmp_eq_u32 vcc, 0, v{vN}')
    k(f'v_cmp_eq_u32 s[72:73], 17, v{vN}')
    k('s_nop 1')
    k('s_or_b64 vcc, vcc, s[72:73]')
    k('s_nop 1')
    k(f'v_cndmask_b32 v{SEL}, v2, v3, vcc')
    for i in range(1, 4):
        k(f'v_mov_b32 v{SEL+i}, v{SEL}')
    k(f's_mov_b32 s{sXR}, 0')
    k(f's_mov_b32 s{sWR}, 0')
    k(f's_lshl_b32 s{sIDX}, s{sRB}, 2')
    k('s_waitcnt lgkmcnt(0)')
    k.srd(SWS, 50, 51, WS_SIZE)
    k(f's_cmp_eq_u32 s{sCH}, 1')
    k(f's_cbranch_scc1 {ROLE1}')

    def f_epilogue(stile, accs):
        k(f's_lshl_b32 s{sT0}, s{stile}, 7')
        k(f'v_lshlrev_b32 v4, 2, v{vN}')
        k(f'v_add_u32 v4, s{sT0}, v4')
        k(f'v_add_u32 v4, {L_RSUM}, v4')
        k(f'ds_read_b32 v10, v4')
        k(f'ds_read_b32 v11, v4 offset:512')
        RL, RML, TWO, C2, LN2P = 14, 16, 22, 24, 26
        k(f'v_mov_b32 v{TWO}, 2.0'); k(f'v_mov_b32 v{TWO+1}, 2.0')
        k(f'v_mov_b32 v{C2}, {fhex(-2*LN2)}'); k(f'v_mov_b32 v{C2+1}, {fhex(-2*LN2)}')
        k(f'v_mov_b32 v{LN2P}, {fhex(LN2)}'); k(f'v_mov_b32 v{LN2P+1}, {fhex(LN2)}')
        VEC = [[96, 112], [128, 144]]
        TU, E, TT = 112, 96, 160
        for wj, ss in enumerate((sSA, sSB)):
            k(f's_lshl_b32 s{sT0}, s{ss}, 7')
            k(f'v_add_u32 v7, s{sT0}, v5')
            for g_ in range(4):
                k(f'ds_read_b128 {v(VEC[wj][0]+4*g_,4)}, v7 offset:{g_*32}')
                k(f'ds_read_b128 {v(VEC[wj][1]+4*g_,4)}, v7 offset:{L_BIAS - L_SW + g_*32}')
            if wj == 0: k('s_waitcnt lgkmcnt(8)')
            if wj == 0:
                for d in range(2):
                    k(f'v_mul_f32 v{RL+d}, {fhex(LOG2E)}, v10')
                    k(f'v_mul_f32 v{RML+d}, {fhex(LOG2E)}, v11')
        P2 = lambda r: v(r, 2)
        SKS = k.newlabel('noslot')
        k(f's_cmp_ge_u32 s{sSA}, s{sNF}')
        k(f's_cbranch_scc1 {SKS}')
        for wj, ss in enumerate((sSA, sSB)):
            A = accs[wj]
            SWV, CLV = VEC[wj]
            k(f's_add_u32 s{sT0}, s{sC}, s{stile}')
            k(f's_mul_i32 s{sT0}, s{sT0}, 144')
            k(f's_add_u32 s{sT1}, s{sFB}, s{ss}')
            k(f's_lshl_b32 s{sT1}, s{sT1}, 1')
            k(f's_add_u32 s{sT0}, s{sT0}, s{sT1}')
            k(f's_add_u32 s{sT0}, s{sT0}, 32')
            k(f's_lshl_b32 s{sT0}, s{sT0}, 10')
            k(f's_add_u32 s{sD1}, s{sT0}, {WS_TF:#x}')
            k(f's_waitcnt lgkmcnt({8 if wj == 0 else 0})')
            for i in range(0, 16, 2):
                k(f'v_pk_fma_f32 {P2(CLV+i)}, {P2(RML)}, {P2(SWV+i)}, {P2(CLV+i)} neg_lo:[1,0,0] neg_hi:[1,0,0]')
            for i in range(0, 16, 2):
                k(f'v_pk_fma_f32 {P2(A+i)}, {P2(A+i)}, {P2(RL)}, {P2(CLV+i)}')
            for i in range(16):
                k(f'v_exp_f32 v{SWV+i}, v{A+i}')
            for i in range(0, 16, 2):
                k(f'v_pk_add_f32 {P2(CLV+i)}, {P2(SWV+i)}, {P2(TWO)}')
            for i in range(0, 16, 2):
                k(f'v_pk_fma_f32 {P2(SWV+i)}, {P2(SWV+i)}, {P2(CLV+i)}, {P2(TWO)}')
            for i in range(16):
                k(f'v_rcp_f32 v{SWV+i}, v{SWV+i}')
            for i in range(0, 16, 2):
                k(f'v_pk_fma_f32 {P2(SWV+i)}, {P2(SWV+i)}, {P2(C2)}, {P2(LN2P)}')
            for i in range(0, 16, 2):
                k(f'v_pk_mul_f32 {P2(A+i)}, {P2(A+i)}, {P2(SWV+i)}')
            for i in range(8):
                k(f'v_cvt_pk_bf16_f32 v{TT+i}, v{A+2*i}, v{A+2*i+1}')
            k(f'buffer_store_dwordx4 {v(TT,4)}, v6, s[{SWS}:{SWS+3}], s{sD1} offen {ST1}')
            k(f'buffer_store_dwordx4 {v(TT+4,4)}, v6, s[{SWS}:{SWS+3}], s{sD1} offen offset:1024 {ST1}')
            k('s_nop 1')
        k.label(SKS)

    def role(rid, types):
        WB_ = 0 if rid == 0 else 8192
        rot = (rid == 1 and len(set(types)) == 1)
        if rid == 0:
            k.srd(SB, 46, 47, 1792 * 2)
            k(f's_lshl_b32 s{sT0}, s{sFB}, 6')
            k(f'v_lshlrev_b32 v2, 1, v{vTID}')
            k(f'buffer_load_ushort v21, v2, s[{SB}:{SB+3}], s{sT0} offen')
            k(f's_lshr_b32 s{sT0}, s{sW}, 1')
            k(f's_and_b32 s{sT1}, s{sW}, 1')
            k(f's_lshl_b32 s{sTA}, s{sT0}, 1')
            k(f's_or_b32 s{sTA}, s{sTA}, s{sT1}')
            k(f's_xor_b32 s{sTB}, s{sTA}, 1')
            k(f's_lshl_b32 s{sSA}, s{sT1}, 1')
            k(f's_or_b32 s{sSA}, s{sSA}, s{sT0}')
            k(f's_xor_b32 s{sSB}, s{sSA}, 1')
            nx, nwf = 2, 2
            for i, st_ in enumerate((sTA, sTB)):
                k(f's_lshl_b32 s{sT0}, s{st_}, 12')
                k(f'v_add_u32 v{vX+4*i}, s{sT0}, v4')
                for kk in range(1, 4):
                    k(f'v_xor_b32 v{vX+4*i+kk}, {kk*32}, v{vX+4*i}')
            for j, ss in enumerate((sSA, sSB)):
                k(f'v_xor_b32 v7, s{ss}, v6')
                k(f'v_lshl_add_u32 v{vW+j}, v7, 6, v5')
            tiles = [(0, 0), (0, 1), (1, 0), (1, 1)]
        else:
            k(f's_mov_b32 s{sTA}, s{sRB}')
            nx, nwf = 1, 3
            k(f's_lshl_b32 s{sT0}, s{sRB}, 12')
            k(f'v_add_u32 v{vX}, s{sT0}, v4')
            for kk in range(1, 4):
                k(f'v_xor_b32 v{vX+kk}, {kk*32}, v{vX}')
            SL = [sSA, sSB, sTB]
            for j in range(3):
                if rot:
                    k(f's_add_u32 s{SL[j]}, s{sRB}, {j}')
                    k(f's_cmp_ge_u32 s{SL[j]}, 3')
                    k(f's_cselect_b32 s{sT0}, 3, 0')
                    k(f's_sub_u32 s{SL[j]}, s{SL[j]}, s{sT0}')
                    k(f's_cmp_ge_u32 s{SL[j]}, 3')
                    k(f's_cselect_b32 s{sT0}, 3, 0')
                    k(f's_sub_u32 s{SL[j]}, s{SL[j]}, s{sT0}')
                else:
                    k(f's_mov_b32 s{SL[j]}, {j}')
                k(f'v_xor_b32 v7, s{SL[j]}, v6')
                k(f'v_lshl_add_u32 v{vW+j}, v7, 6, v5')
            tiles = [(0, 0), (0, 1), (0, 2)]
        nt = len(tiles)
        XR = [XA, XB]
        for i in range(16 * nt):
            k(f'v_mov_b32 v{ACC+i}, 0')
        for i in range(4):
            k(f'v_mov_b32 v{CS+i}, 0')
        def rd_list(kk, ks, st):
            off = WB_ + ks * 4096
            def xr(i): return [f'ds_read_b128 {v(XR[i][st],4)}, v{vX+4*i+kk}']
            def wr(j): return [f'ds_read_b64_tr_b16 {v(WSET[st]+4*j,2)}, v{vW+j} offset:{off}',
                               f'ds_read_b64_tr_b16 {v(WSET[st]+4*j+2,2)}, v{vW+j} offset:{off+1024}']
            if rid == 0: return xr(0) + wr(0) + wr(1) + xr(1)
            return xr(0) + wr(0) + wr(1) + wr(2)
        need = [3, 5, 6, 6] if rid == 0 else [3, 5, 7]
        NOLD = 6 if rid == 0 else 7
        def advW():
            L = [f's_add_u32 s{sWR}, s{sWR}, {WSL}', f's_cmp_eq_u32 s{sWR}, {NWS*WSL}',
                 f's_mov_b32 s{sT2}, {WSL}', f's_cselect_b32 s{sT2}, {(WSL - NWS*WSL) & 0xffffffff:#x}, s{sT2}', f's_cselect_b32 s{sWR}, 0, s{sWR}']
            for j in range(nwf):
                L.append(f'v_add_u32 v{vW+j}, s{sT2}, v{vW+j}')
            return L
        def advX():
            L = [f's_add_u32 s{sXR}, s{sXR}, {XSL}', f's_cmp_eq_u32 s{sXR}, {NXS*XSL}',
                 f's_mov_b32 s{sT1}, {XSL}', f's_cselect_b32 s{sT1}, {(XSL - NXS*XSL) & 0xffffffff:#x}, s{sT1}', f's_cselect_b32 s{sXR}, 0, s{sXR}']
            for i in range(4 * nx):
                L.append(f'v_add_u32 v{vX+i}, s{sT1}, v{vX+i}')
            return L
        def kstep(st, nxt_reads, pre=(), post=()):
            if 'nocomp' in EXP:
                for s_ in post: k(s_)
                return
            rl = list(nxt_reads)
            if 'nolds1' in EXP: rl = []
            pre = list(pre)
            per = (len(rl) + nt - 1) // nt
            pper = (len(pre) + nt - 2) // (nt - 1) if pre else 0
            new = 0
            for t, (xi, wj) in enumerate(tiles):
                X = v(XR[xi][st], 4); W = v(WSET[st] + 4 * wj, 4); A = v(ACC + 16 * t, 16)
                k(f's_waitcnt lgkmcnt({NOLD - need[t] + new})')
                ty = 'T' if rid == 0 else types[t]
                if ty == 'N': k(MFMA(A, X, W, A))
                else: k(MFMA(A, W, X, A))
                if t == 0:
                    for s_ in pre: k(s_)
                for _ in range(per):
                    if rl:
                        k(rl.pop(0)); new += 1
                if 'nodot' not in EXP and 'noh' not in EXP:
                    if t == 1 and (rid == 0 or rot):
                        k(f'v_mfma_f32_16x16x32_bf16 {v(CS,4)}, {v(SEL,4)}, {v(WSET[st],4)}, {v(CS,4)}')
                    if rid == 1 and not rot and t == 2:
                        k(f's_set_gpr_idx_on s{sIDX}, gpr_idx(SRC0)')
                        k('s_nop 0')
                        for r in range(4):
                            k(f'v_mov_b32 v{CW+r}, v{WSET[st]+r}')
                        k('s_set_gpr_idx_off')
                        k('s_nop 1')
                        k(f'v_mfma_f32_16x16x32_bf16 {v(CS,4)}, {v(SEL,4)}, {v(CW,4)}, {v(CS,4)}')
            for s_ in post: k(s_)
            assert not rl
        def iteration(par, post=()):
            if 'bartop' in EXP: BAR()
            kstep(0, rd_list(2 * par + 1, 1, 1))
            pre = ([] if 'bartop' in EXP else ['s_barrier']) + advW() + (advX() if par == 1 else [])
            kstep(1, rd_list((2 * par + 2) % 4, 0, 0), pre=pre, post=post)
        k.stamp()
        BAR()
        k.stamp()
        for t in rd_list(0, 0, 0): k(t)
        LOOP = k.newlabel('loop')
        k(f's_mov_b32 s{sC}, 0')
        k.label(LOOP)
        iteration(0)
        iteration(1, post=[f's_add_u32 s{sC}, s{sC}, 1', f's_cmp_lt_u32 s{sC}, 8'])
        k(f's_cbranch_scc1 {LOOP}')
        k('s_nop 7')
        k.stamp()
        NS = k.newlabel('nosw')
        if rid == 0:
            k(f's_lshl_b32 s{sT0}, s{sSA}, 7')
            k(f's_add_u32 s{sT0}, s{sT0}, {L_SW}')
        elif rot:
            k(f's_lshl_b32 s{sT0}, s{sSA}, 7')
            k(f's_add_u32 s{sT0}, s{sT0}, {L_SW + 512}')
        else:
            k(f's_cmp_eq_u32 s{sRB}, 3')
            k(f's_cbranch_scc1 {NS}')
            k(f's_lshl_b32 s{sT0}, s{sRB}, 7')
            k(f's_add_u32 s{sT0}, s{sT0}, {L_SW + 512}')
        k(f'v_lshlrev_b32 v3, 2, v{vLANE}')
        k(f'v_add_u32 v3, s{sT0}, v3')
        k('s_mov_b64 exec, 0xffff')
        k(f'ds_write_b32 v3, v{CS}')
        k(f'ds_write_b32 v3, v{CS+1} offset:64')
        k('s_mov_b64 exec, -1')
        k.label(NS)
        if rid == 0:
            k(f's_lshr_b32 s{sT0}, s{sW}, 1')
            k(f's_lshl_b32 s{sT0}, s{sT0}, 15')
            k(f's_and_b32 s{sT1}, s{sW}, 1')
            k(f's_lshl_b32 s{sT1}, s{sT1}, 13')
            k(f's_add_u32 s{sT0}, s{sT0}, s{sT1}')
            k(f'v_lshlrev_b32 v3, 4, v{vLANE}')
            k(f'v_add_u32 v3, s{sT0}, v3')
            for q in range(8):
                k(f'ds_write_b128 v3, {v(ACC+32+4*q,4)} offset:{q*1024}')
            NB = k.newlabel('nobias')
            k(f's_cmp_ge_u32 s{sW}, 2')
            k(f's_cbranch_scc1 {NB}')
            k('s_waitcnt vmcnt(0)')
            k(f'v_lshlrev_b32 v3, 16, v21')
            k(f'v_mul_f32 v3, {fhex(LOG2E)}, v3')
            k(f'v_lshlrev_b32 v4, 2, v{vTID}')
            k(f'v_add_u32 v4, {L_BIAS}, v4')
            k(f'ds_write_b32 v4, v3')
            k.label(NB)
        k('s_waitcnt lgkmcnt(0)')
        BAR()
        k.stamp()
        def tokstats_issue(stile, r0):
            k(f's_lshl_b32 s{sT0}, s{stile}, 7')
            k(f'v_lshlrev_b32 v4, 2, v{vN}')
            k(f'v_add_u32 v4, s{sT0}, v4')
            k(f'v_add_u32 v4, {L_RSUM}, v4')
            k(f'ds_read_b32 v{r0}, v4')
            k(f'ds_read_b32 v{r0+1}, v4 offset:512')
        k(f'v_lshlrev_b32 v5, 4, v{vH}')
        k(f'v_add_u32 v5, {L_SW}, v5')
        k(f'v_lshlrev_b32 v6, 4, v{vLANE}')
        k(f's_lshl_b32 s{sC}, s{sRBK}, 2')
        if rid == 0:
            f_epilogue(sTA, [ACC, ACC + 16])
        else:
            k('s_setprio 2')
            vR, vRM = 10, 11
            tokstats_issue(sTA, 10)
            if 'N' in types:
                k(f's_lshl_b32 s{sT0}, s{sTA}, 7')
                k(f'v_lshlrev_b32 v7, 4, v{vH}')
                k(f'v_add_u32 v7, s{sT0}, v7')
                k(f'v_add_u32 v7, {L_RSUM}, v7')
                for g_ in range(4):
                    k(f'ds_read_b128 {v(120+4*g_,4)}, v7 offset:{g_*32}')
                    k(f'ds_read_b128 {v(136+4*g_,4)}, v7 offset:{g_*32 + 512}')
                k(f'v_lshrrev_b32 v12, 4, v{vN}')
                k(f'v_lshlrev_b32 v12, 16, v12')
                k(f'v_lshl_add_u32 v12, v{vH}, 8, v12')
                k(f'v_and_b32 v13, 15, v{vN}')
                k(f'v_lshl_add_u32 v12, v13, 4, v12')
            k(f's_add_u32 s{sD1}, s{sC}, s{sTA}')
            SL = [sSA, sSB, sTB]
            CV = [80, 96, 152]
            for j in range(3):
                k(f's_lshl_b32 s{sD2}, s{SL[j]}, 7')
                if types[j] == 'T':
                    k(f'v_add_u32 v7, s{sD2}, v5')
                    for g_ in range(4):
                        k(f'ds_read_b128 {v(CV[j]+4*g_,4)}, v7 offset:{512 + g_*32}')
                else:
                    k(f'v_lshlrev_b32 v13, 2, v{vN}')
                    k(f'v_add_u32 v13, s{sD2}, v13')
                    k(f'v_add_u32 v13, {L_SW + 512}, v13')
                    k(f'ds_read_b32 v{16+j}, v13')
                if j == 1: k('s_waitcnt lgkmcnt(8)')
            k('s_waitcnt lgkmcnt(0)')
            for j in range(3):
                A = ACC + 16 * j
                T = 112
                k(f's_add_u32 s{sT1}, s{sQB}, s{SL[j]}')
                k(f's_lshl_b32 s{sT0}, s{sT1}, 17')
                k(f's_lshl_b32 s{sT2}, s{sD1}, 10')
                k(f's_add_u32 s{sT0}, s{sT0}, s{sT2}')
                if types[j] == 'T':
                    SWR = CV[j]
                    k(f's_cmp_lt_u32 s{sT1}, 16')
                    k(f's_cselect_b32 s{sD2}, {fhex(QSCALE)}, 1.0')
                    k(f'v_mul_f32 v14, s{sD2}, v{vR}')
                    k(f'v_mul_f32 v15, s{sD2}, v{vRM}')
                    for i in range(16):
                        k(f'v_mul_f32 v{SWR+i}, v15, v{SWR+i}')
                    for i in range(16):
                        k(f'v_fma_f32 v{A+i}, v{A+i}, v14, -v{SWR+i}')
                    for i in range(8):
                        k(f'v_cvt_pk_bf16_f32 v{T+i}, v{A+2*i}, v{A+2*i+1}')
                    k(f's_add_u32 s{sT2}, s{sT0}, 0x10000')
                    k(f'buffer_store_dwordx4 {v(T,4)}, v6, s[{SWS}:{SWS+3}], s{sT0} offen {ST1}')
                    k(f'buffer_store_dwordx4 {v(T+4,4)}, v6, s[{SWS}:{SWS+3}], s{sT2} offen {ST1}')
                    k('s_nop 1')
                else:
                    SWR = 80
                    for i in range(16):
                        k(f'v_mul_f32 v{SWR+i}, v{16+j}, v{136+i}')
                    for i in range(16):
                        k(f'v_fma_f32 v{A+i}, v{A+i}, v{120+i}, -v{SWR+i}')
                    for i in range(8):
                        k(f'v_cvt_pk_bf16_f32 v{T+i}, v{A+2*i}, v{A+2*i+1}')
                    k(f'buffer_store_dwordx4 {v(T,4)}, v12, s[{SWS}:{SWS+3}], s{sT0} offen {ST1}')
                    k(f'buffer_store_dwordx4 {v(T+4,4)}, v12, s[{SWS}:{SWS+3}], s{sT0} offen offset:512 {ST1}')
                    k('s_nop 1')
        k.stamp()
        if k.st_en:
            k('s_waitcnt vmcnt(0)')
        k.stamp(); k.stamp(real=True)
        k.stamp_dump(0, sW, vtmp=3)
        k('s_endpgm')

    n0 = k.st_n
    role(0, None)
    k.label(ROLE1)
    V1 = k.newlabel('ttn'); V2 = k.newlabel('nnn')
    k(f's_cmp_eq_u32 s{sCG}, 10')
    k(f's_cbranch_scc1 {V1}')
    k(f's_cmp_gt_u32 s{sCG}, 10')
    k(f's_cbranch_scc1 {V2}')
    k.st_n = n0
    role(1, ['T', 'T', 'T'])
    k.label(V1)
    k.st_n = n0
    role(1, ['T', 'T', 'N'])
    k.label(V2)
    k.st_n = n0
    role(1, ['N', 'N', 'N'])

    k.label(PROD)
    k.st_n = n0
    if os.environ.get('PPRIO'): k(f's_setprio {os.environ["PPRIO"]}')
    vOX0, vOX1, vOF, vOQ = 10, 11, 12, 13
    vXs = 14
    XF = [20, 24]
    TMP = 28
    RS = 36
    SWZ = [40, 48, 56]
    vZ1, vZ2 = 64, 65
    k(f'v_lshrrev_b32 v2, 3, v{vLANE}')
    k(f'v_and_b32 v3, 7, v{vLANE}')
    k(f'v_lshrrev_b32 v4, 4, v{vLANE}')
    k(f'v_xor_b32 v5, v3, v4')
    k(f'v_lshlrev_b32 v5, 4, v5')
    k(f'v_lshl_add_u32 v{vOX0}, v2, 10, v5')
    k(f'v_xor_b32 v{vOX1}, 64, v{vOX0}')
    k(f'v_add_u32 v{vOX1}, 0x2000, v{vOX1}')
    k(f'v_and_b32 v3, 3, v{vLANE}')
    k(f'v_bfe_u32 v5, v{vLANE}, 2, 2')
    k(f'v_xor_b32 v5, v5, v4')
    k(f'v_lshlrev_b32 v6, 4, v3')
    k(f'v_lshl_add_u32 v6, v5, 6, v6')
    k(f'v_mul_u32_u24 v7, 3584, v4')
    k(f'v_add_u32 v{vOF}, v7, v6')
    k(f'v_mul_u32_u24 v7, 3072, v4')
    k(f'v_add_u32 v{vOQ}, v7, v6')
    k(f'v_mov_b32 v7, 0x7f000000')
    k(f'v_cmp_eq_u32 vcc, 3, v5')
    k(f'v_cmp_le_u32 s[72:73], s{sNF}, v5')
    k('s_nop 1')
    k(f'v_cndmask_b32 v{vOQ}, v{vOQ}, v7, vcc')
    k(f'v_cndmask_b32 v{vOF}, v{vOF}, v7, s[72:73]')
    k(f's_lshl_b32 s{sXO}, s{sRBK}, 17')
    k(f's_lshl_b32 s{sT0}, s{sRB}, 15')
    k(f's_add_u32 s{sXO}, s{sXO}, s{sT0}')
    k(f's_mul_i32 s{sFO}, s{sRB}, {8*3584}')
    k(f's_lshl_b32 s{sT0}, s{sFB}, 6')
    k(f's_add_u32 s{sFO}, s{sFO}, s{sT0}')
    k(f's_mul_i32 s{sQO}, s{sRB}, {8*3072}')
    k(f's_lshl_b32 s{sT0}, s{sQB}, 6')
    k(f's_add_u32 s{sQO}, s{sQO}, s{sT0}')
    k(f's_lshl_b32 s{sXD}, s{sRB}, 12')
    k(f's_lshl_b32 s{sWD}, s{sRB}, 11')
    k(f's_add_u32 s{sWD}, s{sWD}, {WRB}')
    k('s_waitcnt lgkmcnt(0)')
    k.srd(SX, 36, 37, 2048 * 512 * 2)
    k.srd(SW_, 44, 45, 512 * 3584)
    k.srd(SWQ, 38, 39, 512 * 3072)
    def dmaX_groups(tag):
        return [[f's_mov_b32 m0, s{sXD}', f's_add_u32 s{sT0}, s{sXO}, 16384', (f'buffer_load_dwordx4 v{vOX0}, s[{SX}:{SX+3}], s{sXO} offen lds', tag)],
                [f's_add_u32 m0, s{sXD}, 1024', 's_nop 0', (f'buffer_load_dwordx4 v{vOX1}, s[{SX}:{SX+3}], s{sXO} offen lds', tag)],
                [f's_add_u32 m0, s{sXD}, 2048', f's_add_u32 s{sXO}, s{sXO}, 128', (f'buffer_load_dwordx4 v{vOX0}, s[{SX}:{SX+3}], s{sT0} offen lds', tag)],
                [f's_add_u32 m0, s{sXD}, 3072', f's_add_u32 s{sXD}, s{sXD}, {XSL}', (f'buffer_load_dwordx4 v{vOX1}, s[{SX}:{SX+3}], s{sT0} offen lds', tag),
                 f's_cmp_ge_u32 s{sXD}, {NXS*XSL}', f's_cselect_b32 s{sT0}, {NXS*XSL}, 0', f's_sub_u32 s{sXD}, s{sXD}, s{sT0}']]
    def dmaW_groups(tag):
        return [[f's_mov_b32 m0, s{sWD}', f's_add_u32 s{sT2}, s{sFO}, {4*3584}', (f'buffer_load_dwordx4 v{vOF}, s[{SW_}:{SW_+3}], s{sFO} offen lds', tag)],
                [f's_add_u32 m0, s{sWD}, 1024', f's_add_u32 s{sFO}, s{sFO}, {32*3584}', (f'buffer_load_dwordx4 v{vOF}, s[{SW_}:{SW_+3}], s{sT2} offen lds', tag)],
                [f's_add_u32 m0, s{sWD}, 8192', f's_add_u32 s{sT2}, s{sQO}, {4*3072}', (f'buffer_load_dwordx4 v{vOQ}, s[{SWQ}:{SWQ+3}], s{sQO} offen lds', tag)],
                [f's_add_u32 m0, s{sWD}, 9216', f's_add_u32 s{sQO}, s{sQO}, {32*3072}', (f'buffer_load_dwordx4 v{vOQ}, s[{SWQ}:{SWQ+3}], s{sT2} offen lds', tag),
                 f's_add_u32 s{sWD}, s{sWD}, {WSL}', f's_cmp_ge_u32 s{sWD}, {WRB + NWS*WSL}', f's_cselect_b32 s{sT2}, {NWS*WSL}, 0', f's_sub_u32 s{sWD}, s{sWD}, s{sT2}']]
    def emit_group(gr):
        for t in gr:
            if isinstance(t, tuple): k.vmop(t[0], t[1])
            else: k(t)
    def dmaX(tag):
        for gr in dmaX_groups(tag): emit_group(gr)
    def dmaW(tag):
        for gr in dmaW_groups(tag): emit_group(gr)
    k.vm = []
    dmaX(('X', 0)); dmaW(('W', 0)); dmaW(('W', 1))
    k.stamp()
    dmaX(('X', 1)); dmaW(('W', 2))
    k(f'v_bfe_u32 v2, v{vN}, 1, 3')
    k(f'v_xor_b32 v2, v2, v{vH}')
    k(f'v_lshlrev_b32 v2, 4, v2')
    k(f'v_lshl_add_u32 v4, v{vN}, 7, v2')
    k(f's_lshl_b32 s{sT0}, s{sRB}, 12')
    k(f'v_add_u32 v{vXs}, s{sT0}, v4')
    for kk in range(1, 4):
        k(f'v_xor_b32 v{vXs+kk}, {kk*32}, v{vXs}')
    for i in range(4):
        k(f'v_mov_b32 v{RS+i}, 0')
    k(f's_mov_b32 s{sXR}, 0')
    k.srd(SWS, 50, 51, WS_SIZE)
    XFB = [[20, 24], [72, 76]]
    def stat_reads(par, buf):
        if 'nodot' in EXP or 'nostat' in EXP: return
        k(f'ds_read_b128 {v(XFB[buf][0],4)}, v{vXs+2*par}')
        k(f'ds_read_b128 {v(XFB[buf][1],4)}, v{vXs+2*par+1}')
        if par == 1:
            k(f's_add_u32 s{sXR}, s{sXR}, {XSL}')
            k(f's_cmp_eq_u32 s{sXR}, {NXS*XSL}')
            k(f's_mov_b32 s{sT1}, {XSL}')
            k(f's_cselect_b32 s{sT1}, {(XSL - NXS*XSL) & 0xffffffff:#x}, s{sT1}')
            k(f's_cselect_b32 s{sXR}, 0, s{sXR}')
            for i in range(4):
                k(f'v_add_u32 v{vXs+i}, s{sT1}, v{vXs+i}')
    def stat_ops(buf):
        if 'nodot' in EXP or 'nostat' in EXP: return []
        L = []
        for s_ in range(2):
            for q in range(4):
                x = XFB[buf][s_] + q
                L += [f'v_and_b32 v{TMP+2*q}, 0xffff0000, v{x}', f'v_lshlrev_b32 v{TMP+2*q+1}, 16, v{x}']
            for q in range(4):
                L += [f'v_add_f32 v{RS}, v{RS}, v{TMP+2*q}', f'v_fmac_f32 v{RS+2}, v{TMP+2*q}, v{TMP+2*q}',
                      f'v_add_f32 v{RS+1}, v{RS+1}, v{TMP+2*q+1}', f'v_fmac_f32 v{RS+3}, v{TMP+2*q+1}, v{TMP+2*q+1}']
        return L
    def side_loads():
        k(f'v_lshlrev_b32 v2, 12, v{vH}')
        k(f'v_lshl_add_u32 v{vZ1}, v{vN}, 1, v2')
        k(f'v_add_u32 v{vZ2}, 0x2000, v{vZ1}')
        k(f's_and_b32 s{sT2}, s2, 3')
        k(f's_lshl_b32 s{sT2}, s{sT2}, 2')
        k(f's_add_u32 s{sT2}, s{sT2}, s{sRB}')
        for i in range(3):
            SKI = None
            if i == 2:
                SKI = k.newlabel('noswz3')
                k(f's_cmp_ge_u32 s2, 64')
                k(f's_cbranch_scc1 {SKI}')
            k(f's_lshr_b32 s{sT0}, s2, 2')
            if i: k(f's_add_u32 s{sT0}, s{sT0}, {64*i}')
            if i == 0:
                k(f's_cmp_lt_u32 s{sT0}, 32')
                k(f's_cselect_b32 s{SSZ}, s40, s48')
                k(f's_cselect_b32 s{SSZ+1}, s41, s49')
                k(f's_mov_b32 s{SSZ+2}, {1792*1024:#x}')
                k(f's_cselect_b32 s{SSZ+2}, {512*1024:#x}, s{SSZ+2}')
                k(f's_cselect_b32 s{sT1}, 0, 32')
                k(f's_and_b32 s{SSZ+1}, s{SSZ+1}, 0xffff')
                k(f's_mov_b32 s{SSZ+3}, 0x20000')
                k(f's_sub_u32 s{sT1}, s{sT0}, s{sT1}')
            else:
                if i == 1: k.srd(SSZ, 48, 49, 1792 * 1024)
                k(f's_sub_u32 s{sT1}, s{sT0}, 32')
            k(f's_lshl_b32 s{sT1}, s{sT1}, 14')
            k(f's_lshl_b32 s{sZD[i]}, s{sT2}, 6')
            k(f's_add_u32 s{sT1}, s{sT1}, s{sZD[i]}')
            for j in range(8):
                k(f'buffer_load_ushort v{SWZ[i]+j}, v{vZ1 if j < 4 else vZ2}, s[{SSZ}:{SSZ+3}], s{sT1} offen offset:{(j%4)*1024}')
            k(f's_lshl_b32 s{sZD[i]}, s{sT0}, 4')
            k(f's_add_u32 s{sZD[i]}, s{sZD[i]}, s{sT2}')
            k(f's_lshl_b32 s{sZD[i]}, s{sZD[i]}, 10')
            k(f's_add_u32 s{sZD[i]}, s{sZD[i]}, {WS_WF:#x}')
            if SKI: k.label(SKI)
    def side_stores():
        k(f'v_lshlrev_b32 v2, 4, v{vLANE}')
        for i in range(3):
            SKI = None
            if i == 2:
                SKI = k.newlabel('noswz3s')
                k(f's_cmp_ge_u32 s2, 64')
                k(f's_cbranch_scc1 {SKI}')
            for r in range(4):
                k(f'v_lshl_or_b32 v{68+r}, v{SWZ[i]+2*r+1}, 16, v{SWZ[i]+2*r}')
            k(f'buffer_store_dwordx4 v[68:71], v2, s[{SWS}:{SWS+3}], s{sZD[i]} offen {ST1}')
            k('s_nop 1')
            if SKI: k.label(SKI)
    k.vmwait(('W', 0))
    BAR()
    k.stamp()
    dmaW(('W', 3)); dmaW(('W', 4))
    for c in range(16):
        if c + 1 < 16:
            tw, tx = ('W', c + 1), ('X', (c + 1) // 2)
            iw = max([i for i, t in enumerate(k.vm) if t == tw], default=-1)
            ix = max([i for i, t in enumerate(k.vm) if t == tx], default=-1)
            if max(iw, ix) >= 0:
                k.vmwait(tw if iw > ix else tx)
        BAR()
        stat_reads(c & 1, c & 1)
        groups = []
        if 'nodma' not in EXP:
            if c % 2 == 0 and c // 2 + 2 < 8: groups += dmaX_groups(('X', c // 2 + 2))
            if c + 5 < 16: groups += dmaW_groups(('W', c + 5))
        ops = stat_ops((c - 1) & 1) if c >= 1 else []
        per = (len(ops) + max(len(groups), 1) - 1) // max(len(groups), 1)
        for gr in groups:
            emit_group(gr)
            for _ in range(per):
                if ops: k(ops.pop(0))
        for t in ops: k(t)
        if c == 14:
            side_loads()
        k('s_waitcnt lgkmcnt(0)')
    for t in stat_ops(15 & 1): k(t)
    k.stamp()
    k(f'v_add_f32 v{RS}, v{RS}, v{RS+1}')
    k(f'v_add_f32 v{RS+2}, v{RS+2}, v{RS+3}')
    k(f'v_mov_b32 v{RS+1}, v{RS}')
    k(f'v_mov_b32 v{RS+3}, v{RS+2}')
    k('s_nop 1')
    k(f'v_permlane32_swap_b32 v{RS}, v{RS+1}')
    k(f'v_permlane32_swap_b32 v{RS+2}, v{RS+3}')
    k('s_nop 1')
    k(f'v_add_f32 v5, v{RS}, v{RS+1}')
    k(f'v_add_f32 v6, v{RS+2}, v{RS+3}')
    k(f'v_mul_f32 v5, {fhex(1/512)}, v5')
    k(f'v_mul_f32 v6, {fhex(1/512)}, v6')
    k(f'v_fma_f32 v6, -v5, v5, v6')
    k(f'v_max_f32 v6, 0, v6')
    k(f'v_add_f32 v6, {fhex(1e-5)}, v6')
    k(f'v_rsq_f32 v6, v6')
    k('s_nop 0')
    k(f'v_mul_f32 v5, v5, v6')
    k(f's_lshl_b32 s{sT0}, s{sRB}, 7')
    k(f'v_lshlrev_b32 v2, 2, v{vN}')
    k(f'v_add_u32 v2, s{sT0}, v2')
    k(f'v_add_u32 v2, {L_RSUM}, v2')
    k(f'ds_write_b32 v2, v6')
    k(f'ds_write_b32 v2, v5 offset:512')
    k('s_waitcnt lgkmcnt(0)')
    BAR()
    k.stamp()
    k(f's_lshr_b32 s{sT0}, s{sRB}, 1')
    k(f's_and_b32 s{sT1}, s{sRB}, 1')
    k(f's_lshl_b32 s{sTA}, s{sT0}, 1')
    k(f's_or_b32 s{sTA}, s{sTA}, s{sT1}')
    k(f's_xor_b32 s{sTB}, s{sTA}, 1')
    k(f's_lshl_b32 s{sSA}, s{sT1}, 1')
    k(f's_or_b32 s{sSA}, s{sSA}, s{sT0}')
    k(f's_xor_b32 s{sSB}, s{sSA}, 1')
    k(f's_lshl_b32 s{sT0}, s{sT0}, 15')
    k(f's_lshl_b32 s{sT1}, s{sT1}, 13')
    k(f's_add_u32 s{sT0}, s{sT0}, s{sT1}')
    k(f'v_lshlrev_b32 v6, 4, v{vLANE}')
    k(f'v_add_u32 v3, s{sT0}, v6')
    for q in range(8):
        k(f'ds_read_b128 {v(64+4*q if False else 28+0,4)}, v3') if False else None
    PA = 64
    k('s_waitcnt vmcnt(0)')
    side_stores()
    k('s_setprio 1')
    for q in range(8):
        k(f'ds_read_b128 {v(PA+4*q,4)}, v3 offset:{q*1024}')
    k(f'v_lshlrev_b32 v5, 4, v{vH}')
    k(f'v_add_u32 v5, {L_SW}, v5')
    k(f's_lshl_b32 s{sC}, s{sRBK}, 2')
    k('s_waitcnt lgkmcnt(0)')
    f_epilogue(sTB, [PA, PA + 16])
    NZ = k.newlabel('nozero')
    k(f's_cmp_ge_u32 s2, 32')
    k(f's_cbranch_scc1 {NZ}')
    k(f's_cmp_lg_u32 s{sRB}, 0')
    k(f's_cbranch_scc1 {NZ}')
    k(f's_lshl_b32 s{sT0}, s2, 8')
    k(f's_add_u32 s{sT0}, s{sT0}, {WS_CNT:#x}')
    k(f'v_lshlrev_b32 v2, 2, v{vLANE}')
    k(f'v_mov_b32 v3, 0')
    k(f'buffer_store_dword v3, v2, s[{SWS}:{SWS+3}], s{sT0} offen sc0 sc1')
    k.label(NZ)
    k.stamp()
    if k.st_en:
        k('s_waitcnt vmcnt(0)')
    k.stamp(); k.stamp(real=True)
    k.stamp_dump(0, sW, vtmp=3)
    k.label(END)
    k('s_endpgm')
    return k.text(168, 100 if DBG else 80)

K2_CONST = 131072
K2_LDS = K2_CONST + 8192 + 256 + 16384
def gen_k2():
    k = Kern('k2_kernel')
    END = 'k2_end'
    SWS = 4
    sW, sHEAD, sQT, sIT, sT0, sT1, sFB = 8, 9, 10, 11, 12, 13, 14
    sKS, sVS, sLD = 22, 23, 24
    vLANE, vKA, vVA, vO16, vINC, vVA0 = 1, 2, 3, 4, 5, 6
    QF = 8
    NEGM = 16
    O = 32
    S = [48, 64]
    P = 80
    KF = [88, 92]
    VF = [96, 104]
    T = 112
    FA = 128
    FB = 144
    sFT0, sFT1, sFW, sA0, sA1, sA2, sTB, sNBP = 28, 29, 30, 31, 32, 33, 34, 35
    sFT0i, sFT1i, sFWi = 36, 37, 38
    sST, sSW, sWOB = 29, 39, 58
    UN = 8
    k('s_cmp_ge_u32 s2, 256')
    k(f's_cbranch_scc1 {END}')
    k.stamp_init('2' in DBG)
    k.stamp(); k.stamp(real=True)
    k('s_load_dwordx2 s[20:21], s[0:1], 72')
    k('v_lshrrev_b32 v2, 6, v0')
    k(f'v_and_b32 v{vLANE}, 63, v0')
    k(f'v_readfirstlane_b32 s{sW}, v2')
    k(f's_and_b32 s{sHEAD}, s2, 31')
    k(f's_lshr_b32 s{sQT}, s2, 5')
    k(f's_lshl_b32 s{sQT}, s{sQT}, 3')
    k(f'v_lshlrev_b32 v{vO16}, 4, v{vLANE}')
    k(f's_add_u32 s{sQT}, s{sQT}, s{sW}')
    k(f's_lshl_b32 s{sT0}, s{sHEAD}, 16')
    k(f's_lshl_b32 s{sT1}, s{sQT}, 10')
    k(f's_add_u32 s25, s{sT1}, s{sT0}')
    k(f's_lshl_b32 s{sLD}, s{sW}, 10')
    k(f's_add_u32 s{sT0}, s{sT0}, s{sLD}')
    k(f's_add_u32 s{sKS}, s{sT0}, {32*65536:#x}')
    k(f's_add_u32 s{sVS}, s{sT0}, {64*65536:#x}')
    k('s_waitcnt lgkmcnt(0)')
    k.srd(SWS, 20, 21, WS_SIZE)
    k(f'buffer_load_dwordx4 {v(QF,4)}, v{vO16}, s[{SWS}:{SWS+3}], s25 offen')
    def dma_round(i):
        k(f's_add_u32 m0, s{sLD}, {i*8192}')
        k(f's_add_u32 s26, s{sKS}, {i*8192}')
        k.vmop(f'buffer_load_dwordx4 v{vO16}, s[{SWS}:{SWS+3}], s26 offen lds', 'dma')
        k(f's_add_u32 m0, s{sLD}, {65536 + i*8192}')
        k(f's_add_u32 s26, s{sVS}, {i*8192}')
        k.vmop(f'buffer_load_dwordx4 v{vO16}, s[{SWS}:{SWS+3}], s26 offen lds', 'dma')
    dma_round(0)
    dma_round(1)
    k('v_lshlrev_b32 v7, 4, v0')
    k(f'v_add_u32 v7, {K2_CONST}, v7')
    for i in range(4):
        k(f'v_mov_b32 v{T+i}, 0')
    k('v_and_b32 v12, 31, v0')
    k('v_cmp_eq_u32 vcc, 0, v12')
    k(f'v_mov_b32 v13, 0x3f803f80')
    k('s_nop 0')
    for i in range(4):
        k(f'v_cndmask_b32 v{T+i}, v{T+i}, v13, vcc')
    k(f'ds_write_b128 v7, {v(T,4)}')
    for i in range(4):
        k(f'v_mov_b32 v{T+4+i}, 0')
    k(f'v_mov_b32 v7, {K2_CONST + 8192}')
    k(f'v_lshl_add_u32 v7, v{vLANE}, 2, v7')
    k(f'ds_write_b32 v7, v{T+4}')
    k(f'v_lshrrev_b32 v7, 5, v{vLANE}')
    k(f'v_lshlrev_b32 v7, 8, v7')
    k(f'v_and_b32 v12, 15, v{vLANE}')
    k(f'v_lshl_add_u32 v7, v12, 4, v7')
    k(f'v_add_u32 v{vVA0}, 0x10000, v7')
    k(f'v_mov_b32 v{vINC}, {UN*1024}')
    k(f'v_and_b32 v12, 31, v{vLANE}')
    k(f'v_mov_b32 v13, {K2_CONST + 16}')
    k(f'v_mov_b32 v14, 0')
    k('v_cmp_lt_u32 vcc, 15, v12')
    k('s_nop 1')
    k(f'v_cndmask_b32 v{vVA0}, v{vVA0}, v13, vcc')
    k(f'v_cndmask_b32 v{vINC}, v{vINC}, v14, vcc')
    k(f'v_mov_b32 v13, {K2_CONST}')
    k('v_cmp_eq_u32 vcc, 16, v12')
    k('s_nop 1')
    k(f'v_cndmask_b32 v{vVA0}, v{vVA0}, v13, vcc')
    k(f'v_subrev_u32 v14, 20, v12')
    k(f'v_mov_b32 v13, {K2_CONST + 64}')
    k('v_cmp_gt_u32 vcc, 8, v14')
    k('s_nop 1')
    k(f'v_cndmask_b32 v{vVA0}, v{vVA0}, v13, vcc')
    k(f's_mov_b32 s{sFB}, 0')
    k(f's_and_b32 s{sTB}, s2, 7')
    k(f's_lshr_b32 s{sT0}, s2, 3')
    k(f's_and_b32 s{sT0}, s{sT0}, 3')
    k(f's_lshl_b32 s{sT0}, s{sT0}, 3')
    k(f's_add_u32 s{sTB}, s{sTB}, s{sT0}')
    k(f's_lshr_b32 s{sNBP}, s2, 5')
    k(f's_lshr_b32 s{sT0}, s{sW}, 2')
    k(f's_mul_i32 s{sT0}, s{sT0}, 56')
    k(f's_add_u32 s{sT0}, s{sT0}, 32')
    k(f's_lshl_b32 s{sFT0i}, s{sTB}, 1')
    k(f's_bfe_u32 s{sT1}, s{sW}, 0x10001')
    k(f's_add_u32 s{sFT0i}, s{sFT0i}, s{sT1}')
    k(f's_mul_i32 s{sFT0i}, s{sFT0i}, 144')
    k(f's_add_u32 s{sFT0i}, s{sFT0i}, s{sT0}')
    k(f's_lshl_b32 s{sFT0i}, s{sFT0i}, 10')
    k(f's_add_u32 s{sFT0i}, s{sFT0i}, {WS_TF:#x}')
    k(f's_lshl_b32 s{sFWi}, s{sT0}, 4')
    k(f's_lshl_b32 s{sT1}, s{sNBP}, 1')
    k(f's_add_u32 s{sFWi}, s{sFWi}, s{sT1}')
    k(f's_and_b32 s{sT1}, s{sW}, 1')
    k(f's_add_u32 s{sFWi}, s{sFWi}, s{sT1}')
    k(f's_lshl_b32 s{sFWi}, s{sFWi}, 10')
    k(f's_add_u32 s{sFWi}, s{sFWi}, {WS_WF:#x}')
    k(f's_lshr_b32 s{sWOB}, s{sW}, 2')
    k(f's_lshl_b32 s{sWOB}, s{sWOB}, 8')
    k(f's_lshl_b32 s{sT1}, s{sNBP}, 1')
    k(f's_add_u32 s{sWOB}, s{sWOB}, s{sT1}')
    k(f's_and_b32 s{sT1}, s{sW}, 1')
    k(f's_add_u32 s{sWOB}, s{sWOB}, s{sT1}')
    k(f's_lshl_b32 s{sWOB}, s{sWOB}, 10')
    k(f's_add_u32 s{sWOB}, s{sWOB}, {WS_WF:#x}')
    k('s_waitcnt vmcnt(0) lgkmcnt(0)')
    k('s_barrier')
    k.stamp()
    k(f'ds_read_b128 {v(KF[0],4)}, v{vO16}')
    k('s_waitcnt lgkmcnt(0)')
    k(MFMA(v(S[0],16), v(KF[0],4), v(QF,4), '0'))
    k('s_nop 15')
    k(f'v_max3_f32 v{T}, v{S[0]}, v{S[0]+1}, v{S[0]+2}')
    for i in range(3, 15, 2):
        k(f'v_max3_f32 v{T}, v{T}, v{S[0]+i}, v{S[0]+i+1}')
    k(f'v_max_f32 v{T}, v{T}, v{S[0]+15}')
    RESTART = k.newlabel('restart')
    k.label(RESTART)
    k(f'v_mov_b32 v{T+1}, v{T}')
    k(f'v_mov_b32 v{vKA}, v{vO16}')
    k(f'v_mov_b32 v{vVA}, v{vVA0}')
    k(f'v_permlane32_swap_b32 v{T}, v{T+1}')
    k(f'ds_read_b128 {v(KF[0],4)}, v{vKA}')
    k(f'ds_read_b128 {v(VF[0],4)}, v{vVA}')
    k(f'ds_read_b128 {v(VF[0]+4,4)}, v{vVA} offset:512')
    k(f'ds_read_b128 {v(KF[1],4)}, v{vKA} offset:1024')
    k(f'v_max_f32 v{T}, v{T}, v{T+1}')
    for i in range(16):
        k(f'v_sub_f32 v{NEGM+i}, 0, v{T}')
    for i in range(16):
        k(f'v_mov_b32 v{O+i}, 0')
    for i in range(8):
        k(f'v_mov_b32 v{VF[1]+i}, 0')
    for i in range(8):
        k(f'v_mov_b32 v{P+i}, 0')
    for i in range(12, 16):
        k(f'v_mov_b32 v{S[1]+i}, 0')
    for i in range(16):
        k(f'v_mov_b32 v{FA+i}, 0')
    k(f's_mov_b32 s{sFT0}, s{sFT0i}')
    k(f's_mov_b32 s{sST}, 1024')
    k(f's_mov_b32 s{sSW}, 16384')
    k(f's_mul_i32 s{sFW}, s{sFB}, 16384')
    k(f's_sub_u32 s{sFW}, s{sFWi}, s{sFW}')
    k('s_waitcnt lgkmcnt(0)')
    k(MFMA(v(S[0],16), v(KF[0],4), v(QF,4), v(NEGM,16)))
    k('s_nop 15')
    def body(dma, prio=None):
        dq = []
        if dma:
            for i in range(2, 8):
                dq.append(i)
        nolds = 'nolds' in EXP
        noffn = 'noffn' in EXP
        k.vm = []
        def MF(*a):
            if 'nomfma' not in EXP: k(MFMA(*a))
        def floadW(j):
            if noffn: return
            if j == 0 and dma: return
            r = FB + 8 * ((j - 1) % 8)
            k(f'buffer_load_dwordx4 {v(r+4,4)}, v{vO16}, s[{SWS}:{SWS+3}], s{sFW} offen')
            k(f's_add_u32 s{sFW}, s{sFW}, s{sSW}')
            if j == 0:
                k(f's_add_u32 s{sA0}, s{sWOB}, 16384')
                k(f's_cmp_lt_u32 s{sIT}, 7')
                k(f's_cselect_b32 s{sFW}, s{sFW}, s{sA0}')
                k(f's_cselect_b32 s{sFT0}, s{sFT0}, s{sWOB}')
                k(f's_cselect_b32 s{sST}, s{sST}, 0x8000')
                k(f's_cselect_b32 s{sSW}, s{sSW}, 0x8000')
        def floadT(q):
            if noffn: return
            r = FB + 8 * q
            k(f'buffer_load_dwordx4 {v(r,4)}, v{vO16}, s[{SWS}:{SWS+3}], s{sFT0} offen')
            k(f's_add_u32 s{sFT0}, s{sFT0}, s{sST}')
        def fmma(q):
            if noffn or dma: return
            r = FB + 8 * q
            k('s_waitcnt vmcnt(14)')
            MF(v(FA,16), v(r+4,4), v(r,4), v(FA,16))
        for j in range(UN):
            b = j & 1
            cur, nxt = S[b], S[b ^ 1]
            e = lambda i: k(f'v_exp_f32 v{cur+i}, v{cur+i}')
            c = lambda i: k(f'v_cvt_pk_bf16_f32 v{P+i}, v{cur+2*i}, v{cur+2*i+1}')
            cp = lambda i: k(f'v_cvt_pk_bf16_f32 v{P+i}, v{nxt+2*i}, v{nxt+2*i+1}')
            e(0)
            if prio is not None and (j == 0 or prio[j] != prio[j-1]):
                k(f's_setprio {prio[j]}')
            if j == UN - 1:
                k(f'v_add_u32 v{vVA}, v{vINC}, v{vVA}')
            cp(6); e(1); e(2)
            floadW(j)
            cp(7); e(3); e(4)
            MF(v(O,16), v(VF[b^1]+4,4), v(P+4,4), v(O,16))
            voff = ((j + 1) % UN) * 1024
            if not nolds: k(f'ds_read_b128 {v(VF[b^1],4)}, v{vVA} offset:{voff}')
            c(0); e(5); e(6); c(1)
            if not nolds: k('s_waitcnt lgkmcnt(1)')
            e(7)
            MF(v(nxt,16), v(KF[b^1],4), v(QF,4), v(NEGM,16))
            if not nolds: k(f'ds_read_b128 {v(VF[b^1]+4,4)}, v{vVA} offset:{voff+512}')
            e(8); c(2); e(9); e(10); c(3); e(11)
            if dq and j < 6:
                dma_round(dq.pop(0))
            e(12)
            MF(v(O,16), v(VF[b],4), v(P,4), v(O,16))
            if not nolds: k(f'ds_read_b128 {v(KF[b],4)}, v{vKA} offset:{(j+2)*1024}')
            c(4); e(13)
            if j == UN - 1:
                k(f'v_add_u32 v{vKA}, {UN*1024}, v{vKA}')
            e(14); c(5)
            fmma(j)
            floadT(j)
            if j == UN - 1:
                k(f's_add_u32 s{sIT}, s{sIT}, 1')
                k(f's_cmp_lt_u32 s{sIT}, {64//UN}')
            e(15)
    FIRST = k.newlabel('first'); LOOP = k.newlabel('loop'); LOOP2 = k.newlabel('loop2'); AFTER = k.newlabel('after'); R2 = k.newlabel('r2')
    k(f's_mov_b32 s{sIT}, 0')
    k(f's_cmp_eq_u32 s{sFB}, 1')
    k(f's_cbranch_scc1 {LOOP}')
    nh = int(os.environ.get('NH', '6'))
    if nh >= 0:
        k(f's_cmp_ge_u32 s{sW}, 4')
        k(f's_cbranch_scc1 {R2}')
    body(True)
    k('s_waitcnt vmcnt(0)')
    k('s_barrier')
    k.label(LOOP)
    body(False)
    k(f's_cbranch_scc1 {LOOP}')
    if nh >= 0:
        k(f's_branch {AFTER}')
        k.label(R2)
        pr = [1] * nh + [0] * (UN - nh)
        body(True, pr)
        k('s_waitcnt vmcnt(0)')
        k('s_barrier')
        k.label(LOOP2)
        body(False, pr)
        k(f's_cbranch_scc1 {LOOP2}')
        k('s_setprio 0')
        k.label(AFTER)
    k('s_nop 1')
    k(f'v_cvt_pk_bf16_f32 v{P+6}, v{S[1]+12}, v{S[1]+13}')
    k(f'v_cvt_pk_bf16_f32 v{P+7}, v{S[1]+14}, v{S[1]+15}')
    k('s_nop 1')
    k(MFMA(v(O,16), v(VF[1]+4,4), v(P+4,4), v(O,16)))
    k('s_waitcnt lgkmcnt(0)')
    k('s_nop 15')
    k.stamp()
    k(f'v_mov_b32 v{T}, v{O+8}')
    k(f'v_mov_b32 v{T+1}, v{O+8}')
    k('s_nop 1')
    k(f'v_permlane32_swap_b32 v{T}, v{T+1}')
    k('s_nop 1')
    DONE = k.newlabel('done')
    k(f's_cmp_eq_u32 s{sFB}, 1')
    k(f's_cbranch_scc1 {DONE}')
    if EXP != ['']: k(f's_branch {DONE}')
    k(f'v_mov_b32 v{T+2}, {fhex(2.0**40)}')
    k(f'v_cmp_nlt_f32 vcc, v{T}, v{T+2}')
    k(f'v_mov_b32 v{T+1}, 0x207')
    for i in range(8):
        k(f'v_cmp_class_f32 s[26:27], v{O+i}, v{T+1}')
        k('s_or_b64 vcc, vcc, s[26:27]')
    k('s_cmp_eq_u64 vcc, 0')
    k(f's_cbranch_scc1 {DONE}')
    k(f's_mov_b32 s{sFB}, 1')
    k(f'v_mov_b32 v{vKA}, v{vO16}')
    k(f'v_mov_b32 v{T}, 0xff800000')
    k(f's_mov_b32 s{sIT}, 0')
    FL = k.newlabel('fbloop')
    k.label(FL)
    k(f'ds_read_b128 {v(KF[0],4)}, v{vKA}')
    k('s_waitcnt lgkmcnt(0)')
    k(MFMA(v(S[0],16), v(KF[0],4), v(QF,4), '0'))
    k('s_nop 15')
    for i in range(0, 16, 2):
        k(f'v_max3_f32 v{T}, v{T}, v{S[0]+i}, v{S[0]+i+1}')
    k(f'v_add_u32 v{vKA}, 0x400, v{vKA}')
    k(f's_add_u32 s{sIT}, s{sIT}, 1')
    k(f's_cmp_lt_u32 s{sIT}, 64')
    k(f's_cbranch_scc1 {FL}')
    k('s_waitcnt vmcnt(0)')
    for i in range(64):
        k(f'v_mov_b32 v{FB+i}, 0')
    k(f's_branch {RESTART}')
    k.label(DONE)
    k(f'v_rcp_f32 v{T}, v{T}')
    k('s_nop 0')
    for i in range(8):
        k(f'v_mul_f32 v{O+i}, v{O+i}, v{T}')
    for i in range(4):
        k(f'v_cvt_pk_bf16_f32 v{T+4+i}, v{O+2*i}, v{O+2*i+1}')
    k(f's_mul_i32 s{sT0}, s{sQT}, 144')
    k(f's_add_u32 s{sT0}, s{sT0}, s{sHEAD}')
    k(f's_lshl_b32 s{sT0}, s{sT0}, 10')
    k(f's_add_u32 s{sT0}, s{sT0}, {WS_TF:#x}')
    k(f'buffer_store_dwordx4 {v(T+4,4)}, v{vO16}, s[{SWS}:{SWS+3}], s{sT0} offen {OSF}')
    k.stamp(real=('r' in DBG))
    WOF, OF, XR = FB, 16, 80
    SX, SO, SD = 40, 44, 48
    sNB, sTT, sKH, sXO = 50, 51, 52, 53
    k('s_load_dwordx2 s[54:55], s[0:1], 0')
    k('s_load_dwordx2 s[56:57], s[0:1], 56')
    k(f's_load_dwordx2 s[{SD}:{SD+1}], s[0:1], 64')
    k(f's_and_b32 s{sNB}, s{sW}, 1')
    k(f's_bfe_u32 s{sTT}, s{sW}, 0x10001')
    k(f's_lshr_b32 s{sKH}, s{sW}, 2')
    k(f'buffer_load_dwordx4 {v(FB+60,4)}, v{vO16}, s[{SWS}:{SWS+3}], s{sFW} offen')
    vXO = T + 8
    k(f'v_and_b32 v{vXO}, 31, v{vLANE}')
    k(f'v_lshlrev_b32 v{vXO}, 10, v{vXO}')
    k(f'v_lshrrev_b32 v{vXO+1}, 5, v{vLANE}')
    k(f'v_lshl_add_u32 v{vXO}, v{vXO+1}, 3, v{vXO}')
    k(f's_lshl_b32 s{sXO}, s{sTB}, 1')
    k(f's_add_u32 s{sXO}, s{sXO}, s{sTT}')
    k(f's_lshl_b32 s{sXO}, s{sXO}, 15')
    k(f's_lshl_b32 s{sA1}, s{sNBP}, 7')
    k(f's_add_u32 s{sXO}, s{sXO}, s{sA1}')
    k(f's_lshl_b32 s{sA1}, s{sNB}, 6')
    k(f's_add_u32 s{sXO}, s{sXO}, s{sA1}')
    k(f's_lshl_b32 s{sA1}, s{sKH}, 5')
    k(f's_add_u32 s{sXO}, s{sXO}, s{sA1}')
    k('s_waitcnt lgkmcnt(0)')
    k.srd(SX, 54, 55, 2048 * 1024)
    k.srd(SO, 56, 57, 2048 * 1024)
    k(f'buffer_load_dwordx2 {v(XR,2)}, v{vXO}, s[{SX}:{SX+3}], s{sXO} offen')
    k(f'buffer_load_dwordx2 {v(XR+2,2)}, v{vXO}, s[{SX}:{SX+3}], s{sXO} offen offset:16')
    k('s_waitcnt vmcnt(3)')
    k('s_barrier')
    k.stamp()
    NOTW0 = k.newlabel('notw0'); POLL = k.newlabel('poll'); PD = k.newlabel('polldone')
    k(f's_cmp_lg_u32 s{sW}, 0')
    k(f's_cbranch_scc1 {NOTW0}')
    k(f's_lshr_b32 s{sA0}, s2, 5')
    k(f's_lshl_b32 s{sA0}, s{sA0}, 10')
    k(f's_add_u32 s{sA0}, s{sA0}, {WS_CNT:#x}')
    k(f'v_lshlrev_b32 v{T}, 8, v{vLANE}')
    k(f'v_mov_b32 v{T+1}, 1')
    k('s_mov_b64 exec, 15')
    k(f'buffer_atomic_add v{T+1}, v{T}, s[{SWS}:{SWS+3}], s{sA0} offen sc1')
    k('s_mov_b64 exec, 1')
    k(f's_lshl_b32 s{sA0}, s{sTB}, 8')
    k(f's_add_u32 s{sA0}, s{sA0}, {WS_CNT:#x}')
    k(f'v_mov_b32 v{T}, 0')
    k(f's_mov_b32 s{sA1}, 0')
    k.label(POLL)
    k(f'buffer_load_dword v{T+1}, v{T}, s[{SWS}:{SWS+3}], s{sA0} offen {POLLF}')
    k('s_waitcnt vmcnt(0)')
    k(f'v_readfirstlane_b32 s{sA2}, v{T+1}')
    k(f's_add_u32 s{sA1}, s{sA1}, 1')
    k(f's_cmp_ge_u32 s{sA2}, 32')
    k(f's_cbranch_scc1 {PD}')
    k(f's_cmp_lt_u32 s{sA1}, {1 << 16}')
    k(f's_sleep {SLP}')
    k(f's_cbranch_scc1 {POLL}')
    k.label(PD)
    k('s_mov_b64 exec, -1')
    k.label(NOTW0)
    k('s_barrier')
    k.stamp()
    if not ODMA:
        k(f's_lshl_b32 s{sA0}, s{sTB}, 1')
        k(f's_add_u32 s{sA0}, s{sA0}, s{sTT}')
        k(f's_mul_i32 s{sA0}, s{sA0}, 144')
        k(f's_lshl_b32 s{sA1}, s{sKH}, 4')
        k(f's_add_u32 s{sA0}, s{sA0}, s{sA1}')
        k(f's_lshl_b32 s{sA0}, s{sA0}, 10')
        k(f's_add_u32 s{sA0}, s{sA0}, {WS_TF:#x}')
        k.vm = []
        for j in range(16):
            if j and j % 4 == 0: k(f's_add_u32 s{sA0}, s{sA0}, 4096')
            k.vmop(f'buffer_load_dwordx4 {v(OF+4*j,4)}, v{vO16}, s[{SWS}:{SWS+3}], s{sA0} offen offset:{(j%4)*1024} {OLF}', j)
        for j in range(16):
            k.vmwait(j)
            k(MFMA(v(FA,16), v(WOF+4*j,4), v(OF+4*j,4), v(FA,16)))
    else:
        k(f's_lshl_b32 s{sA0}, s{sTB}, 1')
        k(f's_add_u32 s{sA0}, s{sA0}, s{sKH}')
        k(f's_mul_i32 s{sA0}, s{sA0}, 144')
        k(f's_and_b32 s{sA1}, s{sW}, 3')
        k(f's_lshl_b32 s{sA1}, s{sA1}, 3')
        k(f's_add_u32 s{sA0}, s{sA0}, s{sA1}')
        k(f's_lshl_b32 s{sA0}, s{sA0}, 10')
        k(f's_add_u32 s{sA0}, s{sA0}, {WS_TF:#x}')
        k(f's_lshl_b32 s{sA1}, s{sW}, 13')
        for j in range(8):
            k(f's_add_u32 m0, s{sA1}, {j*1024}')
            k(f's_add_u32 s{sA2}, s{sA0}, {j*1024}')
            k(f'buffer_load_dwordx4 v{vO16}, s[{SWS}:{SWS+3}], s{sA2} offen {OLF} lds')
        k(f's_lshl_b32 s{sA0}, s{sTT}, 15')
        k(f's_lshl_b32 s{sA1}, s{sKH}, 14')
        k(f's_add_u32 s{sA0}, s{sA0}, s{sA1}')
        k(f'v_add_u32 v{T}, s{sA0}, v{vO16}')
        k('s_waitcnt vmcnt(0)')
        k('s_barrier')
        for j in range(16):
            k(f'ds_read_b128 {v(OF+4*j,4)}, v{T} offset:{j*1024}')
            if j == 7: k('s_waitcnt lgkmcnt(4)')
        for j in range(16):
            k(f's_waitcnt lgkmcnt({min(15, 15 - j)})')
            k(MFMA(v(FA,16), v(WOF+4*j,4), v(OF+4*j,4), v(FA,16)))
    k('s_nop 15')
    k.stamp()
    RED = K2_CONST + 8192 + 256
    k(f's_and_b32 s{sA0}, s{sW}, 3')
    k(f's_lshl_b32 s{sA0}, s{sA0}, 12')
    k(f's_add_u32 s{sA0}, s{sA0}, {RED}')
    k(f'v_add_u32 v{T}, s{sA0}, v{vO16}')
    LO = k.newlabel('lo'); J = k.newlabel('j')
    R = FB
    k(f's_cmp_eq_u32 s{sKH}, 0')
    k(f's_cbranch_scc1 {LO}')
    k(f'ds_write_b128 v{T}, {v(FA,4)}')
    k(f'ds_write_b128 v{T}, {v(FA+4,4)} offset:1024')
    k('s_waitcnt lgkmcnt(0)')
    k('s_barrier')
    k(f'ds_read_b128 {v(R,4)}, v{T} offset:2048')
    k(f'ds_read_b128 {v(R+4,4)}, v{T} offset:3072')
    for i in range(8):
        k(f'v_mov_b32 v{R+8+i}, v{FA+8+i}')
    k(f's_branch {J}')
    k.label(LO)
    k(f'ds_write_b128 v{T}, {v(FA+8,4)} offset:2048')
    k(f'ds_write_b128 v{T}, {v(FA+12,4)} offset:3072')
    k('s_waitcnt lgkmcnt(0)')
    k('s_barrier')
    k(f'ds_read_b128 {v(R,4)}, v{T}')
    k(f'ds_read_b128 {v(R+4,4)}, v{T} offset:1024')
    for i in range(8):
        k(f'v_mov_b32 v{R+8+i}, v{FA+i}')
    k.label(J)
    for i in range(4):
        k(f'v_lshlrev_b32 v{R+16+2*i}, 16, v{XR+i}')
        k(f'v_and_b32 v{R+17+2*i}, 0xffff0000, v{XR+i}')
    for i in range(8):
        k(f'v_add_f32 v{R+8+i}, v{R+8+i}, v{R+16+i}')
    k('s_waitcnt lgkmcnt(0)')
    for i in range(8):
        k(f'v_add_f32 v{R+8+i}, v{R+8+i}, v{R+i}')
    for i in range(4):
        k(f'v_cvt_pk_bf16_f32 v{R+24+i}, v{R+8+2*i}, v{R+8+2*i+1}')
    k(f'buffer_store_dwordx2 {v(R+24,2)}, v{vXO}, s[{SO}:{SO+3}], s{sXO} offen')
    k(f'buffer_store_dwordx2 {v(R+26,2)}, v{vXO}, s[{SO}:{SO+3}], s{sXO} offen offset:16')
    k.stamp()
    if k.st_en:
        k('s_waitcnt vmcnt(0)')
    k.stamp(); k.stamp(real=True)
    k.stamp_dump(1, sW, vtmp=T+9+2)
    k.label(END)
    k('s_endpgm')
    return k.text(208, 100 if DBG else 64)

K3_LDS = 131072
def gen_k3():
    k = Kern('k3_kernel')
    END = 'k3_end'
    SWS, SX, SO = 4, 8, 12
    sW, sTB, sNBP, sT0, sT1, sTO, sWO, sNB, sTT, sKH, sXO, sL = 16, 17, 18, 19, 20, 21, 23, 30, 31, 32, 33, 34
    vLANE, vO16 = 1, 2
    ACC = 16
    BUF = 32
    PI = 96
    XR = 104
    k('s_cmp_ge_u32 s2, 256')
    k(f's_cbranch_scc1 {END}')
    k.stamp_init('3' in DBG)
    k.stamp(); k.stamp(real=True)
    k('s_load_dwordx2 s[28:29], s[0:1], 72')
    k('s_load_dwordx2 s[24:25], s[0:1], 0')
    k('s_load_dwordx2 s[26:27], s[0:1], 56')
    k('v_lshrrev_b32 v2, 6, v0')
    k(f'v_and_b32 v{vLANE}, 63, v0')
    k(f'v_readfirstlane_b32 s{sW}, v2')
    k(f's_and_b32 s{sTB}, s2, 7')
    k(f's_lshr_b32 s{sT0}, s2, 3')
    k(f's_and_b32 s{sT0}, s{sT0}, 3')
    k(f's_lshl_b32 s{sT0}, s{sT0}, 3')
    k(f's_add_u32 s{sTB}, s{sTB}, s{sT0}')
    k(f's_lshr_b32 s{sNBP}, s2, 5')
    k(f'v_lshlrev_b32 v{vO16}, 4, v{vLANE}')
    k(f's_and_b32 s{sNB}, s{sW}, 1')
    k(f's_bfe_u32 s{sTT}, s{sW}, 0x10001')
    k(f's_lshr_b32 s{sKH}, s{sW}, 2')
    k(f's_and_b32 s{sT0}, s{sW}, 3')
    k(f's_lshl_b32 s{sT0}, s{sT0}, 1')
    k(f's_lshl_b32 s{sT1}, s{sKH}, 4')
    k(f's_add_u32 s{sT0}, s{sT0}, s{sT1}')
    k(f's_mul_i32 s{sTO}, s{sTB}, {2*144}')
    k(f's_add_u32 s{sTO}, s{sTO}, s{sT0}')
    k(f's_lshl_b32 s{sTO}, s{sTO}, 10')
    k(f's_add_u32 s{sTO}, s{sTO}, {WS_TF:#x}')
    k(f's_lshl_b32 s{sWO}, s{sT0}, 4')
    k(f's_lshl_b32 s{sT1}, s{sNBP}, 1')
    k(f's_add_u32 s{sWO}, s{sWO}, s{sT1}')
    k(f's_lshl_b32 s{sWO}, s{sWO}, 10')
    k(f's_add_u32 s{sWO}, s{sWO}, {WS_WF:#x}')
    k(f's_lshl_b32 s{sL}, s{sT0}, 10')
    k('s_waitcnt lgkmcnt(0)')
    k.srd(SWS, 28, 29, WS_SIZE)
    for ph in range(2):
        for dk in range(2):
            ks = ph * 8 + dk
            for tt in range(2):
                k(f's_add_u32 m0, s{sL}, {tt*32768 + ks*1024}')
                k(f's_add_u32 s35, s{sTO}, {tt*144*1024 + ks*1024}')
                k.vmop(f'buffer_load_dwordx4 v{vO16}, s[{SWS}:{SWS+3}], s35 offen lds', ph)
            for nb in range(2):
                k(f's_add_u32 m0, s{sL}, {65536 + nb*32768 + ks*1024}')
                k(f's_add_u32 s35, s{sWO}, {ks*16384 + nb*1024}')
                k.vmop(f'buffer_load_dwordx4 v{vO16}, s[{SWS}:{SWS+3}], s35 offen lds', ph)
    k.srd(SX, 24, 25, 2048 * 1024)
    k.srd(SO, 26, 27, 2048 * 1024)
    k(f's_lshl_b32 s{sT0}, s{sTB}, 3')
    k(f's_add_u32 s{sT0}, s{sT0}, s{sNBP}')
    k(f's_lshl_b32 s{sT0}, s{sT0}, 2')
    k(f's_and_b32 s{sT1}, s{sW}, 3')
    k(f's_add_u32 s{sT0}, s{sT0}, s{sT1}')
    k(f's_lshl_b32 s{sT0}, s{sT0}, 12')
    k(f's_lshl_b32 s{sT1}, s{sKH}, 11')
    k(f's_add_u32 s{sT0}, s{sT0}, s{sT1}')
    k(f's_add_u32 s{sT0}, s{sT0}, {WS_PART:#x}')
    k.vmop(f'buffer_load_dwordx4 {v(PI,4)}, v{vO16}, s[{SWS}:{SWS+3}], s{sT0} offen', 'p')
    k.vmop(f'buffer_load_dwordx4 {v(PI+4,4)}, v{vO16}, s[{SWS}:{SWS+3}], s{sT0} offen offset:1024', 'p')
    k(f'v_and_b32 v3, 31, v{vLANE}')
    k(f'v_lshlrev_b32 v3, 10, v3')
    k(f'v_lshrrev_b32 v4, 5, v{vLANE}')
    k(f'v_lshl_add_u32 v3, v4, 3, v3')
    k(f's_lshl_b32 s{sXO}, s{sTB}, 1')
    k(f's_add_u32 s{sXO}, s{sXO}, s{sTT}')
    k(f's_lshl_b32 s{sXO}, s{sXO}, 15')
    k(f's_lshl_b32 s{sT0}, s{sNBP}, 7')
    k(f's_add_u32 s{sXO}, s{sXO}, s{sT0}')
    k(f's_lshl_b32 s{sT0}, s{sNB}, 6')
    k(f's_add_u32 s{sXO}, s{sXO}, s{sT0}')
    k(f's_lshl_b32 s{sT0}, s{sKH}, 5')
    k(f's_add_u32 s{sXO}, s{sXO}, s{sT0}')
    k.vmop(f'buffer_load_dwordx2 {v(XR,2)}, v3, s[{SX}:{SX+3}], s{sXO} offen', 'x')
    k.vmop(f'buffer_load_dwordx2 {v(XR+2,2)}, v3, s[{SX}:{SX+3}], s{sXO} offen offset:16', 'x')
    k(f's_lshl_b32 s{sT0}, s{sTT}, 15')
    k(f's_lshl_b32 s{sT1}, s{sKH}, 14')
    k(f's_add_u32 s{sT0}, s{sT0}, s{sT1}')
    k(f'v_add_u32 v5, s{sT0}, v{vO16}')
    k(f's_lshl_b32 s{sT0}, s{sNB}, 15')
    k(f's_add_u32 s{sT0}, s{sT0}, s{sT1}')
    k(f's_add_u32 s{sT0}, s{sT0}, 65536')
    k(f'v_add_u32 v6, s{sT0}, v{vO16}')
    for i in range(16):
        k(f'v_mov_b32 v{ACC+i}, 0')
    k.stamp()
    for ph in range(2):
        k.vmwait(ph)
        k('s_barrier')
        if ph == 0: k.stamp()
        for j in range(8):
            ks = ph * 8 + j
            k(f'ds_read_b128 {v(BUF+8*j,4)}, v5 offset:{ks*1024}')
            k(f'ds_read_b128 {v(BUF+8*j+4,4)}, v6 offset:{ks*1024}')
            if j == 6: k('s_waitcnt lgkmcnt(12)') if False else None
        for j in range(8):
            k(f's_waitcnt lgkmcnt({min(15, 14 - 2*j)})')
            k(MFMA(v(ACC,16), v(BUF+8*j+4,4), v(BUF+8*j,4), v(ACC,16)))
    k('s_nop 15')
    k.stamp()
    k('s_barrier')
    k(f's_and_b32 s{sT0}, s{sW}, 3')
    k(f's_lshl_b32 s{sT0}, s{sT0}, 12')
    k(f'v_add_u32 v5, s{sT0}, v{vO16}')
    LO = k.newlabel('lo'); J = k.newlabel('j')
    k(f's_cmp_eq_u32 s{sKH}, 0')
    k(f's_cbranch_scc1 {LO}')
    k(f'ds_write_b128 v5, {v(ACC,4)}')
    k(f'ds_write_b128 v5, {v(ACC+4,4)} offset:1024')
    k('s_waitcnt lgkmcnt(0)')
    k('s_barrier')
    k(f'ds_read_b128 {v(BUF,4)}, v5 offset:2048')
    k(f'ds_read_b128 {v(BUF+4,4)}, v5 offset:3072')
    for i in range(8):
        k(f'v_mov_b32 v{BUF+8+i}, v{ACC+8+i}')
    k(f's_branch {J}')
    k.label(LO)
    k(f'ds_write_b128 v5, {v(ACC+8,4)} offset:2048')
    k(f'ds_write_b128 v5, {v(ACC+12,4)} offset:3072')
    k('s_waitcnt lgkmcnt(0)')
    k('s_barrier')
    k(f'ds_read_b128 {v(BUF,4)}, v5')
    k(f'ds_read_b128 {v(BUF+4,4)}, v5 offset:1024')
    for i in range(8):
        k(f'v_mov_b32 v{BUF+8+i}, v{ACC+i}')
    k.label(J)
    k('s_waitcnt vmcnt(0)')
    for i in range(4):
        k(f'v_lshlrev_b32 v{BUF+16+2*i}, 16, v{XR+i}')
        k(f'v_and_b32 v{BUF+17+2*i}, 0xffff0000, v{XR+i}')
    for i in range(8):
        k(f'v_add_f32 v{PI+i}, v{PI+i}, v{BUF+16+i}')
        k(f'v_add_f32 v{PI+i}, v{PI+i}, v{BUF+8+i}')
    k('s_waitcnt lgkmcnt(0)')
    for i in range(8):
        k(f'v_add_f32 v{PI+i}, v{PI+i}, v{BUF+i}')
    for i in range(4):
        k(f'v_cvt_pk_bf16_f32 v{BUF+24+i}, v{PI+2*i}, v{PI+2*i+1}')
    k(f'buffer_store_dwordx2 {v(BUF+24,2)}, v3, s[{SO}:{SO+3}], s{sXO} offen')
    k(f'buffer_store_dwordx2 {v(BUF+26,2)}, v3, s[{SO}:{SO+3}], s{sXO} offen offset:16')
    k.stamp()
    if k.st_en:
        k('s_waitcnt vmcnt(0)')
    k.stamp(); k.stamp(real=True)
    k.stamp_dump(2, sW, vtmp=3)
    k.label(END)
    k('s_endpgm')
    return k.text(112, 100 if DBG else 40)

HEADER = open('parallel_sum__mha_block__dense_activation_mish__prompt.s.ref').read().split('; Override launch')[0]

def main(out):
    t1, d1 = gen_k1()
    t2, d2 = gen_k2()
    s = HEADER
    s += f'; @launch kernel=k1_kernel grid=(256,1,1) block=(768,1,1) lds={K1_LDS}\n'
    s += f'; @launch kernel=k2_kernel grid=(256,1,1) block=(512,1,1) lds={K2_LDS}\n'
    s += '.amdgcn_target "amdgcn-amd-amdhsa--gfx950"\n'
    s += t1 + t2 + d1 + d2
    open(out, 'w').write(s)

if __name__ == '__main__':
    main(sys.argv[1] if len(sys.argv) > 1 else 'parallel_sum__mha_block__dense_activation_mish__prompt.s')
```

```python
import math, sys, os
DBG = os.environ.get('DBG', '')
EXP = os.environ.get('EXP', '').split(',')
ST1 = os.environ.get('ST1', 'sc0 sc1')
ST2 = os.environ.get('ST2', '')
POLLF = os.environ.get('POLLF', 'sc1')
OLF = os.environ.get('OLF', 'sc1')
OSF = os.environ.get('OSF', 'sc0 sc1')
ODMA = os.environ.get('ODMA', '')
SLP = int(os.environ.get('SLP', '4'))
from asmlib import *

LOG2E = 1.4426950408889634
LN2 = 0.6931471805599453
QSCALE = 0.25 * LOG2E

WS_QKV = 0
WS_TF = 0x600000
WS_WF = 0xF00000
WS_PART = 0x1200000
WS_CNT = 0x1180000
WS_SIZE = 0x10000000

def MFMA(d, A, B, C):
    return f'v_mfma_f32_32x32x16_bf16 {d}, {A}, {B}, {C}'

XSL, NXS = 16384, 3
WSL, NWS = 16384, 6
WRB = XSL * NXS
MISC = WRB + WSL * NWS
L_SW = MISC
L_RSUM = MISC + 1024
L_BIAS = MISC + 2048
L_PRIV = MISC + 2560
K1_LDS = MISC + 2560 + 1024

def gen_k1():
    k = Kern('k1_kernel')
    def BAR():
        if 'nobar' not in EXP: k('s_barrier')
    END = 'k1_end'
    SX, SW_, SWS, SSZ, SB, SWQ = 4, 8, 12, 16, 20, 64
    sW, sRB, sCH, sRBK, sCG = 24, 25, 26, 27, 28
    sC, sXD, sWD, sXO, sFO, sQO, sT0, sT1, sT2 = 29, 30, 31, 32, 33, 34, 53, 54, 55
    sXR, sWR = 56, 63
    sFB, sQB, sTA = 57, 58, 59
    sZD = [60, 61, 62]
    sTB, sSA, sSB, sIDX, sNF, sD1, sD2 = 42, 43, 52, 68, 69, 70, 71
    vTID, vLANE, vH, vN = 0, 1, 8, 9
    k(f's_cmp_ge_u32 s2, 256')
    k(f's_cbranch_scc1 {END}')
    k.stamp_init('1' in DBG, sbase=74)
    k.stamp(); k.stamp(real=True)
    k('s_load_dwordx4 s[36:39], s[0:1], 0')
    k('s_load_dwordx4 s[44:47], s[0:1], 32')
    k('s_load_dwordx2 s[40:41], s[0:1], 16')
    k('s_load_dwordx2 s[48:49], s[0:1], 48')
    k('s_load_dwordx2 s[50:51], s[0:1], 72')
    k(f'v_lshrrev_b32 v2, 6, v0')
    k(f'v_and_b32 v{vLANE}, 63, v0')
    k(f'v_readfirstlane_b32 s{sW}, v2')
    k(f'v_lshrrev_b32 v{vH}, 5, v{vLANE}')
    k(f'v_and_b32 v{vN}, 31, v{vLANE}')
    k(f's_and_b32 s{sT0}, s2, 7')
    k(f's_lshr_b32 s{sT1}, s2, 3')
    k(f's_and_b32 s{sRBK}, s{sT0}, 1')
    k(f's_lshl_b32 s{sRBK}, s{sRBK}, 3')
    k(f's_and_b32 s{sT2}, s{sT1}, 7')
    k(f's_add_u32 s{sRBK}, s{sRBK}, s{sT2}')
    k(f's_lshr_b32 s{sCG}, s{sT0}, 1')
    k(f's_mul_i32 s{sFB}, s{sCG}, 14')
    k(f's_lshl_b32 s{sCG}, s{sCG}, 2')
    k(f's_lshr_b32 s{sT2}, s{sT1}, 3')
    k(f's_add_u32 s{sCG}, s{sCG}, s{sT2}')
    k(f's_lshl_b32 s{sT0}, s{sT2}, 2')
    k(f's_add_u32 s{sFB}, s{sFB}, s{sT0}')
    k(f's_cmp_eq_u32 s{sT2}, 3')
    k(f's_cselect_b32 s{sNF}, 2, 4')
    k(f's_and_b32 s{sRB}, s{sW}, 3')
    k(f's_lshr_b32 s{sCH}, s{sW}, 2')
    k(f's_mul_i32 s{sQB}, s{sCG}, 3')
    PROD = k.newlabel('prod'); ROLE1 = k.newlabel('role1')
    k(f's_cmp_eq_u32 s{sCH}, 2')
    k(f's_cbranch_scc1 {PROD}')
    k(f'v_bfe_u32 v2, v{vN}, 1, 3')
    k(f'v_xor_b32 v2, v2, v{vH}')
    k(f'v_lshlrev_b32 v2, 4, v2')
    k(f'v_lshl_add_u32 v4, v{vN}, 7, v2')
    k(f'v_bfe_u32 v6, v{vLANE}, 2, 2')
    k(f'v_lshl_add_u32 v5, v{vH}, 3, v6')
    k(f'v_lshlrev_b32 v5, 8, v5')
    k(f'v_bfe_u32 v7, v{vLANE}, 4, 1')
    k(f'v_lshl_add_u32 v5, v7, 5, v5')
    k(f'v_and_b32 v7, 3, v{vLANE}')
    k(f'v_lshl_add_u32 v5, v7, 3, v5')
    k(f'v_add_u32 v5, {WRB}, v5')
    SEL, CS, ACC = 24, 28, 32
    vX, vW = 10, 18
    XA, XB = [96, 100], [104, 108]
    WSET = [112, 124]
    CW = 136
    k(f'v_mov_b32 v2, 0')
    k(f'v_mov_b32 v3, 0x3f803f80')
    k(f'v_cmp_eq_u32 vcc, 0, v{vN}')
    k(f'v_cmp_eq_u32 s[72:73], 17, v{vN}')
    k('s_nop 1')
    k('s_or_b64 vcc, vcc, s[72:73]')
    k('s_nop 1')
    k(f'v_cndmask_b32 v{SEL}, v2, v3, vcc')
    for i in range(1, 4):
        k(f'v_mov_b32 v{SEL+i}, v{SEL}')
    k(f's_mov_b32 s{sXR}, 0')
    k(f's_mov_b32 s{sWR}, 0')
    k(f's_lshl_b32 s{sIDX}, s{sRB}, 2')
    k('s_waitcnt lgkmcnt(0)')
    k.srd(SWS, 50, 51, WS_SIZE)
    k(f's_cmp_eq_u32 s{sCH}, 1')
    k(f's_cbranch_scc1 {ROLE1}')

    def f_epilogue(stile, accs):
        k(f's_lshl_b32 s{sT0}, s{stile}, 7')
        k(f'v_lshlrev_b32 v4, 2, v{vN}')
        k(f'v_add_u32 v4, s{sT0}, v4')
        k(f'v_add_u32 v4, {L_RSUM}, v4')
        k(f'ds_read_b32 v10, v4')
        k(f'ds_read_b32 v11, v4 offset:512')
        RL, RML, TWO, C2, LN2P = 14, 16, 22, 24, 26
        k(f'v_mov_b32 v{TWO}, 2.0'); k(f'v_mov_b32 v{TWO+1}, 2.0')
        k(f'v_mov_b32 v{C2}, {fhex(-2*LN2)}'); k(f'v_mov_b32 v{C2+1}, {fhex(-2*LN2)}')
        k(f'v_mov_b32 v{LN2P}, {fhex(LN2)}'); k(f'v_mov_b32 v{LN2P+1}, {fhex(LN2)}')
        VEC = [[96, 112], [128, 144]]
        TU, E, TT = 112, 96, 160
        for wj, ss in enumerate((sSA, sSB)):
            k(f's_lshl_b32 s{sT0}, s{ss}, 7')
            k(f'v_add_u32 v7, s{sT0}, v5')
            for g_ in range(4):
                k(f'ds_read_b128 {v(VEC[wj][0]+4*g_,4)}, v7 offset:{g_*32}')
                k(f'ds_read_b128 {v(VEC[wj][1]+4*g_,4)}, v7 offset:{L_BIAS - L_SW + g_*32}')
            if wj == 0: k('s_waitcnt lgkmcnt(8)')
            if wj == 0:
                for d in range(2):
                    k(f'v_mul_f32 v{RL+d}, {fhex(LOG2E)}, v10')
                    k(f'v_mul_f32 v{RML+d}, {fhex(LOG2E)}, v11')
        P2 = lambda r: v(r, 2)
        SKS = k.newlabel('noslot')
        k(f's_cmp_ge_u32 s{sSA}, s{sNF}')
        k(f's_cbranch_scc1 {SKS}')
        for wj, ss in enumerate((sSA, sSB)):
            A = accs[wj]
            SWV, CLV = VEC[wj]
            k(f's_add_u32 s{sT0}, s{sC}, s{stile}')
            k(f's_mul_i32 s{sT0}, s{sT0}, 144')
            k(f's_add_u32 s{sT1}, s{sFB}, s{ss}')
            k(f's_lshl_b32 s{sT1}, s{sT1}, 1')
            k(f's_add_u32 s{sT0}, s{sT0}, s{sT1}')
            k(f's_add_u32 s{sT0}, s{sT0}, 32')
            k(f's_lshl_b32 s{sT0}, s{sT0}, 10')
            k(f's_add_u32 s{sD1}, s{sT0}, {WS_TF:#x}')
            k(f's_waitcnt lgkmcnt({8 if wj == 0 else 0})')
            for i in range(0, 16, 2):
                k(f'v_pk_fma_f32 {P2(CLV+i)}, {P2(RML)}, {P2(SWV+i)}, {P2(CLV+i)} neg_lo:[1,0,0] neg_hi:[1,0,0]')
            for i in range(0, 16, 2):
                k(f'v_pk_fma_f32 {P2(A+i)}, {P2(A+i)}, {P2(RL)}, {P2(CLV+i)}')
            for i in range(16):
                k(f'v_exp_f32 v{SWV+i}, v{A+i}')
            for i in range(0, 16, 2):
                k(f'v_pk_add_f32 {P2(CLV+i)}, {P2(SWV+i)}, {P2(TWO)}')
            for i in range(0, 16, 2):
                k(f'v_pk_fma_f32 {P2(SWV+i)}, {P2(SWV+i)}, {P2(CLV+i)}, {P2(TWO)}')
            for i in range(16):
                k(f'v_rcp_f32 v{SWV+i}, v{SWV+i}')
            for i in range(0, 16, 2):
                k(f'v_pk_fma_f32 {P2(SWV+i)}, {P2(SWV+i)}, {P2(C2)}, {P2(LN2P)}')
            for i in range(0, 16, 2):
                k(f'v_pk_mul_f32 {P2(A+i)}, {P2(A+i)}, {P2(SWV+i)}')
            for i in range(8):
                k(f'v_cvt_pk_bf16_f32 v{TT+i}, v{A+2*i}, v{A+2*i+1}')
            k(f'buffer_store_dwordx4 {v(TT,4)}, v6, s[{SWS}:{SWS+3}], s{sD1} offen {ST1}')
            k(f'buffer_store_dwordx4 {v(TT+4,4)}, v6, s[{SWS}:{SWS+3}], s{sD1} offen offset:1024 {ST1}')
            k('s_nop 1')
        k.label(SKS)

    def role(rid, types):
        WB_ = 0 if rid == 0 else 8192
        rot = (rid == 1 and len(set(types)) == 1)
        if rid == 0:
            k.srd(SB, 46, 47, 1792 * 2)
            k(f's_lshl_b32 s{sT0}, s{sFB}, 6')
            k(f'v_lshlrev_b32 v2, 1, v{vTID}')
            k(f'buffer_load_ushort v21, v2, s[{SB}:{SB+3}], s{sT0} offen')
            k(f's_lshr_b32 s{sT0}, s{sW}, 1')
            k(f's_and_b32 s{sT1}, s{sW}, 1')
            k(f's_lshl_b32 s{sTA}, s{sT0}, 1')
            k(f's_or_b32 s{sTA}, s{sTA}, s{sT1}')
            k(f's_xor_b32 s{sTB}, s{sTA}, 1')
            k(f's_lshl_b32 s{sSA}, s{sT1}, 1')
            k(f's_or_b32 s{sSA}, s{sSA}, s{sT0}')
            k(f's_xor_b32 s{sSB}, s{sSA}, 1')
            nx, nwf = 2, 2
            for i, st_ in enumerate((sTA, sTB)):
                k(f's_lshl_b32 s{sT0}, s{st_}, 12')
                k(f'v_add_u32 v{vX+4*i}, s{sT0}, v4')
                for kk in range(1, 4):
                    k(f'v_xor_b32 v{vX+4*i+kk}, {kk*32}, v{vX+4*i}')
            for j, ss in enumerate((sSA, sSB)):
                k(f'v_xor_b32 v7, s{ss}, v6')
                k(f'v_lshl_add_u32 v{vW+j}, v7, 6, v5')
            tiles = [(0, 0), (0, 1), (1, 0), (1, 1)]
        else:
            k(f's_mov_b32 s{sTA}, s{sRB}')
            nx, nwf = 1, 3
            k(f's_lshl_b32 s{sT0}, s{sRB}, 12')
            k(f'v_add_u32 v{vX}, s{sT0}, v4')
            for kk in range(1, 4):
                k(f'v_xor_b32 v{vX+kk}, {kk*32}, v{vX}')
            SL = [sSA, sSB, sTB]
            for j in range(3):
                if rot:
                    k(f's_add_u32 s{SL[j]}, s{sRB}, {j}')
                    k(f's_cmp_ge_u32 s{SL[j]}, 3')
                    k(f's_cselect_b32 s{sT0}, 3, 0')
                    k(f's_sub_u32 s{SL[j]}, s{SL[j]}, s{sT0}')
                    k(f's_cmp_ge_u32 s{SL[j]}, 3')
                    k(f's_cselect_b32 s{sT0}, 3, 0')
                    k(f's_sub_u32 s{SL[j]}, s{SL[j]}, s{sT0}')
                else:
                    k(f's_mov_b32 s{SL[j]}, {j}')
                k(f'v_xor_b32 v7, s{SL[j]}, v6')
                k(f'v_lshl_add_u32 v{vW+j}, v7, 6, v5')
            tiles = [(0, 0), (0, 1), (0, 2)]
        nt = len(tiles)
        XR = [XA, XB]
        for i in range(16 * nt):
            k(f'v_mov_b32 v{ACC+i}, 0')
        for i in range(4):
            k(f'v_mov_b32 v{CS+i}, 0')
        def rd_list(kk, ks, st):
            off = WB_ + ks * 4096
            def xr(i): return [f'ds_read_b128 {v(XR[i][st],4)}, v{vX+4*i+kk}']
            def wr(j): return [f'ds_read_b64_tr_b16 {v(WSET[st]+4*j,2)}, v{vW+j} offset:{off}',
                               f'ds_read_b64_tr_b16 {v(WSET[st]+4*j+2,2)}, v{vW+j} offset:{off+1024}']
            if rid == 0: return xr(0) + wr(0) + wr(1) + xr(1)
            return xr(0) + wr(0) + wr(1) + wr(2)
        need = [3, 5, 6, 6] if rid == 0 else [3, 5, 7]
        NOLD = 6 if rid == 0 else 7
        def advW():
            L = [f's_add_u32 s{sWR}, s{sWR}, {WSL}', f's_cmp_eq_u32 s{sWR}, {NWS*WSL}',
                 f's_mov_b32 s{sT2}, {WSL}', f's_cselect_b32 s{sT2}, {(WSL - NWS*WSL) & 0xffffffff:#x}, s{sT2}', f's_cselect_b32 s{sWR}, 0, s{sWR}']
            for j in range(nwf):
                L.append(f'v_add_u32 v{vW+j}, s{sT2}, v{vW+j}')
            return L
        def advX():
            L = [f's_add_u32 s{sXR}, s{sXR}, {XSL}', f's_cmp_eq_u32 s{sXR}, {NXS*XSL}',
                 f's_mov_b32 s{sT1}, {XSL}', f's_cselect_b32 s{sT1}, {(XSL - NXS*XSL) & 0xffffffff:#x}, s{sT1}', f's_cselect_b32 s{sXR}, 0, s{sXR}']
            for i in range(4 * nx):
                L.append(f'v_add_u32 v{vX+i}, s{sT1}, v{vX+i}')
            return L
        def kstep(st, nxt_reads, pre=(), post=()):
            if 'nocomp' in EXP:
                for s_ in post: k(s_)
                return
            rl = list(nxt_reads)
            if 'nolds1' in EXP: rl = []
            pre = list(pre)
            per = (len(rl) + nt - 1) // nt
            pper = (len(pre) + nt - 2) // (nt - 1) if pre else 0
            new = 0
            for t, (xi, wj) in enumerate(tiles):
                X = v(XR[xi][st], 4); W = v(WSET[st] + 4 * wj, 4); A = v(ACC + 16 * t, 16)
                k(f's_waitcnt lgkmcnt({NOLD - need[t] + new})')
                ty = 'T' if rid == 0 else types[t]
                if ty == 'N': k(MFMA(A, X, W, A))
                else: k(MFMA(A, W, X, A))
                if t == 0:
                    for s_ in pre: k(s_)
                for _ in range(per):
                    if rl:
                        k(rl.pop(0)); new += 1
                if 'nodot' not in EXP and 'noh' not in EXP:
                    if t == 1 and (rid == 0 or rot):
                        k(f'v_mfma_f32_16x16x32_bf16 {v(CS,4)}, {v(SEL,4)}, {v(WSET[st],4)}, {v(CS,4)}')
                    if rid == 1 and not rot and t == 2:
                        k(f's_set_gpr_idx_on s{sIDX}, gpr_idx(SRC0)')
                        k('s_nop 0')
                        for r in range(4):
                            k(f'v_mov_b32 v{CW+r}, v{WSET[st]+r}')
                        k('s_set_gpr_idx_off')
                        k('s_nop 1')
                        k(f'v_mfma_f32_16x16x32_bf16 {v(CS,4)}, {v(SEL,4)}, {v(CW,4)}, {v(CS,4)}')
            for s_ in post: k(s_)
            assert not rl
        def iteration(par, post=()):
            if 'bartop' in EXP: BAR()
            kstep(0, rd_list(2 * par + 1, 1, 1))
            pre = ([] if 'bartop' in EXP else ['s_barrier']) + advW() + (advX() if par == 1 else [])
            kstep(1, rd_list((2 * par + 2) % 4, 0, 0), pre=pre, post=post)
        k.stamp()
        BAR()
        k.stamp()
        for t in rd_list(0, 0, 0): k(t)
        LOOP = k.newlabel('loop')
        k(f's_mov_b32 s{sC}, 0')
        k.label(LOOP)
        iteration(0)
        iteration(1, post=[f's_add_u32 s{sC}, s{sC}, 1', f's_cmp_lt_u32 s{sC}, 8'])
        k(f's_cbranch_scc1 {LOOP}')
        k('s_nop 7')
        k.stamp()
        NS = k.newlabel('nosw')
        if rid == 0:
            k(f's_lshl_b32 s{sT0}, s{sSA}, 7')
            k(f's_add_u32 s{sT0}, s{sT0}, {L_SW}')
        elif rot:
            k(f's_lshl_b32 s{sT0}, s{sSA}, 7')
            k(f's_add_u32 s{sT0}, s{sT0}, {L_SW + 512}')
        else:
            k(f's_cmp_eq_u32 s{sRB}, 3')
            k(f's_cbranch_scc1 {NS}')
            k(f's_lshl_b32 s{sT0}, s{sRB}, 7')
            k(f's_add_u32 s{sT0}, s{sT0}, {L_SW + 512}')
        k(f'v_lshlrev_b32 v3, 2, v{vLANE}')
        k(f'v_add_u32 v3, s{sT0}, v3')
        k('s_mov_b64 exec, 0xffff')
        k(f'ds_write_b32 v3, v{CS}')
        k(f'ds_write_b32 v3, v{CS+1} offset:64')
        k('s_mov_b64 exec, -1')
        k.label(NS)
        if rid == 0:
            k(f's_lshr_b32 s{sT0}, s{sW}, 1')
            k(f's_lshl_b32 s{sT0}, s{sT0}, 15')
            k(f's_and_b32 s{sT1}, s{sW}, 1')
            k(f's_lshl_b32 s{sT1}, s{sT1}, 13')
            k(f's_add_u32 s{sT0}, s{sT0}, s{sT1}')
            k(f'v_lshlrev_b32 v3, 4, v{vLANE}')
            k(f'v_add_u32 v3, s{sT0}, v3')
            for q in range(8):
                k(f'ds_write_b128 v3, {v(ACC+32+4*q,4)} offset:{q*1024}')
            NB = k.newlabel('nobias')
            k(f's_cmp_ge_u32 s{sW}, 2')
            k(f's_cbranch_scc1 {NB}')
            k('s_waitcnt vmcnt(0)')
            k(f'v_lshlrev_b32 v3, 16, v21')
            k(f'v_mul_f32 v3, {fhex(LOG2E)}, v3')
            k(f'v_lshlrev_b32 v4, 2, v{vTID}')
            k(f'v_add_u32 v4, {L_BIAS}, v4')
            k(f'ds_write_b32 v4, v3')
            k.label(NB)
        k('s_waitcnt lgkmcnt(0)')
        BAR()
        k.stamp()
        def tokstats_issue(stile, r0):
            k(f's_lshl_b32 s{sT0}, s{stile}, 7')
            k(f'v_lshlrev_b32 v4, 2, v{vN}')
            k(f'v_add_u32 v4, s{sT0}, v4')
            k(f'v_add_u32 v4, {L_RSUM}, v4')
            k(f'ds_read_b32 v{r0}, v4')
            k(f'ds_read_b32 v{r0+1}, v4 offset:512')
        k(f'v_lshlrev_b32 v5, 4, v{vH}')
        k(f'v_add_u32 v5, {L_SW}, v5')
        k(f'v_lshlrev_b32 v6, 4, v{vLANE}')
        k(f's_lshl_b32 s{sC}, s{sRBK}, 2')
        if rid == 0:
            f_epilogue(sTA, [ACC, ACC + 16])
        else:
            k('s_setprio 2')
            vR, vRM = 10, 11
            tokstats_issue(sTA, 10)
            if 'N' in types:
                k(f's_lshl_b32 s{sT0}, s{sTA}, 7')
                k(f'v_lshlrev_b32 v7, 4, v{vH}')
                k(f'v_add_u32 v7, s{sT0}, v7')
                k(f'v_add_u32 v7, {L_RSUM}, v7')
                for g_ in range(4):
                    k(f'ds_read_b128 {v(120+4*g_,4)}, v7 offset:{g_*32}')
                    k(f'ds_read_b128 {v(136+4*g_,4)}, v7 offset:{g_*32 + 512}')
                k(f'v_lshrrev_b32 v12, 4, v{vN}')
                k(f'v_lshlrev_b32 v12, 16, v12')
                k(f'v_lshl_add_u32 v12, v{vH}, 8, v12')
                k(f'v_and_b32 v13, 15, v{vN}')
                k(f'v_lshl_add_u32 v12, v13, 4, v12')
            k(f's_add_u32 s{sD1}, s{sC}, s{sTA}')
            SL = [sSA, sSB, sTB]
            CV = [80, 96, 152]
            for j in range(3):
                k(f's_lshl_b32 s{sD2}, s{SL[j]}, 7')
                if types[j] == 'T':
                    k(f'v_add_u32 v7, s{sD2}, v5')
                    for g_ in range(4):
                        k(f'ds_read_b128 {v(CV[j]+4*g_,4)}, v7 offset:{512 + g_*32}')
                else:
                    k(f'v_lshlrev_b32 v13, 2, v{vN}')
                    k(f'v_add_u32 v13, s{sD2}, v13')
                    k(f'v_add_u32 v13, {L_SW + 512}, v13')
                    k(f'ds_read_b32 v{16+j}, v13')
                if j == 1: k('s_waitcnt lgkmcnt(8)')
            k('s_waitcnt lgkmcnt(0)')
            for j in range(3):
                A = ACC + 16 * j
                T = 112
                k(f's_add_u32 s{sT1}, s{sQB}, s{SL[j]}')
                k(f's_lshl_b32 s{sT0}, s{sT1}, 17')
                k(f's_lshl_b32 s{sT2}, s{sD1}, 10')
                k(f's_add_u32 s{sT0}, s{sT0}, s{sT2}')
                if types[j] == 'T':
                    SWR = CV[j]
                    k(f's_cmp_lt_u32 s{sT1}, 16')
                    k(f's_cselect_b32 s{sD2}, {fhex(QSCALE)}, 1.0')
                    k(f'v_mul_f32 v14, s{sD2}, v{vR}')
                    k(f'v_mul_f32 v15, s{sD2}, v{vRM}')
                    for i in range(16):
                        k(f'v_mul_f32 v{SWR+i}, v15, v{SWR+i}')
                    for i in range(16):
                        k(f'v_fma_f32 v{A+i}, v{A+i}, v14, -v{SWR+i}')
                    for i in range(8):
                        k(f'v_cvt_pk_bf16_f32 v{T+i}, v{A+2*i}, v{A+2*i+1}')
                    k(f's_add_u32 s{sT2}, s{sT0}, 0x10000')
                    k(f'buffer_store_dwordx4 {v(T,4)}, v6, s[{SWS}:{SWS+3}], s{sT0} offen {ST1}')
                    k(f'buffer_store_dwordx4 {v(T+4,4)}, v6, s[{SWS}:{SWS+3}], s{sT2} offen {ST1}')
                    k('s_nop 1')
                else:
                    SWR = 80
                    for i in range(16):
                        k(f'v_mul_f32 v{SWR+i}, v{16+j}, v{136+i}')
                    for i in range(16):
                        k(f'v_fma_f32 v{A+i}, v{A+i}, v{120+i}, -v{SWR+i}')
                    for i in range(8):
                        k(f'v_cvt_pk_bf16_f32 v{T+i}, v{A+2*i}, v{A+2*i+1}')
                    k(f'buffer_store_dwordx4 {v(T,4)}, v12, s[{SWS}:{SWS+3}], s{sT0} offen {ST1}')
                    k(f'buffer_store_dwordx4 {v(T+4,4)}, v12, s[{SWS}:{SWS+3}], s{sT0} offen offset:512 {ST1}')
                    k('s_nop 1')
        k.stamp()
        if k.st_en:
            k('s_waitcnt vmcnt(0)')
        k.stamp(); k.stamp(real=True)
        k.stamp_dump(0, sW, vtmp=3)
        k('s_endpgm')

    n0 = k.st_n
    role(0, None)
    k.label(ROLE1)
    V1 = k.newlabel('ttn'); V2 = k.newlabel('nnn')
    k(f's_cmp_eq_u32 s{sCG}, 10')
    k(f's_cbranch_scc1 {V1}')
    k(f's_cmp_gt_u32 s{sCG}, 10')
    k(f's_cbranch_scc1 {V2}')
    k.st_n = n0
    role(1, ['T', 'T', 'T'])
    k.label(V1)
    k.st_n = n0
    role(1, ['T', 'T', 'N'])
    k.label(V2)
    k.st_n = n0
    role(1, ['N', 'N', 'N'])

    k.label(PROD)
    k.st_n = n0
    if os.environ.get('PPRIO'): k(f's_setprio {os.environ["PPRIO"]}')
    vOX0, vOX1, vOF, vOQ = 10, 11, 12, 13
    vXs = 14
    XF = [20, 24]
    TMP = 28
    RS = 36
    SWZ = [40, 48, 56]
    vZ1, vZ2 = 64, 65
    k(f'v_lshrrev_b32 v2, 3, v{vLANE}')
    k(f'v_and_b32 v3, 7, v{vLANE}')
    k(f'v_lshrrev_b32 v4, 4, v{vLANE}')
    k(f'v_xor_b32 v5, v3, v4')
    k(f'v_lshlrev_b32 v5, 4, v5')
    k(f'v_lshl_add_u32 v{vOX0}, v2, 10, v5')
    k(f'v_xor_b32 v{vOX1}, 64, v{vOX0}')
    k(f'v_add_u32 v{vOX1}, 0x2000, v{vOX1}')
    k(f'v_and_b32 v3, 3, v{vLANE}')
    k(f'v_bfe_u32 v5, v{vLANE}, 2, 2')
    k(f'v_xor_b32 v5, v5, v4')
    k(f'v_lshlrev_b32 v6, 4, v3')
    k(f'v_lshl_add_u32 v6, v5, 6, v6')
    k(f'v_mul_u32_u24 v7, 3584, v4')
    k(f'v_add_u32 v{vOF}, v7, v6')
    k(f'v_mul_u32_u24 v7, 3072, v4')
    k(f'v_add_u32 v{vOQ}, v7, v6')
    k(f'v_mov_b32 v7, 0x7f000000')
    k(f'v_cmp_eq_u32 vcc, 3, v5')
    k(f'v_cmp_le_u32 s[72:73], s{sNF}, v5')
    k('s_nop 1')
    k(f'v_cndmask_b32 v{vOQ}, v{vOQ}, v7, vcc')
    k(f'v_cndmask_b32 v{vOF}, v{vOF}, v7, s[72:73]')
    k(f's_lshl_b32 s{sXO}, s{sRBK}, 17')
    k(f's_lshl_b32 s{sT0}, s{sRB}, 15')
    k(f's_add_u32 s{sXO}, s{sXO}, s{sT0}')
    k(f's_mul_i32 s{sFO}, s{sRB}, {8*3584}')
    k(f's_lshl_b32 s{sT0}, s{sFB}, 6')
    k(f's_add_u32 s{sFO}, s{sFO}, s{sT0}')
    k(f's_mul_i32 s{sQO}, s{sRB}, {8*3072}')
    k(f's_lshl_b32 s{sT0}, s{sQB}, 6')
    k(f's_add_u32 s{sQO}, s{sQO}, s{sT0}')
    k(f's_lshl_b32 s{sXD}, s{sRB}, 12')
    k(f's_lshl_b32 s{sWD}, s{sRB}, 11')
    k(f's_add_u32 s{sWD}, s{sWD}, {WRB}')
    k('s_waitcnt lgkmcnt(0)')
    k.srd(SX, 36, 37, 2048 * 512 * 2)
    k.srd(SW_, 44, 45, 512 * 3584)
    k.srd(SWQ, 38, 39, 512 * 3072)
    def dmaX_groups(tag):
        return [[f's_mov_b32 m0, s{sXD}', f's_add_u32 s{sT0}, s{sXO}, 16384', (f'buffer_load_dwordx4 v{vOX0}, s[{SX}:{SX+3}], s{sXO} offen lds', tag)],
                [f's_add_u32 m0, s{sXD}, 1024', 's_nop 0', (f'buffer_load_dwordx4 v{vOX1}, s[{SX}:{SX+3}], s{sXO} offen lds', tag)],
                [f's_add_u32 m0, s{sXD}, 2048', f's_add_u32 s{sXO}, s{sXO}, 128', (f'buffer_load_dwordx4 v{vOX0}, s[{SX}:{SX+3}], s{sT0} offen lds', tag)],
                [f's_add_u32 m0, s{sXD}, 3072', f's_add_u32 s{sXD}, s{sXD}, {XSL}', (f'buffer_load_dwordx4 v{vOX1}, s[{SX}:{SX+3}], s{sT0} offen lds', tag),
                 f's_cmp_ge_u32 s{sXD}, {NXS*XSL}', f's_cselect_b32 s{sT0}, {NXS*XSL}, 0', f's_sub_u32 s{sXD}, s{sXD}, s{sT0}']]
    def dmaW_groups(tag):
        return [[f's_mov_b32 m0, s{sWD}', f's_add_u32 s{sT2}, s{sFO}, {4*3584}', (f'buffer_load_dwordx4 v{vOF}, s[{SW_}:{SW_+3}], s{sFO} offen lds', tag)],
                [f's_add_u32 m0, s{sWD}, 1024', f's_add_u32 s{sFO}, s{sFO}, {32*3584}', (f'buffer_load_dwordx4 v{vOF}, s[{SW_}:{SW_+3}], s{sT2} offen lds', tag)],
                [f's_add_u32 m0, s{sWD}, 8192', f's_add_u32 s{sT2}, s{sQO}, {4*3072}', (f'buffer_load_dwordx4 v{vOQ}, s[{SWQ}:{SWQ+3}], s{sQO} offen lds', tag)],
                [f's_add_u32 m0, s{sWD}, 9216', f's_add_u32 s{sQO}, s{sQO}, {32*3072}', (f'buffer_load_dwordx4 v{vOQ}, s[{SWQ}:{SWQ+3}], s{sT2} offen lds', tag),
                 f's_add_u32 s{sWD}, s{sWD}, {WSL}', f's_cmp_ge_u32 s{sWD}, {WRB + NWS*WSL}', f's_cselect_b32 s{sT2}, {NWS*WSL}, 0', f's_sub_u32 s{sWD}, s{sWD}, s{sT2}']]
    def emit_group(gr):
        for t in gr:
            if isinstance(t, tuple): k.vmop(t[0], t[1])
            else: k(t)
    def dmaX(tag):
        for gr in dmaX_groups(tag): emit_group(gr)
    def dmaW(tag):
        for gr in dmaW_groups(tag): emit_group(gr)
    k.vm = []
    dmaX(('X', 0)); dmaW(('W', 0)); dmaW(('W', 1))
    k.stamp()
    dmaX(('X', 1)); dmaW(('W', 2))
    k(f'v_bfe_u32 v2, v{vN}, 1, 3')
    k(f'v_xor_b32 v2, v2, v{vH}')
    k(f'v_lshlrev_b32 v2, 4, v2')
    k(f'v_lshl_add_u32 v4, v{vN}, 7, v2')
    k(f's_lshl_b32 s{sT0}, s{sRB}, 12')
    k(f'v_add_u32 v{vXs}, s{sT0}, v4')
    for kk in range(1, 4):
        k(f'v_xor_b32 v{vXs+kk}, {kk*32}, v{vXs}')
    for i in range(4):
        k(f'v_mov_b32 v{RS+i}, 0')
    k(f's_mov_b32 s{sXR}, 0')
    k.srd(SWS, 50, 51, WS_SIZE)
    XFB = [[20, 24], [72, 76]]
    def stat_reads(par, buf):
        if 'nodot' in EXP or 'nostat' in EXP: return
        k(f'ds_read_b128 {v(XFB[buf][0],4)}, v{vXs+2*par}')
        k(f'ds_read_b128 {v(XFB[buf][1],4)}, v{vXs+2*par+1}')
        if par == 1:
            k(f's_add_u32 s{sXR}, s{sXR}, {XSL}')
            k(f's_cmp_eq_u32 s{sXR}, {NXS*XSL}')
            k(f's_mov_b32 s{sT1}, {XSL}')
            k(f's_cselect_b32 s{sT1}, {(XSL - NXS*XSL) & 0xffffffff:#x}, s{sT1}')
            k(f's_cselect_b32 s{sXR}, 0, s{sXR}')
            for i in range(4):
                k(f'v_add_u32 v{vXs+i}, s{sT1}, v{vXs+i}')
    def stat_ops(buf):
        if 'nodot' in EXP or 'nostat' in EXP: return []
        L = []
        for s_ in range(2):
            for q in range(4):
                x = XFB[buf][s_] + q
                L += [f'v_and_b32 v{TMP+2*q}, 0xffff0000, v{x}', f'v_lshlrev_b32 v{TMP+2*q+1}, 16, v{x}']
            for q in range(4):
                L += [f'v_add_f32 v{RS}, v{RS}, v{TMP+2*q}', f'v_fmac_f32 v{RS+2}, v{TMP+2*q}, v{TMP+2*q}',
                      f'v_add_f32 v{RS+1}, v{RS+1}, v{TMP+2*q+1}', f'v_fmac_f32 v{RS+3}, v{TMP+2*q+1}, v{TMP+2*q+1}']
        return L
    def side_loads():
        k(f'v_lshlrev_b32 v2, 12, v{vH}')
        k(f'v_lshl_add_u32 v{vZ1}, v{vN}, 1, v2')
        k(f'v_add_u32 v{vZ2}, 0x2000, v{vZ1}')
        k(f's_and_b32 s{sT2}, s2, 3')
        k(f's_lshl_b32 s{sT2}, s{sT2}, 2')
        k(f's_add_u32 s{sT2}, s{sT2}, s{sRB}')
        for i in range(3):
            SKI = None
            if i == 2:
                SKI = k.newlabel('noswz3')
                k(f's_cmp_ge_u32 s2, 64')
                k(f's_cbranch_scc1 {SKI}')
            k(f's_lshr_b32 s{sT0}, s2, 2')
            if i: k(f's_add_u32 s{sT0}, s{sT0}, {64*i}')
            if i == 0:
                k(f's_cmp_lt_u32 s{sT0}, 32')
                k(f's_cselect_b32 s{SSZ}, s40, s48')
                k(f's_cselect_b32 s{SSZ+1}, s41, s49')
                k(f's_mov_b32 s{SSZ+2}, {1792*1024:#x}')
                k(f's_cselect_b32 s{SSZ+2}, {512*1024:#x}, s{SSZ+2}')
                k(f's_cselect_b32 s{sT1}, 0, 32')
                k(f's_and_b32 s{SSZ+1}, s{SSZ+1}, 0xffff')
                k(f's_mov_b32 s{SSZ+3}, 0x20000')
                k(f's_sub_u32 s{sT1}, s{sT0}, s{sT1}')
            else:
                if i == 1: k.srd(SSZ, 48, 49, 1792 * 1024)
                k(f's_sub_u32 s{sT1}, s{sT0}, 32')
            k(f's_lshl_b32 s{sT1}, s{sT1}, 14')
            k(f's_lshl_b32 s{sZD[i]}, s{sT2}, 6')
            k(f's_add_u32 s{sT1}, s{sT1}, s{sZD[i]}')
            for j in range(8):
                k(f'buffer_load_ushort v{SWZ[i]+j}, v{vZ1 if j < 4 else vZ2}, s[{SSZ}:{SSZ+3}], s{sT1} offen offset:{(j%4)*1024}')
            k(f's_lshl_b32 s{sZD[i]}, s{sT0}, 4')
            k(f's_add_u32 s{sZD[i]}, s{sZD[i]}, s{sT2}')
            k(f's_lshl_b32 s{sZD[i]}, s{sZD[i]}, 10')
            k(f's_add_u32 s{sZD[i]}, s{sZD[i]}, {WS_WF:#x}')
            if SKI: k.label(SKI)
    def side_stores():
        k(f'v_lshlrev_b32 v2, 4, v{vLANE}')
        for i in range(3):
            SKI = None
            if i == 2:
                SKI = k.newlabel('noswz3s')
                k(f's_cmp_ge_u32 s2, 64')
                k(f's_cbranch_scc1 {SKI}')
            for r in range(4):
                k(f'v_lshl_or_b32 v{68+r}, v{SWZ[i]+2*r+1}, 16, v{SWZ[i]+2*r}')
            k(f'buffer_store_dwordx4 v[68:71], v2, s[{SWS}:{SWS+3}], s{sZD[i]} offen {ST1}')
            k('s_nop 1')
            if SKI: k.label(SKI)
    k.vmwait(('W', 0))
    BAR()
    k.stamp()
    dmaW(('W', 3)); dmaW(('W', 4))
    def prod_iter(c):
        if c + 1 < 16:
            tw, tx = ('W', c + 1), ('X', (c + 1) // 2)
            iw = max([i for i, t in enumerate(k.vm) if t == tw], default=-1)
            ix = max([i for i, t in enumerate(k.vm) if t == tx], default=-1)
            if max(iw, ix) >= 0:
                k.vmwait(tw if iw > ix else tx)
        BAR()
        stat_reads(c & 1, c & 1)
        groups = []
        if 'nodma' not in EXP:
            if c % 2 == 0 and c // 2 + 2 < 8: groups += dmaX_groups(('X', c // 2 + 2))
            if c + 5 < 16: groups += dmaW_groups(('W', c + 5))
        ops = stat_ops((c - 1) & 1) if c >= 1 else []
        per = (len(ops) + max(len(groups), 1) - 1) // max(len(groups), 1)
        for gr in groups:
            emit_group(gr)
            for _ in range(per):
                if ops: k(ops.pop(0))
        for t in ops: k(t)
        if c == 14:
            side_loads()
        k('s_waitcnt lgkmcnt(0)')
    prod_iter(0)
    PL = k.newlabel('ploop')
    k(f's_mov_b32 s{sC}, 0')
    k.label(PL)
    n_before = len(k.lines)
    prod_iter(1); prod_iter(2)
    body12 = k.lines[n_before:]
    k(f's_add_u32 s{sC}, s{sC}, 1')
    k(f's_cmp_lt_u32 s{sC}, 5')
    k(f's_cbranch_scc1 {PL}')
    n_mark = len(k.lines)
    for c in range(3, 11, 2):
        n0_ = len(k.lines)
        prod_iter(c); prod_iter(c + 1)
        assert k.lines[n0_:] == body12, c
        del k.lines[n0_:]
    for c in range(11, 16):
        prod_iter(c)
    for t in stat_ops(15 & 1): k(t)
    k.stamp()
    k(f'v_add_f32 v{RS}, v{RS}, v{RS+1}')
    k(f'v_add_f32 v{RS+2}, v{RS+2}, v{RS+3}')
    k(f'v_mov_b32 v{RS+1}, v{RS}')
    k(f'v_mov_b32 v{RS+3}, v{RS+2}')
    k('s_nop 1')
    k(f'v_permlane32_swap_b32 v{RS}, v{RS+1}')
    k(f'v_permlane32_swap_b32 v{RS+2}, v{RS+3}')
    k('s_nop 1')
    k(f'v_add_f32 v5, v{RS}, v{RS+1}')
    k(f'v_add_f32 v6, v{RS+2}, v{RS+3}')
    k(f'v_mul_f32 v5, {fhex(1/512)}, v5')
    k(f'v_mul_f32 v6, {fhex(1/512)}, v6')
    k(f'v_fma_f32 v6, -v5, v5, v6')
    k(f'v_max_f32 v6, 0, v6')
    k(f'v_add_f32 v6, {fhex(1e-5)}, v6')
    k(f'v_rsq_f32 v6, v6')
    k('s_nop 0')
    k(f'v_mul_f32 v5, v5, v6')
    k(f's_lshl_b32 s{sT0}, s{sRB}, 7')
    k(f'v_lshlrev_b32 v2, 2, v{vN}')
    k(f'v_add_u32 v2, s{sT0}, v2')
    k(f'v_add_u32 v2, {L_RSUM}, v2')
    k(f'ds_write_b32 v2, v6')
    k(f'ds_write_b32 v2, v5 offset:512')
    k('s_waitcnt lgkmcnt(0)')
    BAR()
    k.stamp()
    k(f's_lshr_b32 s{sT0}, s{sRB}, 1')
    k(f's_and_b32 s{sT1}, s{sRB}, 1')
    k(f's_lshl_b32 s{sTA}, s{sT0}, 1')
    k(f's_or_b32 s{sTA}, s{sTA}, s{sT1}')
    k(f's_xor_b32 s{sTB}, s{sTA}, 1')
    k(f's_lshl_b32 s{sSA}, s{sT1}, 1')
    k(f's_or_b32 s{sSA}, s{sSA}, s{sT0}')
    k(f's_xor_b32 s{sSB}, s{sSA}, 1')
    k(f's_lshl_b32 s{sT0}, s{sT0}, 15')
    k(f's_lshl_b32 s{sT1}, s{sT1}, 13')
    k(f's_add_u32 s{sT0}, s{sT0}, s{sT1}')
    k(f'v_lshlrev_b32 v6, 4, v{vLANE}')
    k(f'v_add_u32 v3, s{sT0}, v6')
    for q in range(8):
        k(f'ds_read_b128 {v(64+4*q if False else 28+0,4)}, v3') if False else None
    PA = 64
    k('s_waitcnt vmcnt(0)')
    side_stores()
    k('s_setprio 1')
    for q in range(8):
        k(f'ds_read_b128 {v(PA+4*q,4)}, v3 offset:{q*1024}')
    k(f'v_lshlrev_b32 v5, 4, v{vH}')
    k(f'v_add_u32 v5, {L_SW}, v5')
    k(f's_lshl_b32 s{sC}, s{sRBK}, 2')
    k('s_waitcnt lgkmcnt(0)')
    f_epilogue(sTB, [PA, PA + 16])
    NZ = k.newlabel('nozero')
    k(f's_cmp_ge_u32 s2, 32')
    k(f's_cbranch_scc1 {NZ}')
    k(f's_cmp_lg_u32 s{sRB}, 0')
    k(f's_cbranch_scc1 {NZ}')
    k(f's_lshl_b32 s{sT0}, s2, 8')
    k(f's_add_u32 s{sT0}, s{sT0}, {WS_CNT:#x}')
    k(f'v_lshlrev_b32 v2, 2, v{vLANE}')
    k(f'v_mov_b32 v3, 0')
    k(f'buffer_store_dword v3, v2, s[{SWS}:{SWS+3}], s{sT0} offen sc0 sc1')
    k.label(NZ)
    k.stamp()
    if k.st_en:
        k('s_waitcnt vmcnt(0)')
    k.stamp(); k.stamp(real=True)
    k.stamp_dump(0, sW, vtmp=3)
    k.label(END)
    k('s_endpgm')
    return k.text(168, 100 if DBG else 80)

K2_CONST = 131072
K2_LDS = K2_CONST + 8192 + 256 + 16384
def gen_k2():
    k = Kern('k2_kernel')
    END = 'k2_end'
    SWS = 4
    sW, sHEAD, sQT, sIT, sT0, sT1, sFB = 8, 9, 10, 11, 12, 13, 14
    sKS, sVS, sLD = 22, 23, 24
    vLANE, vKA, vVA, vO16, vINC, vVA0 = 1, 2, 3, 4, 5, 6
    QF = 8
    NEGM = 16
    O = 32
    S = [48, 64]
    P = 80
    KF = [88, 92]
    VF = [96, 104]
    T = 112
    FA = 128
    FB = 144
    sFT0, sFT1, sFW, sA0, sA1, sA2, sTB, sNBP = 28, 29, 30, 31, 32, 33, 34, 35
    sFT0i, sFT1i, sFWi = 36, 37, 38
    sST, sSW, sWOB = 29, 39, 58
    UN = 8
    k('s_cmp_ge_u32 s2, 256')
    k(f's_cbranch_scc1 {END}')
    k.stamp_init('2' in DBG)
    k.stamp(); k.stamp(real=True)
    k('s_load_dwordx2 s[20:21], s[0:1], 72')
    k('v_lshrrev_b32 v2, 6, v0')
    k(f'v_and_b32 v{vLANE}, 63, v0')
    k(f'v_readfirstlane_b32 s{sW}, v2')
    k(f's_and_b32 s{sHEAD}, s2, 31')
    k(f's_lshr_b32 s{sQT}, s2, 5')
    k(f's_lshl_b32 s{sQT}, s{sQT}, 3')
    k(f'v_lshlrev_b32 v{vO16}, 4, v{vLANE}')
    k(f's_add_u32 s{sQT}, s{sQT}, s{sW}')
    k(f's_lshl_b32 s{sT0}, s{sHEAD}, 16')
    k(f's_lshl_b32 s{sT1}, s{sQT}, 10')
    k(f's_add_u32 s25, s{sT1}, s{sT0}')
    k(f's_lshl_b32 s{sLD}, s{sW}, 10')
    k(f's_add_u32 s{sT0}, s{sT0}, s{sLD}')
    k(f's_add_u32 s{sKS}, s{sT0}, {32*65536:#x}')
    k(f's_add_u32 s{sVS}, s{sT0}, {64*65536:#x}')
    k('s_waitcnt lgkmcnt(0)')
    k.srd(SWS, 20, 21, WS_SIZE)
    k(f'buffer_load_dwordx4 {v(QF,4)}, v{vO16}, s[{SWS}:{SWS+3}], s25 offen')
    def dma_round(i):
        k(f's_add_u32 m0, s{sLD}, {i*8192}')
        k(f's_add_u32 s26, s{sKS}, {i*8192}')
        k.vmop(f'buffer_load_dwordx4 v{vO16}, s[{SWS}:{SWS+3}], s26 offen lds', 'dma')
        k(f's_add_u32 m0, s{sLD}, {65536 + i*8192}')
        k(f's_add_u32 s26, s{sVS}, {i*8192}')
        k.vmop(f'buffer_load_dwordx4 v{vO16}, s[{SWS}:{SWS+3}], s26 offen lds', 'dma')
    dma_round(0)
    dma_round(1)
    k('v_lshlrev_b32 v7, 4, v0')
    k(f'v_add_u32 v7, {K2_CONST}, v7')
    for i in range(4):
        k(f'v_mov_b32 v{T+i}, 0')
    k('v_and_b32 v12, 31, v0')
    k('v_cmp_eq_u32 vcc, 0, v12')
    k(f'v_mov_b32 v13, 0x3f803f80')
    k('s_nop 0')
    for i in range(4):
        k(f'v_cndmask_b32 v{T+i}, v{T+i}, v13, vcc')
    k(f'ds_write_b128 v7, {v(T,4)}')
    for i in range(4):
        k(f'v_mov_b32 v{T+4+i}, 0')
    k(f'v_mov_b32 v7, {K2_CONST + 8192}')
    k(f'v_lshl_add_u32 v7, v{vLANE}, 2, v7')
    k(f'ds_write_b32 v7, v{T+4}')
    k(f'v_lshrrev_b32 v7, 5, v{vLANE}')
    k(f'v_lshlrev_b32 v7, 8, v7')
    k(f'v_and_b32 v12, 15, v{vLANE}')
    k(f'v_lshl_add_u32 v7, v12, 4, v7')
    k(f'v_add_u32 v{vVA0}, 0x10000, v7')
    k(f'v_mov_b32 v{vINC}, {UN*1024}')
    k(f'v_and_b32 v12, 31, v{vLANE}')
    k(f'v_mov_b32 v13, {K2_CONST + 16}')
    k(f'v_mov_b32 v14, 0')
    k('v_cmp_lt_u32 vcc, 15, v12')
    k('s_nop 1')
    k(f'v_cndmask_b32 v{vVA0}, v{vVA0}, v13, vcc')
    k(f'v_cndmask_b32 v{vINC}, v{vINC}, v14, vcc')
    k(f'v_mov_b32 v13, {K2_CONST}')
    k('v_cmp_eq_u32 vcc, 16, v12')
    k('s_nop 1')
    k(f'v_cndmask_b32 v{vVA0}, v{vVA0}, v13, vcc')
    k(f'v_subrev_u32 v14, 20, v12')
    k(f'v_mov_b32 v13, {K2_CONST + 64}')
    k('v_cmp_gt_u32 vcc, 8, v14')
    k('s_nop 1')
    k(f'v_cndmask_b32 v{vVA0}, v{vVA0}, v13, vcc')
    k(f's_mov_b32 s{sFB}, 0')
    k(f's_and_b32 s{sTB}, s2, 7')
    k(f's_lshr_b32 s{sT0}, s2, 3')
    k(f's_and_b32 s{sT0}, s{sT0}, 3')
    k(f's_lshl_b32 s{sT0}, s{sT0}, 3')
    k(f's_add_u32 s{sTB}, s{sTB}, s{sT0}')
    k(f's_lshr_b32 s{sNBP}, s2, 5')
    k(f's_lshr_b32 s{sT0}, s{sW}, 2')
    k(f's_mul_i32 s{sT0}, s{sT0}, 56')
    k(f's_add_u32 s{sT0}, s{sT0}, 32')
    k(f's_lshl_b32 s{sFT0i}, s{sTB}, 1')
    k(f's_bfe_u32 s{sT1}, s{sW}, 0x10001')
    k(f's_add_u32 s{sFT0i}, s{sFT0i}, s{sT1}')
    k(f's_mul_i32 s{sFT0i}, s{sFT0i}, 144')
    k(f's_add_u32 s{sFT0i}, s{sFT0i}, s{sT0}')
    k(f's_lshl_b32 s{sFT0i}, s{sFT0i}, 10')
    k(f's_add_u32 s{sFT0i}, s{sFT0i}, {WS_TF:#x}')
    k(f's_lshl_b32 s{sFWi}, s{sT0}, 4')
    k(f's_lshl_b32 s{sT1}, s{sNBP}, 1')
    k(f's_add_u32 s{sFWi}, s{sFWi}, s{sT1}')
    k(f's_and_b32 s{sT1}, s{sW}, 1')
    k(f's_add_u32 s{sFWi}, s{sFWi}, s{sT1}')
    k(f's_lshl_b32 s{sFWi}, s{sFWi}, 10')
    k(f's_add_u32 s{sFWi}, s{sFWi}, {WS_WF:#x}')
    k(f's_lshr_b32 s{sWOB}, s{sW}, 2')
    k(f's_lshl_b32 s{sWOB}, s{sWOB}, 8')
    k(f's_lshl_b32 s{sT1}, s{sNBP}, 1')
    k(f's_add_u32 s{sWOB}, s{sWOB}, s{sT1}')
    k(f's_and_b32 s{sT1}, s{sW}, 1')
    k(f's_add_u32 s{sWOB}, s{sWOB}, s{sT1}')
    k(f's_lshl_b32 s{sWOB}, s{sWOB}, 10')
    k(f's_add_u32 s{sWOB}, s{sWOB}, {WS_WF:#x}')
    k('s_waitcnt vmcnt(0) lgkmcnt(0)')
    k('s_barrier')
    k.stamp()
    k(f'ds_read_b128 {v(KF[0],4)}, v{vO16}')
    k('s_waitcnt lgkmcnt(0)')
    k(MFMA(v(S[0],16), v(KF[0],4), v(QF,4), '0'))
    k('s_nop 15')
    k(f'v_max3_f32 v{T}, v{S[0]}, v{S[0]+1}, v{S[0]+2}')
    for i in range(3, 15, 2):
        k(f'v_max3_f32 v{T}, v{T}, v{S[0]+i}, v{S[0]+i+1}')
    k(f'v_max_f32 v{T}, v{T}, v{S[0]+15}')
    RESTART = k.newlabel('restart')
    k.label(RESTART)
    k(f'v_mov_b32 v{T+1}, v{T}')
    k(f'v_mov_b32 v{vKA}, v{vO16}')
    k(f'v_mov_b32 v{vVA}, v{vVA0}')
    k(f'v_permlane32_swap_b32 v{T}, v{T+1}')
    k(f'ds_read_b128 {v(KF[0],4)}, v{vKA}')
    k(f'ds_read_b128 {v(VF[0],4)}, v{vVA}')
    k(f'ds_read_b128 {v(VF[0]+4,4)}, v{vVA} offset:512')
    k(f'ds_read_b128 {v(KF[1],4)}, v{vKA} offset:1024')
    k(f'v_max_f32 v{T}, v{T}, v{T+1}')
    for i in range(16):
        k(f'v_sub_f32 v{NEGM+i}, 0, v{T}')
    for i in range(16):
        k(f'v_mov_b32 v{O+i}, 0')
    for i in range(8):
        k(f'v_mov_b32 v{VF[1]+i}, 0')
    for i in range(8):
        k(f'v_mov_b32 v{P+i}, 0')
    for i in range(12, 16):
        k(f'v_mov_b32 v{S[1]+i}, 0')
    for i in range(16):
        k(f'v_mov_b32 v{FA+i}, 0')
    k(f's_mov_b32 s{sFT0}, s{sFT0i}')
    k(f's_mov_b32 s{sST}, 1024')
    k(f's_mov_b32 s{sSW}, 16384')
    k(f's_mul_i32 s{sFW}, s{sFB}, 16384')
    k(f's_sub_u32 s{sFW}, s{sFWi}, s{sFW}')
    k('s_waitcnt lgkmcnt(0)')
    k(MFMA(v(S[0],16), v(KF[0],4), v(QF,4), v(NEGM,16)))
    k('s_nop 15')
    def body(dma, prio=None):
        dq = []
        if dma:
            for i in range(2, 8):
                dq.append(i)
        nolds = 'nolds' in EXP
        noffn = 'noffn' in EXP
        k.vm = []
        def MF(*a):
            if 'nomfma' not in EXP: k(MFMA(*a))
        def floadW(j):
            if noffn: return
            if j == 0 and dma: return
            r = FB + 8 * ((j - 1) % 8)
            k(f'buffer_load_dwordx4 {v(r+4,4)}, v{vO16}, s[{SWS}:{SWS+3}], s{sFW} offen')
            k(f's_add_u32 s{sFW}, s{sFW}, s{sSW}')
            if j == 0:
                k(f's_add_u32 s{sA0}, s{sWOB}, 16384')
                k(f's_cmp_lt_u32 s{sIT}, 7')
                k(f's_cselect_b32 s{sFW}, s{sFW}, s{sA0}')
                k(f's_cselect_b32 s{sFT0}, s{sFT0}, s{sWOB}')
                k(f's_cselect_b32 s{sST}, s{sST}, 0x8000')
                k(f's_cselect_b32 s{sSW}, s{sSW}, 0x8000')
        def floadT(q):
            if noffn: return
            r = FB + 8 * q
            k(f'buffer_load_dwordx4 {v(r,4)}, v{vO16}, s[{SWS}:{SWS+3}], s{sFT0} offen')
            k(f's_add_u32 s{sFT0}, s{sFT0}, s{sST}')
        def fmma(q):
            if noffn or dma: return
            r = FB + 8 * q
            k('s_waitcnt vmcnt(14)')
            MF(v(FA,16), v(r+4,4), v(r,4), v(FA,16))
        for j in range(UN):
            b = j & 1
            cur, nxt = S[b], S[b ^ 1]
            e = lambda i: k(f'v_exp_f32 v{cur+i}, v{cur+i}')
            c = lambda i: k(f'v_cvt_pk_bf16_f32 v{P+i}, v{cur+2*i}, v{cur+2*i+1}')
            cp = lambda i: k(f'v_cvt_pk_bf16_f32 v{P+i}, v{nxt+2*i}, v{nxt+2*i+1}')
            e(0)
            if prio is not None and (j == 0 or prio[j] != prio[j-1]):
                k(f's_setprio {prio[j]}')
            if j == UN - 1:
                k(f'v_add_u32 v{vVA}, v{vINC}, v{vVA}')
            cp(6); e(1); e(2)
            floadW(j)
            cp(7); e(3); e(4)
            MF(v(O,16), v(VF[b^1]+4,4), v(P+4,4), v(O,16))
            voff = ((j + 1) % UN) * 1024
            if not nolds: k(f'ds_read_b128 {v(VF[b^1],4)}, v{vVA} offset:{voff}')
            c(0); e(5); e(6); c(1)
            if not nolds: k('s_waitcnt lgkmcnt(1)')
            e(7)
            MF(v(nxt,16), v(KF[b^1],4), v(QF,4), v(NEGM,16))
            if not nolds: k(f'ds_read_b128 {v(VF[b^1]+4,4)}, v{vVA} offset:{voff+512}')
            e(8); c(2); e(9); e(10); c(3); e(11)
            if dq and j < 6:
                dma_round(dq.pop(0))
            e(12)
            MF(v(O,16), v(VF[b],4), v(P,4), v(O,16))
            if not nolds: k(f'ds_read_b128 {v(KF[b],4)}, v{vKA} offset:{(j+2)*1024}')
            c(4); e(13)
            if j == UN - 1:
                k(f'v_add_u32 v{vKA}, {UN*1024}, v{vKA}')
            e(14); c(5)
            fmma(j)
            floadT(j)
            if j == UN - 1:
                k(f's_add_u32 s{sIT}, s{sIT}, 1')
                k(f's_cmp_lt_u32 s{sIT}, {64//UN}')
            e(15)
    FIRST = k.newlabel('first'); LOOP = k.newlabel('loop'); LOOP2 = k.newlabel('loop2'); AFTER = k.newlabel('after'); R2 = k.newlabel('r2')
    k(f's_mov_b32 s{sIT}, 0')
    k(f's_cmp_eq_u32 s{sFB}, 1')
    k(f's_cbranch_scc1 {LOOP}')
    nh = int(os.environ.get('NH', '6'))
    if nh >= 0:
        k(f's_cmp_ge_u32 s{sW}, 4')
        k(f's_cbranch_scc1 {R2}')
    body(True)
    k('s_waitcnt vmcnt(0)')
    k('s_barrier')
    k.label(LOOP)
    body(False)
    k(f's_cbranch_scc1 {LOOP}')
    if nh >= 0:
        k(f's_branch {AFTER}')
        k.label(R2)
        pr = [1] * nh + [0] * (UN - nh)
        body(True, pr)
        k('s_waitcnt vmcnt(0)')
        k('s_barrier')
        k.label(LOOP2)
        body(False, pr)
        k(f's_cbranch_scc1 {LOOP2}')
        k('s_setprio 0')
        k.label(AFTER)
    k('s_nop 1')
    k(f'v_cvt_pk_bf16_f32 v{P+6}, v{S[1]+12}, v{S[1]+13}')
    k(f'v_cvt_pk_bf16_f32 v{P+7}, v{S[1]+14}, v{S[1]+15}')
    k('s_nop 1')
    k(MFMA(v(O,16), v(VF[1]+4,4), v(P+4,4), v(O,16)))
    k('s_waitcnt lgkmcnt(0)')
    k('s_nop 15')
    k.stamp()
    k(f'v_mov_b32 v{T}, v{O+8}')
    k(f'v_mov_b32 v{T+1}, v{O+8}')
    k('s_nop 1')
    k(f'v_permlane32_swap_b32 v{T}, v{T+1}')
    k('s_nop 1')
    DONE = k.newlabel('done')
    k(f's_cmp_eq_u32 s{sFB}, 1')
    k(f's_cbranch_scc1 {DONE}')
    if EXP != ['']: k(f's_branch {DONE}')
    k(f'v_mov_b32 v{T+2}, {fhex(2.0**40)}')
    k(f'v_cmp_nlt_f32 vcc, v{T}, v{T+2}')
    k(f'v_mov_b32 v{T+1}, 0x207')
    for i in range(8):
        k(f'v_cmp_class_f32 s[26:27], v{O+i}, v{T+1}')
        k('s_or_b64 vcc, vcc, s[26:27]')
    k('s_cmp_eq_u64 vcc, 0')
    k(f's_cbranch_scc1 {DONE}')
    k(f's_mov_b32 s{sFB}, 1')
    k(f'v_mov_b32 v{vKA}, v{vO16}')
    k(f'v_mov_b32 v{T}, 0xff800000')
    k(f's_mov_b32 s{sIT}, 0')
    FL = k.newlabel('fbloop')
    k.label(FL)
    k(f'ds_read_b128 {v(KF[0],4)}, v{vKA}')
    k('s_waitcnt lgkmcnt(0)')
    k(MFMA(v(S[0],16), v(KF[0],4), v(QF,4), '0'))
    k('s_nop 15')
    for i in range(0, 16, 2):
        k(f'v_max3_f32 v{T}, v{T}, v{S[0]+i}, v{S[0]+i+1}')
    k(f'v_add_u32 v{vKA}, 0x400, v{vKA}')
    k(f's_add_u32 s{sIT}, s{sIT}, 1')
    k(f's_cmp_lt_u32 s{sIT}, 64')
    k(f's_cbranch_scc1 {FL}')
    k('s_waitcnt vmcnt(0)')
    for i in range(64):
        k(f'v_mov_b32 v{FB+i}, 0')
    k(f's_branch {RESTART}')
    k.label(DONE)
    k(f'v_rcp_f32 v{T}, v{T}')
    k('s_nop 0')
    for i in range(8):
        k(f'v_mul_f32 v{O+i}, v{O+i}, v{T}')
    for i in range(4):
        k(f'v_cvt_pk_bf16_f32 v{T+4+i}, v{O+2*i}, v{O+2*i+1}')
    k(f's_mul_i32 s{sT0}, s{sQT}, 144')
    k(f's_add_u32 s{sT0}, s{sT0}, s{sHEAD}')
    k(f's_lshl_b32 s{sT0}, s{sT0}, 10')
    k(f's_add_u32 s{sT0}, s{sT0}, {WS_TF:#x}')
    k(f'buffer_store_dwordx4 {v(T+4,4)}, v{vO16}, s[{SWS}:{SWS+3}], s{sT0} offen {OSF}')
    k.stamp(real=('r' in DBG))
    WOF, OF, XR = FB, 16, 80
    SX, SO, SD = 40, 44, 48
    sNB, sTT, sKH, sXO = 50, 51, 52, 53
    k('s_load_dwordx2 s[54:55], s[0:1], 0')
    k('s_load_dwordx2 s[56:57], s[0:1], 56')
    k(f's_load_dwordx2 s[{SD}:{SD+1}], s[0:1], 64')
    k(f's_and_b32 s{sNB}, s{sW}, 1')
    k(f's_bfe_u32 s{sTT}, s{sW}, 0x10001')
    k(f's_lshr_b32 s{sKH}, s{sW}, 2')
    k(f'buffer_load_dwordx4 {v(FB+60,4)}, v{vO16}, s[{SWS}:{SWS+3}], s{sFW} offen')
    vXO = T + 8
    k(f'v_and_b32 v{vXO}, 31, v{vLANE}')
    k(f'v_lshlrev_b32 v{vXO}, 10, v{vXO}')
    k(f'v_lshrrev_b32 v{vXO+1}, 5, v{vLANE}')
    k(f'v_lshl_add_u32 v{vXO}, v{vXO+1}, 3, v{vXO}')
    k(f's_lshl_b32 s{sXO}, s{sTB}, 1')
    k(f's_add_u32 s{sXO}, s{sXO}, s{sTT}')
    k(f's_lshl_b32 s{sXO}, s{sXO}, 15')
    k(f's_lshl_b32 s{sA1}, s{sNBP}, 7')
    k(f's_add_u32 s{sXO}, s{sXO}, s{sA1}')
    k(f's_lshl_b32 s{sA1}, s{sNB}, 6')
    k(f's_add_u32 s{sXO}, s{sXO}, s{sA1}')
    k(f's_lshl_b32 s{sA1}, s{sKH}, 5')
    k(f's_add_u32 s{sXO}, s{sXO}, s{sA1}')
    k('s_waitcnt lgkmcnt(0)')
    k.srd(SX, 54, 55, 2048 * 1024)
    k.srd(SO, 56, 57, 2048 * 1024)
    k(f'buffer_load_dwordx2 {v(XR,2)}, v{vXO}, s[{SX}:{SX+3}], s{sXO} offen')
    k(f'buffer_load_dwordx2 {v(XR+2,2)}, v{vXO}, s[{SX}:{SX+3}], s{sXO} offen offset:16')
    k('s_waitcnt vmcnt(3)')
    k('s_barrier')
    k.stamp()
    NOTW0 = k.newlabel('notw0'); POLL = k.newlabel('poll'); PD = k.newlabel('polldone')
    k(f's_cmp_lg_u32 s{sW}, 0')
    k(f's_cbranch_scc1 {NOTW0}')
    k(f's_lshr_b32 s{sA0}, s2, 5')
    k(f's_lshl_b32 s{sA0}, s{sA0}, 10')
    k(f's_add_u32 s{sA0}, s{sA0}, {WS_CNT:#x}')
    k(f'v_lshlrev_b32 v{T}, 8, v{vLANE}')
    k(f'v_mov_b32 v{T+1}, 1')
    k('s_mov_b64 exec, 15')
    k(f'buffer_atomic_add v{T+1}, v{T}, s[{SWS}:{SWS+3}], s{sA0} offen sc1')
    k('s_mov_b64 exec, 1')
    k(f's_lshl_b32 s{sA0}, s{sTB}, 8')
    k(f's_add_u32 s{sA0}, s{sA0}, {WS_CNT:#x}')
    k(f'v_mov_b32 v{T}, 0')
    k(f's_mov_b32 s{sA1}, 0')
    k.label(POLL)
    k(f'buffer_load_dword v{T+1}, v{T}, s[{SWS}:{SWS+3}], s{sA0} offen {POLLF}')
    k('s_waitcnt vmcnt(0)')
    k(f'v_readfirstlane_b32 s{sA2}, v{T+1}')
    k(f's_add_u32 s{sA1}, s{sA1}, 1')
    k(f's_cmp_ge_u32 s{sA2}, 32')
    k(f's_cbranch_scc1 {PD}')
    k(f's_cmp_lt_u32 s{sA1}, {1 << 16}')
    k(f's_sleep {SLP}')
    k(f's_cbranch_scc1 {POLL}')
    k.label(PD)
    k('s_mov_b64 exec, -1')
    k.label(NOTW0)
    k('s_barrier')
    k.stamp()
    if not ODMA:
        k(f's_lshl_b32 s{sA0}, s{sTB}, 1')
        k(f's_add_u32 s{sA0}, s{sA0}, s{sTT}')
        k(f's_mul_i32 s{sA0}, s{sA0}, 144')
        k(f's_lshl_b32 s{sA1}, s{sKH}, 4')
        k(f's_add_u32 s{sA0}, s{sA0}, s{sA1}')
        k(f's_lshl_b32 s{sA0}, s{sA0}, 10')
        k(f's_add_u32 s{sA0}, s{sA0}, {WS_TF:#x}')
        k.vm = []
        for j in range(16):
            if j and j % 4 == 0: k(f's_add_u32 s{sA0}, s{sA0}, 4096')
            k.vmop(f'buffer_load_dwordx4 {v(OF+4*j,4)}, v{vO16}, s[{SWS}:{SWS+3}], s{sA0} offen offset:{(j%4)*1024} {OLF}', j)
        for j in range(16):
            k.vmwait(j)
            k(MFMA(v(FA,16), v(WOF+4*j,4), v(OF+4*j,4), v(FA,16)))
    else:
        k(f's_lshl_b32 s{sA0}, s{sTB}, 1')
        k(f's_add_u32 s{sA0}, s{sA0}, s{sKH}')
        k(f's_mul_i32 s{sA0}, s{sA0}, 144')
        k(f's_and_b32 s{sA1}, s{sW}, 3')
        k(f's_lshl_b32 s{sA1}, s{sA1}, 3')
        k(f's_add_u32 s{sA0}, s{sA0}, s{sA1}')
        k(f's_lshl_b32 s{sA0}, s{sA0}, 10')
        k(f's_add_u32 s{sA0}, s{sA0}, {WS_TF:#x}')
        k(f's_lshl_b32 s{sA1}, s{sW}, 13')
        for j in range(8):
            k(f's_add_u32 m0, s{sA1}, {j*1024}')
            k(f's_add_u32 s{sA2}, s{sA0}, {j*1024}')
            k(f'buffer_load_dwordx4 v{vO16}, s[{SWS}:{SWS+3}], s{sA2} offen {OLF} lds')
        k(f's_lshl_b32 s{sA0}, s{sTT}, 15')
        k(f's_lshl_b32 s{sA1}, s{sKH}, 14')
        k(f's_add_u32 s{sA0}, s{sA0}, s{sA1}')
        k(f'v_add_u32 v{T}, s{sA0}, v{vO16}')
        k('s_waitcnt vmcnt(0)')
        k('s_barrier')
        for j in range(16):
            k(f'ds_read_b128 {v(OF+4*j,4)}, v{T} offset:{j*1024}')
            if j == 7: k('s_waitcnt lgkmcnt(4)')
        for j in range(16):
            k(f's_waitcnt lgkmcnt({min(15, 15 - j)})')
            k(MFMA(v(FA,16), v(WOF+4*j,4), v(OF+4*j,4), v(FA,16)))
    k('s_nop 15')
    k.stamp()
    RED = K2_CONST + 8192 + 256
    k(f's_and_b32 s{sA0}, s{sW}, 3')
    k(f's_lshl_b32 s{sA0}, s{sA0}, 12')
    k(f's_add_u32 s{sA0}, s{sA0}, {RED}')
    k(f'v_add_u32 v{T}, s{sA0}, v{vO16}')
    LO = k.newlabel('lo'); J = k.newlabel('j')
    R = FB
    k(f's_cmp_eq_u32 s{sKH}, 0')
    k(f's_cbranch_scc1 {LO}')
    k(f'ds_write_b128 v{T}, {v(FA,4)}')
    k(f'ds_write_b128 v{T}, {v(FA+4,4)} offset:1024')
    k('s_waitcnt lgkmcnt(0)')
    k('s_barrier')
    k(f'ds_read_b128 {v(R,4)}, v{T} offset:2048')
    k(f'ds_read_b128 {v(R+4,4)}, v{T} offset:3072')
    for i in range(8):
        k(f'v_mov_b32 v{R+8+i}, v{FA+8+i}')
    k(f's_branch {J}')
    k.label(LO)
    k(f'ds_write_b128 v{T}, {v(FA+8,4)} offset:2048')
    k(f'ds_write_b128 v{T}, {v(FA+12,4)} offset:3072')
    k('s_waitcnt lgkmcnt(0)')
    k('s_barrier')
    k(f'ds_read_b128 {v(R,4)}, v{T}')
    k(f'ds_read_b128 {v(R+4,4)}, v{T} offset:1024')
    for i in range(8):
        k(f'v_mov_b32 v{R+8+i}, v{FA+i}')
    k.label(J)
    for i in range(4):
        k(f'v_lshlrev_b32 v{R+16+2*i}, 16, v{XR+i}')
        k(f'v_and_b32 v{R+17+2*i}, 0xffff0000, v{XR+i}')
    for i in range(8):
        k(f'v_add_f32 v{R+8+i}, v{R+8+i}, v{R+16+i}')
    k('s_waitcnt lgkmcnt(0)')
    for i in range(8):
        k(f'v_add_f32 v{R+8+i}, v{R+8+i}, v{R+i}')
    for i in range(4):
        k(f'v_cvt_pk_bf16_f32 v{R+24+i}, v{R+8+2*i}, v{R+8+2*i+1}')
    k(f'buffer_store_dwordx2 {v(R+24,2)}, v{vXO}, s[{SO}:{SO+3}], s{sXO} offen')
    k(f'buffer_store_dwordx2 {v(R+26,2)}, v{vXO}, s[{SO}:{SO+3}], s{sXO} offen offset:16')
    k.stamp()
    if k.st_en:
        k('s_waitcnt vmcnt(0)')
    k.stamp(); k.stamp(real=True)
    k.stamp_dump(1, sW, vtmp=T+9+2)
    k.label(END)
    k('s_endpgm')
    return k.text(208, 100 if DBG else 64)

K3_LDS = 131072
def gen_k3():
    k = Kern('k3_kernel')
    END = 'k3_end'
    SWS, SX, SO = 4, 8, 12
    sW, sTB, sNBP, sT0, sT1, sTO, sWO, sNB, sTT, sKH, sXO, sL = 16, 17, 18, 19, 20, 21, 23, 30, 31, 32, 33, 34
    vLANE, vO16 = 1, 2
    ACC = 16
    BUF = 32
    PI = 96
    XR = 104
    k('s_cmp_ge_u32 s2, 256')
    k(f's_cbranch_scc1 {END}')
    k.stamp_init('3' in DBG)
    k.stamp(); k.stamp(real=True)
    k('s_load_dwordx2 s[28:29], s[0:1], 72')
    k('s_load_dwordx2 s[24:25], s[0:1], 0')
    k('s_load_dwordx2 s[26:27], s[0:1], 56')
    k('v_lshrrev_b32 v2, 6, v0')
    k(f'v_and_b32 v{vLANE}, 63, v0')
    k(f'v_readfirstlane_b32 s{sW}, v2')
    k(f's_and_b32 s{sTB}, s2, 7')
    k(f's_lshr_b32 s{sT0}, s2, 3')
    k(f's_and_b32 s{sT0}, s{sT0}, 3')
    k(f's_lshl_b32 s{sT0}, s{sT0}, 3')
    k(f's_add_u32 s{sTB}, s{sTB}, s{sT0}')
    k(f's_lshr_b32 s{sNBP}, s2, 5')
    k(f'v_lshlrev_b32 v{vO16}, 4, v{vLANE}')
    k(f's_and_b32 s{sNB}, s{sW}, 1')
    k(f's_bfe_u32 s{sTT}, s{sW}, 0x10001')
    k(f's_lshr_b32 s{sKH}, s{sW}, 2')
    k(f's_and_b32 s{sT0}, s{sW}, 3')
    k(f's_lshl_b32 s{sT0}, s{sT0}, 1')
    k(f's_lshl_b32 s{sT1}, s{sKH}, 4')
    k(f's_add_u32 s{sT0}, s{sT0}, s{sT1}')
    k(f's_mul_i32 s{sTO}, s{sTB}, {2*144}')
    k(f's_add_u32 s{sTO}, s{sTO}, s{sT0}')
    k(f's_lshl_b32 s{sTO}, s{sTO}, 10')
    k(f's_add_u32 s{sTO}, s{sTO}, {WS_TF:#x}')
    k(f's_lshl_b32 s{sWO}, s{sT0}, 4')
    k(f's_lshl_b32 s{sT1}, s{sNBP}, 1')
    k(f's_add_u32 s{sWO}, s{sWO}, s{sT1}')
    k(f's_lshl_b32 s{sWO}, s{sWO}, 10')
    k(f's_add_u32 s{sWO}, s{sWO}, {WS_WF:#x}')
    k(f's_lshl_b32 s{sL}, s{sT0}, 10')
    k('s_waitcnt lgkmcnt(0)')
    k.srd(SWS, 28, 29, WS_SIZE)
    for ph in range(2):
        for dk in range(2):
            ks = ph * 8 + dk
            for tt in range(2):
                k(f's_add_u32 m0, s{sL}, {tt*32768 + ks*1024}')
                k(f's_add_u32 s35, s{sTO}, {tt*144*1024 + ks*1024}')
                k.vmop(f'buffer_load_dwordx4 v{vO16}, s[{SWS}:{SWS+3}], s35 offen lds', ph)
            for nb in range(2):
                k(f's_add_u32 m0, s{sL}, {65536 + nb*32768 + ks*1024}')
                k(f's_add_u32 s35, s{sWO}, {ks*16384 + nb*1024}')
                k.vmop(f'buffer_load_dwordx4 v{vO16}, s[{SWS}:{SWS+3}], s35 offen lds', ph)
    k.srd(SX, 24, 25, 2048 * 1024)
    k.srd(SO, 26, 27, 2048 * 1024)
    k(f's_lshl_b32 s{sT0}, s{sTB}, 3')
    k(f's_add_u32 s{sT0}, s{sT0}, s{sNBP}')
    k(f's_lshl_b32 s{sT0}, s{sT0}, 2')
    k(f's_and_b32 s{sT1}, s{sW}, 3')
    k(f's_add_u32 s{sT0}, s{sT0}, s{sT1}')
    k(f's_lshl_b32 s{sT0}, s{sT0}, 12')
    k(f's_lshl_b32 s{sT1}, s{sKH}, 11')
    k(f's_add_u32 s{sT0}, s{sT0}, s{sT1}')
    k(f's_add_u32 s{sT0}, s{sT0}, {WS_PART:#x}')
    k.vmop(f'buffer_load_dwordx4 {v(PI,4)}, v{vO16}, s[{SWS}:{SWS+3}], s{sT0} offen', 'p')
    k.vmop(f'buffer_load_dwordx4 {v(PI+4,4)}, v{vO16}, s[{SWS}:{SWS+3}], s{sT0} offen offset:1024', 'p')
    k(f'v_and_b32 v3, 31, v{vLANE}')
    k(f'v_lshlrev_b32 v3, 10, v3')
    k(f'v_lshrrev_b32 v4, 5, v{vLANE}')
    k(f'v_lshl_add_u32 v3, v4, 3, v3')
    k(f's_lshl_b32 s{sXO}, s{sTB}, 1')
    k(f's_add_u32 s{sXO}, s{sXO}, s{sTT}')
    k(f's_lshl_b32 s{sXO}, s{sXO}, 15')
    k(f's_lshl_b32 s{sT0}, s{sNBP}, 7')
    k(f's_add_u32 s{sXO}, s{sXO}, s{sT0}')
    k(f's_lshl_b32 s{sT0}, s{sNB}, 6')
    k(f's_add_u32 s{sXO}, s{sXO}, s{sT0}')
    k(f's_lshl_b32 s{sT0}, s{sKH}, 5')
    k(f's_add_u32 s{sXO}, s{sXO}, s{sT0}')
    k.vmop(f'buffer_load_dwordx2 {v(XR,2)}, v3, s[{SX}:{SX+3}], s{sXO} offen', 'x')
    k.vmop(f'buffer_load_dwordx2 {v(XR+2,2)}, v3, s[{SX}:{SX+3}], s{sXO} offen offset:16', 'x')
    k(f's_lshl_b32 s{sT0}, s{sTT}, 15')
    k(f's_lshl_b32 s{sT1}, s{sKH}, 14')
    k(f's_add_u32 s{sT0}, s{sT0}, s{sT1}')
    k(f'v_add_u32 v5, s{sT0}, v{vO16}')
    k(f's_lshl_b32 s{sT0}, s{sNB}, 15')
    k(f's_add_u32 s{sT0}, s{sT0}, s{sT1}')
    k(f's_add_u32 s{sT0}, s{sT0}, 65536')
    k(f'v_add_u32 v6, s{sT0}, v{vO16}')
    for i in range(16):
        k(f'v_mov_b32 v{ACC+i}, 0')
    k.stamp()
    for ph in range(2):
        k.vmwait(ph)
        k('s_barrier')
        if ph == 0: k.stamp()
        for j in range(8):
            ks = ph * 8 + j
            k(f'ds_read_b128 {v(BUF+8*j,4)}, v5 offset:{ks*1024}')
            k(f'ds_read_b128 {v(BUF+8*j+4,4)}, v6 offset:{ks*1024}')
            if j == 6: k('s_waitcnt lgkmcnt(12)') if False else None
        for j in range(8):
            k(f's_waitcnt lgkmcnt({min(15, 14 - 2*j)})')
            k(MFMA(v(ACC,16), v(BUF+8*j+4,4), v(BUF+8*j,4), v(ACC,16)))
    k('s_nop 15')
    k.stamp()
    k('s_barrier')
    k(f's_and_b32 s{sT0}, s{sW}, 3')
    k(f's_lshl_b32 s{sT0}, s{sT0}, 12')
    k(f'v_add_u32 v5, s{sT0}, v{vO16}')
    LO = k.newlabel('lo'); J = k.newlabel('j')
    k(f's_cmp_eq_u32 s{sKH}, 0')
    k(f's_cbranch_scc1 {LO}')
    k(f'ds_write_b128 v5, {v(ACC,4)}')
    k(f'ds_write_b128 v5, {v(ACC+4,4)} offset:1024')
    k('s_waitcnt lgkmcnt(0)')
    k('s_barrier')
    k(f'ds_read_b128 {v(BUF,4)}, v5 offset:2048')
    k(f'ds_read_b128 {v(BUF+4,4)}, v5 offset:3072')
    for i in range(8):
        k(f'v_mov_b32 v{BUF+8+i}, v{ACC+8+i}')
    k(f's_branch {J}')
    k.label(LO)
    k(f'ds_write_b128 v5, {v(ACC+8,4)} offset:2048')
    k(f'ds_write_b128 v5, {v(ACC+12,4)} offset:3072')
    k('s_waitcnt lgkmcnt(0)')
    k('s_barrier')
    k(f'ds_read_b128 {v(BUF,4)}, v5')
    k(f'ds_read_b128 {v(BUF+4,4)}, v5 offset:1024')
    for i in range(8):
        k(f'v_mov_b32 v{BUF+8+i}, v{ACC+i}')
    k.label(J)
    k('s_waitcnt vmcnt(0)')
    for i in range(4):
        k(f'v_lshlrev_b32 v{BUF+16+2*i}, 16, v{XR+i}')
        k(f'v_and_b32 v{BUF+17+2*i}, 0xffff0000, v{XR+i}')
    for i in range(8):
        k(f'v_add_f32 v{PI+i}, v{PI+i}, v{BUF+16+i}')
        k(f'v_add_f32 v{PI+i}, v{PI+i}, v{BUF+8+i}')
    k('s_waitcnt lgkmcnt(0)')
    for i in range(8):
        k(f'v_add_f32 v{PI+i}, v{PI+i}, v{BUF+i}')
    for i in range(4):
        k(f'v_cvt_pk_bf16_f32 v{BUF+24+i}, v{PI+2*i}, v{PI+2*i+1}')
    k(f'buffer_store_dwordx2 {v(BUF+24,2)}, v3, s[{SO}:{SO+3}], s{sXO} offen')
    k(f'buffer_store_dwordx2 {v(BUF+26,2)}, v3, s[{SO}:{SO+3}], s{sXO} offen offset:16')
    k.stamp()
    if k.st_en:
        k('s_waitcnt vmcnt(0)')
    k.stamp(); k.stamp(real=True)
    k.stamp_dump(2, sW, vtmp=3)
    k.label(END)
    k('s_endpgm')
    return k.text(112, 100 if DBG else 40)

HEADER = open('parallel_sum__mha_block__dense_activation_mish__prompt.s.ref').read().split('; Override launch')[0]

def main(out):
    t1, d1 = gen_k1()
    t2, d2 = gen_k2()
    s = HEADER
    s += f'; @launch kernel=k1_kernel grid=(256,1,1) block=(768,1,1) lds={K1_LDS}\n'
    s += f'; @launch kernel=k2_kernel grid=(256,1,1) block=(512,1,1) lds={K2_LDS}\n'
    s += '.amdgcn_target "amdgcn-amd-amdhsa--gfx950"\n'
    s += t1 + t2 + d1 + d2
    open(out, 'w').write(s)

if __name__ == '__main__':
    main(sys.argv[1] if len(sys.argv) > 1 else 'parallel_sum__mha_block__dense_activation_mish__prompt.s')
```

```python
import math, sys, os
DBG = os.environ.get('DBG', '')
EXP = os.environ.get('EXP', '').split(',')
ST1 = os.environ.get('ST1', 'sc1')
ST2 = os.environ.get('ST2', '')
POLLF = os.environ.get('POLLF', 'sc1')
OLF = os.environ.get('OLF', 'sc1')
OSF = os.environ.get('OSF', 'sc0 sc1')
ODMA = os.environ.get('ODMA', '')
EARLY = int(os.environ.get('EARLY', '1'))
SLP = int(os.environ.get('SLP', '4'))
from asmlib import *

LOG2E = 1.4426950408889634
LN2 = 0.6931471805599453
QSCALE = 0.25 * LOG2E

WS_QKV = 0
WS_TF = 0x600000
WS_WF = 0xF00000
WS_PART = 0x1200000
WS_CNT = 0x1180000
WS_SIZE = 0x10000000

def MFMA(d, A, B, C):
    return f'v_mfma_f32_32x32x16_bf16 {d}, {A}, {B}, {C}'

XSL, NXS = 16384, 3
WSL, NWS = 16384, 6
WRB = XSL * NXS
MISC = WRB + WSL * NWS
L_SW = MISC
L_RSUM = MISC + 1024
L_BIAS = MISC + 2048
L_PRIV = MISC + 2560
K1_LDS = MISC + 2560 + 1024

def gen_k1():
    k = Kern('k1_kernel')
    def BAR():
        if 'nobar' not in EXP: k('s_barrier')
    END = 'k1_end'
    SX, SW_, SWS, SSZ, SB, SWQ = 4, 8, 12, 16, 20, 64
    sW, sRB, sCH, sRBK, sCG = 24, 25, 26, 27, 28
    sC, sXD, sWD, sXO, sFO, sQO, sT0, sT1, sT2 = 29, 30, 31, 32, 33, 34, 53, 54, 55
    sXR, sWR = 56, 63
    sFB, sQB, sTA = 57, 58, 59
    sZD = [60, 61, 62]
    sTB, sSA, sSB, sIDX, sNF, sD1, sD2 = 42, 43, 52, 68, 69, 70, 71
    vTID, vLANE, vH, vN = 0, 1, 8, 9
    k(f's_cmp_ge_u32 s2, 256')
    k(f's_cbranch_scc1 {END}')
    k.stamp_init('1' in DBG, sbase=74)
    k.stamp(); k.stamp(real=True)
    k('s_load_dwordx4 s[36:39], s[0:1], 0')
    k('s_load_dwordx4 s[44:47], s[0:1], 32')
    k('s_load_dwordx2 s[40:41], s[0:1], 16')
    k('s_load_dwordx2 s[48:49], s[0:1], 48')
    k('s_load_dwordx2 s[50:51], s[0:1], 72')
    k(f'v_lshrrev_b32 v2, 6, v0')
    k(f'v_and_b32 v{vLANE}, 63, v0')
    k(f'v_readfirstlane_b32 s{sW}, v2')
    k(f'v_lshrrev_b32 v{vH}, 5, v{vLANE}')
    k(f'v_and_b32 v{vN}, 31, v{vLANE}')
    k(f's_and_b32 s{sT0}, s2, 7')
    k(f's_lshr_b32 s{sT1}, s2, 3')
    k(f's_and_b32 s{sRBK}, s{sT0}, 1')
    k(f's_lshl_b32 s{sRBK}, s{sRBK}, 3')
    k(f's_and_b32 s{sT2}, s{sT1}, 7')
    k(f's_add_u32 s{sRBK}, s{sRBK}, s{sT2}')
    k(f's_lshr_b32 s{sCG}, s{sT0}, 1')
    k(f's_mul_i32 s{sFB}, s{sCG}, 14')
    k(f's_lshl_b32 s{sCG}, s{sCG}, 2')
    k(f's_lshr_b32 s{sT2}, s{sT1}, 3')
    k(f's_add_u32 s{sCG}, s{sCG}, s{sT2}')
    k(f's_lshl_b32 s{sT0}, s{sT2}, 2')
    k(f's_add_u32 s{sFB}, s{sFB}, s{sT0}')
    k(f's_cmp_eq_u32 s{sT2}, 3')
    k(f's_cselect_b32 s{sNF}, 2, 4')
    k(f's_and_b32 s{sRB}, s{sW}, 3')
    k(f's_lshr_b32 s{sCH}, s{sW}, 2')
    k(f's_mul_i32 s{sQB}, s{sCG}, 3')
    PROD = k.newlabel('prod'); ROLE1 = k.newlabel('role1')
    k(f's_cmp_eq_u32 s{sCH}, 2')
    k(f's_cbranch_scc1 {PROD}')
    k(f'v_bfe_u32 v2, v{vN}, 1, 3')
    k(f'v_xor_b32 v2, v2, v{vH}')
    k(f'v_lshlrev_b32 v2, 4, v2')
    k(f'v_lshl_add_u32 v4, v{vN}, 7, v2')
    k(f'v_bfe_u32 v6, v{vLANE}, 2, 2')
    k(f'v_lshl_add_u32 v5, v{vH}, 3, v6')
    k(f'v_lshlrev_b32 v5, 8, v5')
    k(f'v_bfe_u32 v7, v{vLANE}, 4, 1')
    k(f'v_lshl_add_u32 v5, v7, 5, v5')
    k(f'v_and_b32 v7, 3, v{vLANE}')
    k(f'v_lshl_add_u32 v5, v7, 3, v5')
    k(f'v_add_u32 v5, {WRB}, v5')
    SEL, CS, ACC = 24, 28, 32
    vX, vW = 10, 18
    XA, XB = [96, 100], [104, 108]
    WSET = [112, 124]
    CW = 136
    k(f'v_mov_b32 v2, 0')
    k(f'v_mov_b32 v3, 0x3f803f80')
    k(f'v_cmp_eq_u32 vcc, 0, v{vN}')
    k(f'v_cmp_eq_u32 s[72:73], 17, v{vN}')
    k('s_nop 1')
    k('s_or_b64 vcc, vcc, s[72:73]')
    k('s_nop 1')
    k(f'v_cndmask_b32 v{SEL}, v2, v3, vcc')
    for i in range(1, 4):
        k(f'v_mov_b32 v{SEL+i}, v{SEL}')
    k(f's_mov_b32 s{sXR}, 0')
    k(f's_mov_b32 s{sWR}, 0')
    k(f's_lshl_b32 s{sIDX}, s{sRB}, 2')
    k('s_waitcnt lgkmcnt(0)')
    k.srd(SWS, 50, 51, WS_SIZE)
    k(f's_cmp_eq_u32 s{sCH}, 1')
    k(f's_cbranch_scc1 {ROLE1}')

    def f_epilogue(stile, accs):
        k(f's_lshl_b32 s{sT0}, s{stile}, 7')
        k(f'v_lshlrev_b32 v4, 2, v{vN}')
        k(f'v_add_u32 v4, s{sT0}, v4')
        k(f'v_add_u32 v4, {L_RSUM}, v4')
        k(f'ds_read_b32 v10, v4')
        k(f'ds_read_b32 v11, v4 offset:512')
        RL, RML, TWO, C2, LN2P = 14, 16, 22, 24, 26
        k(f'v_mov_b32 v{TWO}, 2.0'); k(f'v_mov_b32 v{TWO+1}, 2.0')
        k(f'v_mov_b32 v{C2}, {fhex(-2*LN2)}'); k(f'v_mov_b32 v{C2+1}, {fhex(-2*LN2)}')
        k(f'v_mov_b32 v{LN2P}, {fhex(LN2)}'); k(f'v_mov_b32 v{LN2P+1}, {fhex(LN2)}')
        VEC = [[96, 112], [128, 144]]
        TU, E, TT = 112, 96, 160
        for wj, ss in enumerate((sSA, sSB)):
            k(f's_lshl_b32 s{sT0}, s{ss}, 7')
            k(f'v_add_u32 v7, s{sT0}, v5')
            for g_ in range(4):
                k(f'ds_read_b128 {v(VEC[wj][0]+4*g_,4)}, v7 offset:{g_*32}')
                k(f'ds_read_b128 {v(VEC[wj][1]+4*g_,4)}, v7 offset:{L_BIAS - L_SW + g_*32}')
            if wj == 0: k('s_waitcnt lgkmcnt(8)')
            if wj == 0:
                for d in range(2):
                    k(f'v_mul_f32 v{RL+d}, {fhex(LOG2E)}, v10')
                    k(f'v_mul_f32 v{RML+d}, {fhex(LOG2E)}, v11')
        P2 = lambda r: v(r, 2)
        SKS = k.newlabel('noslot')
        k(f's_cmp_ge_u32 s{sSA}, s{sNF}')
        k(f's_cbranch_scc1 {SKS}')
        for wj, ss in enumerate((sSA, sSB)):
            A = accs[wj]
            SWV, CLV = VEC[wj]
            k(f's_add_u32 s{sT0}, s{sC}, s{stile}')
            k(f's_mul_i32 s{sT0}, s{sT0}, 144')
            k(f's_add_u32 s{sT1}, s{sFB}, s{ss}')
            k(f's_lshl_b32 s{sT1}, s{sT1}, 1')
            k(f's_add_u32 s{sT0}, s{sT0}, s{sT1}')
            k(f's_add_u32 s{sT0}, s{sT0}, 32')
            k(f's_lshl_b32 s{sT0}, s{sT0}, 10')
            k(f's_add_u32 s{sD1}, s{sT0}, {WS_TF:#x}')
            k(f's_waitcnt lgkmcnt({8 if wj == 0 else 0})')
            for i in range(0, 16, 2):
                k(f'v_pk_fma_f32 {P2(CLV+i)}, {P2(RML)}, {P2(SWV+i)}, {P2(CLV+i)} neg_lo:[1,0,0] neg_hi:[1,0,0]')
            for i in range(0, 16, 2):
                k(f'v_pk_fma_f32 {P2(A+i)}, {P2(A+i)}, {P2(RL)}, {P2(CLV+i)}')
            for i in range(16):
                k(f'v_exp_f32 v{SWV+i}, v{A+i}')
            for i in range(0, 16, 2):
                k(f'v_pk_add_f32 {P2(CLV+i)}, {P2(SWV+i)}, {P2(TWO)}')
            for i in range(0, 16, 2):
                k(f'v_pk_fma_f32 {P2(SWV+i)}, {P2(SWV+i)}, {P2(CLV+i)}, {P2(TWO)}')
            for i in range(16):
                k(f'v_rcp_f32 v{SWV+i}, v{SWV+i}')
            for i in range(0, 16, 2):
                k(f'v_pk_fma_f32 {P2(SWV+i)}, {P2(SWV+i)}, {P2(C2)}, {P2(LN2P)}')
            for i in range(0, 16, 2):
                k(f'v_pk_mul_f32 {P2(A+i)}, {P2(A+i)}, {P2(SWV+i)}')
            for i in range(8):
                k(f'v_cvt_pk_bf16_f32 v{TT+i}, v{A+2*i}, v{A+2*i+1}')
            k(f'buffer_store_dwordx4 {v(TT,4)}, v6, s[{SWS}:{SWS+3}], s{sD1} offen {ST1}')
            k(f'buffer_store_dwordx4 {v(TT+4,4)}, v6, s[{SWS}:{SWS+3}], s{sD1} offen offset:1024 {ST1}')
            k('s_nop 1')
        k.label(SKS)

    def role(rid, types):
        WB_ = 0 if rid == 0 else 8192
        rot = (rid == 1 and len(set(types)) == 1)
        if rid == 0:
            k.srd(SB, 46, 47, 1792 * 2)
            k(f's_lshl_b32 s{sT0}, s{sFB}, 6')
            k(f'v_lshlrev_b32 v2, 1, v{vTID}')
            k(f'buffer_load_ushort v21, v2, s[{SB}:{SB+3}], s{sT0} offen')
            k(f's_lshr_b32 s{sT0}, s{sW}, 1')
            k(f's_and_b32 s{sT1}, s{sW}, 1')
            k(f's_lshl_b32 s{sTA}, s{sT0}, 1')
            k(f's_or_b32 s{sTA}, s{sTA}, s{sT1}')
            k(f's_xor_b32 s{sTB}, s{sTA}, 1')
            k(f's_lshl_b32 s{sSA}, s{sT1}, 1')
            k(f's_or_b32 s{sSA}, s{sSA}, s{sT0}')
            k(f's_xor_b32 s{sSB}, s{sSA}, 1')
            nx, nwf = 2, 2
            for i, st_ in enumerate((sTA, sTB)):
                k(f's_lshl_b32 s{sT0}, s{st_}, 12')
                k(f'v_add_u32 v{vX+4*i}, s{sT0}, v4')
                for kk in range(1, 4):
                    k(f'v_xor_b32 v{vX+4*i+kk}, {kk*32}, v{vX+4*i}')
            for j, ss in enumerate((sSA, sSB)):
                k(f'v_xor_b32 v7, s{ss}, v6')
                k(f'v_lshl_add_u32 v{vW+j}, v7, 6, v5')
            tiles = [(0, 0), (0, 1), (1, 0), (1, 1)]
        else:
            k(f's_mov_b32 s{sTA}, s{sRB}')
            nx, nwf = 1, 3
            k(f's_lshl_b32 s{sT0}, s{sRB}, 12')
            k(f'v_add_u32 v{vX}, s{sT0}, v4')
            for kk in range(1, 4):
                k(f'v_xor_b32 v{vX+kk}, {kk*32}, v{vX}')
            SL = [sSA, sSB, sTB]
            for j in range(3):
                if rot:
                    k(f's_add_u32 s{SL[j]}, s{sRB}, {j}')
                    k(f's_cmp_ge_u32 s{SL[j]}, 3')
                    k(f's_cselect_b32 s{sT0}, 3, 0')
                    k(f's_sub_u32 s{SL[j]}, s{SL[j]}, s{sT0}')
                    k(f's_cmp_ge_u32 s{SL[j]}, 3')
                    k(f's_cselect_b32 s{sT0}, 3, 0')
                    k(f's_sub_u32 s{SL[j]}, s{SL[j]}, s{sT0}')
                else:
                    k(f's_mov_b32 s{SL[j]}, {j}')
                k(f'v_xor_b32 v7, s{SL[j]}, v6')
                k(f'v_lshl_add_u32 v{vW+j}, v7, 6, v5')
            tiles = [(0, 0), (0, 1), (0, 2)]
        nt = len(tiles)
        XR = [XA, XB]
        for i in range(16 * nt):
            k(f'v_mov_b32 v{ACC+i}, 0')
        for i in range(4):
            k(f'v_mov_b32 v{CS+i}, 0')
        def rd_list(kk, ks, st):
            off = WB_ + ks * 4096
            def xr(i): return [f'ds_read_b128 {v(XR[i][st],4)}, v{vX+4*i+kk}']
            def wr(j): return [f'ds_read_b64_tr_b16 {v(WSET[st]+4*j,2)}, v{vW+j} offset:{off}',
                               f'ds_read_b64_tr_b16 {v(WSET[st]+4*j+2,2)}, v{vW+j} offset:{off+1024}']
            if rid == 0: return xr(0) + wr(0) + wr(1) + xr(1)
            return xr(0) + wr(0) + wr(1) + wr(2)
        need = [3, 5, 6, 6] if rid == 0 else [3, 5, 7]
        NOLD = 6 if rid == 0 else 7
        def advW():
            L = [f's_add_u32 s{sWR}, s{sWR}, {WSL}', f's_cmp_eq_u32 s{sWR}, {NWS*WSL}',
                 f's_mov_b32 s{sT2}, {WSL}', f's_cselect_b32 s{sT2}, {(WSL - NWS*WSL) & 0xffffffff:#x}, s{sT2}', f's_cselect_b32 s{sWR}, 0, s{sWR}']
            for j in range(nwf):
                L.append(f'v_add_u32 v{vW+j}, s{sT2}, v{vW+j}')
            return L
        def advX():
            L = [f's_add_u32 s{sXR}, s{sXR}, {XSL}', f's_cmp_eq_u32 s{sXR}, {NXS*XSL}',
                 f's_mov_b32 s{sT1}, {XSL}', f's_cselect_b32 s{sT1}, {(XSL - NXS*XSL) & 0xffffffff:#x}, s{sT1}', f's_cselect_b32 s{sXR}, 0, s{sXR}']
            for i in range(4 * nx):
                L.append(f'v_add_u32 v{vX+i}, s{sT1}, v{vX+i}')
            return L
        def kstep(st, nxt_reads, pre=(), post=()):
            if 'nocomp' in EXP:
                for s_ in post: k(s_)
                return
            rl = list(nxt_reads)
            if 'nolds1' in EXP: rl = []
            pre = list(pre)
            per = (len(rl) + nt - 1) // nt
            pper = (len(pre) + nt - 2) // (nt - 1) if pre else 0
            new = 0
            for t, (xi, wj) in enumerate(tiles):
                X = v(XR[xi][st], 4); W = v(WSET[st] + 4 * wj, 4); A = v(ACC + 16 * t, 16)
                k(f's_waitcnt lgkmcnt({NOLD - need[t] + new})')
                ty = 'T' if rid == 0 else types[t]
                if ty == 'N': k(MFMA(A, X, W, A))
                else: k(MFMA(A, W, X, A))
                if t == 0:
                    for s_ in pre: k(s_)
                for _ in range(per):
                    if rl:
                        k(rl.pop(0)); new += 1
                if 'nodot' not in EXP and 'noh' not in EXP:
                    if t == 1 and (rid == 0 or rot):
                        k(f'v_mfma_f32_16x16x32_bf16 {v(CS,4)}, {v(SEL,4)}, {v(WSET[st],4)}, {v(CS,4)}')
                    if rid == 1 and not rot and t == 2:
                        k(f's_set_gpr_idx_on s{sIDX}, gpr_idx(SRC0)')
                        k('s_nop 0')
                        for r in range(4):
                            k(f'v_mov_b32 v{CW+r}, v{WSET[st]+r}')
                        k('s_set_gpr_idx_off')
                        k('s_nop 1')
                        k(f'v_mfma_f32_16x16x32_bf16 {v(CS,4)}, {v(SEL,4)}, {v(CW,4)}, {v(CS,4)}')
            for s_ in post: k(s_)
            assert not rl
        def iteration(par, post=()):
            if 'bartop' in EXP: BAR()
            kstep(0, rd_list(2 * par + 1, 1, 1))
            pre = ([] if 'bartop' in EXP else ['s_barrier']) + advW() + (advX() if par == 1 else [])
            kstep(1, rd_list((2 * par + 2) % 4, 0, 0), pre=pre, post=post)
        k.stamp()
        BAR()
        k.stamp()
        for t in rd_list(0, 0, 0): k(t)
        LOOP = k.newlabel('loop')
        k(f's_mov_b32 s{sC}, 0')
        k.label(LOOP)
        iteration(0)
        iteration(1, post=[f's_add_u32 s{sC}, s{sC}, 1', f's_cmp_lt_u32 s{sC}, 8'])
        k(f's_cbranch_scc1 {LOOP}')
        k('s_nop 7')
        k.stamp()
        NS = k.newlabel('nosw')
        if rid == 0:
            k(f's_lshl_b32 s{sT0}, s{sSA}, 7')
            k(f's_add_u32 s{sT0}, s{sT0}, {L_SW}')
        elif rot:
            k(f's_lshl_b32 s{sT0}, s{sSA}, 7')
            k(f's_add_u32 s{sT0}, s{sT0}, {L_SW + 512}')
        else:
            k(f's_cmp_eq_u32 s{sRB}, 3')
            k(f's_cbranch_scc1 {NS}')
            k(f's_lshl_b32 s{sT0}, s{sRB}, 7')
            k(f's_add_u32 s{sT0}, s{sT0}, {L_SW + 512}')
        k(f'v_lshlrev_b32 v3, 2, v{vLANE}')
        k(f'v_add_u32 v3, s{sT0}, v3')
        k('s_mov_b64 exec, 0xffff')
        k(f'ds_write_b32 v3, v{CS}')
        k(f'ds_write_b32 v3, v{CS+1} offset:64')
        k('s_mov_b64 exec, -1')
        k.label(NS)
        if rid == 0:
            k(f's_lshr_b32 s{sT0}, s{sW}, 1')
            k(f's_lshl_b32 s{sT0}, s{sT0}, 15')
            k(f's_and_b32 s{sT1}, s{sW}, 1')
            k(f's_lshl_b32 s{sT1}, s{sT1}, 13')
            k(f's_add_u32 s{sT0}, s{sT0}, s{sT1}')
            k(f'v_lshlrev_b32 v3, 4, v{vLANE}')
            k(f'v_add_u32 v3, s{sT0}, v3')
            for q in range(8):
                k(f'ds_write_b128 v3, {v(ACC+32+4*q,4)} offset:{q*1024}')
            NB = k.newlabel('nobias')
            k(f's_cmp_ge_u32 s{sW}, 2')
            k(f's_cbranch_scc1 {NB}')
            k('s_waitcnt vmcnt(0)')
            k(f'v_lshlrev_b32 v3, 16, v21')
            k(f'v_mul_f32 v3, {fhex(LOG2E)}, v3')
            k(f'v_lshlrev_b32 v4, 2, v{vTID}')
            k(f'v_add_u32 v4, {L_BIAS}, v4')
            k(f'ds_write_b32 v4, v3')
            k.label(NB)
        k('s_waitcnt lgkmcnt(0)')
        BAR()
        k.stamp()
        def tokstats_issue(stile, r0):
            k(f's_lshl_b32 s{sT0}, s{stile}, 7')
            k(f'v_lshlrev_b32 v4, 2, v{vN}')
            k(f'v_add_u32 v4, s{sT0}, v4')
            k(f'v_add_u32 v4, {L_RSUM}, v4')
            k(f'ds_read_b32 v{r0}, v4')
            k(f'ds_read_b32 v{r0+1}, v4 offset:512')
        k(f'v_lshlrev_b32 v5, 4, v{vH}')
        k(f'v_add_u32 v5, {L_SW}, v5')
        k(f'v_lshlrev_b32 v6, 4, v{vLANE}')
        k(f's_lshl_b32 s{sC}, s{sRBK}, 2')
        if rid == 0:
            f_epilogue(sTA, [ACC, ACC + 16])
        else:
            k('s_setprio 2')
            vR, vRM = 10, 11
            tokstats_issue(sTA, 10)
            if 'N' in types:
                k(f's_lshl_b32 s{sT0}, s{sTA}, 7')
                k(f'v_lshlrev_b32 v7, 4, v{vH}')
                k(f'v_add_u32 v7, s{sT0}, v7')
                k(f'v_add_u32 v7, {L_RSUM}, v7')
                for g_ in range(4):
                    k(f'ds_read_b128 {v(120+4*g_,4)}, v7 offset:{g_*32}')
                    k(f'ds_read_b128 {v(136+4*g_,4)}, v7 offset:{g_*32 + 512}')
                k(f'v_lshrrev_b32 v12, 4, v{vN}')
                k(f'v_lshlrev_b32 v12, 16, v12')
                k(f'v_lshl_add_u32 v12, v{vH}, 8, v12')
                k(f'v_and_b32 v13, 15, v{vN}')
                k(f'v_lshl_add_u32 v12, v13, 4, v12')
            k(f's_add_u32 s{sD1}, s{sC}, s{sTA}')
            SL = [sSA, sSB, sTB]
            CV = [80, 96, 152]
            for j in range(3):
                k(f's_lshl_b32 s{sD2}, s{SL[j]}, 7')
                if types[j] == 'T':
                    k(f'v_add_u32 v7, s{sD2}, v5')
                    for g_ in range(4):
                        k(f'ds_read_b128 {v(CV[j]+4*g_,4)}, v7 offset:{512 + g_*32}')
                else:
                    k(f'v_lshlrev_b32 v13, 2, v{vN}')
                    k(f'v_add_u32 v13, s{sD2}, v13')
                    k(f'v_add_u32 v13, {L_SW + 512}, v13')
                    k(f'ds_read_b32 v{16+j}, v13')
                if j == 1: k('s_waitcnt lgkmcnt(8)')
            k('s_waitcnt lgkmcnt(0)')
            for j in range(3):
                A = ACC + 16 * j
                T = 112
                k(f's_add_u32 s{sT1}, s{sQB}, s{SL[j]}')
                k(f's_lshl_b32 s{sT0}, s{sT1}, 17')
                k(f's_lshl_b32 s{sT2}, s{sD1}, 10')
                k(f's_add_u32 s{sT0}, s{sT0}, s{sT2}')
                if types[j] == 'T':
                    SWR = CV[j]
                    k(f's_cmp_lt_u32 s{sT1}, 16')
                    k(f's_cselect_b32 s{sD2}, {fhex(QSCALE)}, 1.0')
                    k(f'v_mul_f32 v14, s{sD2}, v{vR}')
                    k(f'v_mul_f32 v15, s{sD2}, v{vRM}')
                    for i in range(16):
                        k(f'v_mul_f32 v{SWR+i}, v15, v{SWR+i}')
                    for i in range(16):
                        k(f'v_fma_f32 v{A+i}, v{A+i}, v14, -v{SWR+i}')
                    for i in range(8):
                        k(f'v_cvt_pk_bf16_f32 v{T+i}, v{A+2*i}, v{A+2*i+1}')
                    k(f's_add_u32 s{sT2}, s{sT0}, 0x10000')
                    k(f'buffer_store_dwordx4 {v(T,4)}, v6, s[{SWS}:{SWS+3}], s{sT0} offen {ST1}')
                    k(f'buffer_store_dwordx4 {v(T+4,4)}, v6, s[{SWS}:{SWS+3}], s{sT2} offen {ST1}')
                    k('s_nop 1')
                else:
                    SWR = 80
                    for i in range(16):
                        k(f'v_mul_f32 v{SWR+i}, v{16+j}, v{136+i}')
                    for i in range(16):
                        k(f'v_fma_f32 v{A+i}, v{A+i}, v{120+i}, -v{SWR+i}')
                    for i in range(8):
                        k(f'v_cvt_pk_bf16_f32 v{T+i}, v{A+2*i}, v{A+2*i+1}')
                    k(f'buffer_store_dwordx4 {v(T,4)}, v12, s[{SWS}:{SWS+3}], s{sT0} offen {ST1}')
                    k(f'buffer_store_dwordx4 {v(T+4,4)}, v12, s[{SWS}:{SWS+3}], s{sT0} offen offset:512 {ST1}')
                    k('s_nop 1')
        k.stamp()
        if k.st_en:
            k('s_waitcnt vmcnt(0)')
        k.stamp(); k.stamp(real=True)
        k.stamp_dump(0, sW, vtmp=3)
        k('s_endpgm')

    n0 = k.st_n
    role(0, None)
    k.label(ROLE1)
    V1 = k.newlabel('ttn'); V2 = k.newlabel('nnn')
    k(f's_cmp_eq_u32 s{sCG}, 10')
    k(f's_cbranch_scc1 {V1}')
    k(f's_cmp_gt_u32 s{sCG}, 10')
    k(f's_cbranch_scc1 {V2}')
    k.st_n = n0
    role(1, ['T', 'T', 'T'])
    k.label(V1)
    k.st_n = n0
    role(1, ['T', 'T', 'N'])
    k.label(V2)
    k.st_n = n0
    role(1, ['N', 'N', 'N'])

    k.label(PROD)
    k.st_n = n0
    if os.environ.get('PPRIO'): k(f's_setprio {os.environ["PPRIO"]}')
    vOX0, vOX1, vOF, vOQ = 10, 11, 12, 13
    vXs = 14
    XF = [20, 24]
    TMP = 28
    RS = 36
    SWZ = [40, 48, 56]
    vZ1, vZ2 = 64, 65
    k(f'v_lshrrev_b32 v2, 3, v{vLANE}')
    k(f'v_and_b32 v3, 7, v{vLANE}')
    k(f'v_lshrrev_b32 v4, 4, v{vLANE}')
    k(f'v_xor_b32 v5, v3, v4')
    k(f'v_lshlrev_b32 v5, 4, v5')
    k(f'v_lshl_add_u32 v{vOX0}, v2, 10, v5')
    k(f'v_xor_b32 v{vOX1}, 64, v{vOX0}')
    k(f'v_add_u32 v{vOX1}, 0x2000, v{vOX1}')
    k(f'v_and_b32 v3, 3, v{vLANE}')
    k(f'v_bfe_u32 v5, v{vLANE}, 2, 2')
    k(f'v_xor_b32 v5, v5, v4')
    k(f'v_lshlrev_b32 v6, 4, v3')
    k(f'v_lshl_add_u32 v6, v5, 6, v6')
    k(f'v_mul_u32_u24 v7, 3584, v4')
    k(f'v_add_u32 v{vOF}, v7, v6')
    k(f'v_mul_u32_u24 v7, 3072, v4')
    k(f'v_add_u32 v{vOQ}, v7, v6')
    k(f'v_mov_b32 v7, 0x7f000000')
    k(f'v_cmp_eq_u32 vcc, 3, v5')
    k(f'v_cmp_le_u32 s[72:73], s{sNF}, v5')
    k('s_nop 1')
    k(f'v_cndmask_b32 v{vOQ}, v{vOQ}, v7, vcc')
    k(f'v_cndmask_b32 v{vOF}, v{vOF}, v7, s[72:73]')
    k(f's_lshl_b32 s{sXO}, s{sRBK}, 17')
    k(f's_lshl_b32 s{sT0}, s{sRB}, 15')
    k(f's_add_u32 s{sXO}, s{sXO}, s{sT0}')
    k(f's_mul_i32 s{sFO}, s{sRB}, {8*3584}')
    k(f's_lshl_b32 s{sT0}, s{sFB}, 6')
    k(f's_add_u32 s{sFO}, s{sFO}, s{sT0}')
    k(f's_mul_i32 s{sQO}, s{sRB}, {8*3072}')
    k(f's_lshl_b32 s{sT0}, s{sQB}, 6')
    k(f's_add_u32 s{sQO}, s{sQO}, s{sT0}')
    k(f's_lshl_b32 s{sXD}, s{sRB}, 12')
    k(f's_lshl_b32 s{sWD}, s{sRB}, 11')
    k(f's_add_u32 s{sWD}, s{sWD}, {WRB}')
    k('s_waitcnt lgkmcnt(0)')
    k.srd(SX, 36, 37, 2048 * 512 * 2)
    k.srd(SW_, 44, 45, 512 * 3584)
    k.srd(SWQ, 38, 39, 512 * 3072)
    def dmaX_groups(tag):
        return [[f's_mov_b32 m0, s{sXD}', f's_add_u32 s{sT0}, s{sXO}, 16384', (f'buffer_load_dwordx4 v{vOX0}, s[{SX}:{SX+3}], s{sXO} offen lds', tag)],
                [f's_add_u32 m0, s{sXD}, 1024', 's_nop 0', (f'buffer_load_dwordx4 v{vOX1}, s[{SX}:{SX+3}], s{sXO} offen lds', tag)],
                [f's_add_u32 m0, s{sXD}, 2048', f's_add_u32 s{sXO}, s{sXO}, 128', (f'buffer_load_dwordx4 v{vOX0}, s[{SX}:{SX+3}], s{sT0} offen lds', tag)],
                [f's_add_u32 m0, s{sXD}, 3072', f's_add_u32 s{sXD}, s{sXD}, {XSL}', (f'buffer_load_dwordx4 v{vOX1}, s[{SX}:{SX+3}], s{sT0} offen lds', tag),
                 f's_cmp_ge_u32 s{sXD}, {NXS*XSL}', f's_cselect_b32 s{sT0}, {NXS*XSL}, 0', f's_sub_u32 s{sXD}, s{sXD}, s{sT0}']]
    def dmaW_groups(tag):
        return [[f's_mov_b32 m0, s{sWD}', f's_add_u32 s{sT2}, s{sFO}, {4*3584}', (f'buffer_load_dwordx4 v{vOF}, s[{SW_}:{SW_+3}], s{sFO} offen lds', tag)],
                [f's_add_u32 m0, s{sWD}, 1024', f's_add_u32 s{sFO}, s{sFO}, {32*3584}', (f'buffer_load_dwordx4 v{vOF}, s[{SW_}:{SW_+3}], s{sT2} offen lds', tag)],
                [f's_add_u32 m0, s{sWD}, 8192', f's_add_u32 s{sT2}, s{sQO}, {4*3072}', (f'buffer_load_dwordx4 v{vOQ}, s[{SWQ}:{SWQ+3}], s{sQO} offen lds', tag)],
                [f's_add_u32 m0, s{sWD}, 9216', f's_add_u32 s{sQO}, s{sQO}, {32*3072}', (f'buffer_load_dwordx4 v{vOQ}, s[{SWQ}:{SWQ+3}], s{sT2} offen lds', tag),
                 f's_add_u32 s{sWD}, s{sWD}, {WSL}', f's_cmp_ge_u32 s{sWD}, {WRB + NWS*WSL}', f's_cselect_b32 s{sT2}, {NWS*WSL}, 0', f's_sub_u32 s{sWD}, s{sWD}, s{sT2}']]
    def emit_group(gr):
        for t in gr:
            if isinstance(t, tuple): k.vmop(t[0], t[1])
            else: k(t)
    def dmaX(tag):
        for gr in dmaX_groups(tag): emit_group(gr)
    def dmaW(tag):
        for gr in dmaW_groups(tag): emit_group(gr)
    k.vm = []
    dmaX(('X', 0)); dmaW(('W', 0)); dmaW(('W', 1))
    k.stamp()
    dmaX(('X', 1)); dmaW(('W', 2))
    k(f'v_bfe_u32 v2, v{vN}, 1, 3')
    k(f'v_xor_b32 v2, v2, v{vH}')
    k(f'v_lshlrev_b32 v2, 4, v2')
    k(f'v_lshl_add_u32 v4, v{vN}, 7, v2')
    k(f's_lshl_b32 s{sT0}, s{sRB}, 12')
    k(f'v_add_u32 v{vXs}, s{sT0}, v4')
    for kk in range(1, 4):
        k(f'v_xor_b32 v{vXs+kk}, {kk*32}, v{vXs}')
    for i in range(4):
        k(f'v_mov_b32 v{RS+i}, 0')
    k(f's_mov_b32 s{sXR}, 0')
    k.srd(SWS, 50, 51, WS_SIZE)
    XFB = [[20, 24], [72, 76]]
    def stat_reads(par, buf):
        if 'nodot' in EXP or 'nostat' in EXP: return
        k(f'ds_read_b128 {v(XFB[buf][0],4)}, v{vXs+2*par}')
        k(f'ds_read_b128 {v(XFB[buf][1],4)}, v{vXs+2*par+1}')
        if par == 1:
            k(f's_add_u32 s{sXR}, s{sXR}, {XSL}')
            k(f's_cmp_eq_u32 s{sXR}, {NXS*XSL}')
            k(f's_mov_b32 s{sT1}, {XSL}')
            k(f's_cselect_b32 s{sT1}, {(XSL - NXS*XSL) & 0xffffffff:#x}, s{sT1}')
            k(f's_cselect_b32 s{sXR}, 0, s{sXR}')
            for i in range(4):
                k(f'v_add_u32 v{vXs+i}, s{sT1}, v{vXs+i}')
    def stat_ops(buf):
        if 'nodot' in EXP or 'nostat' in EXP: return []
        L = []
        for s_ in range(2):
            for q in range(4):
                x = XFB[buf][s_] + q
                L += [f'v_and_b32 v{TMP+2*q}, 0xffff0000, v{x}', f'v_lshlrev_b32 v{TMP+2*q+1}, 16, v{x}']
            for q in range(4):
                L += [f'v_add_f32 v{RS}, v{RS}, v{TMP+2*q}', f'v_fmac_f32 v{RS+2}, v{TMP+2*q}, v{TMP+2*q}',
                      f'v_add_f32 v{RS+1}, v{RS+1}, v{TMP+2*q+1}', f'v_fmac_f32 v{RS+3}, v{TMP+2*q+1}, v{TMP+2*q+1}']
        return L
    def side_loads():
        k(f'v_lshlrev_b32 v2, 12, v{vH}')
        k(f'v_lshl_add_u32 v{vZ1}, v{vN}, 1, v2')
        k(f'v_add_u32 v{vZ2}, 0x2000, v{vZ1}')
        k(f's_and_b32 s{sT2}, s2, 3')
        k(f's_lshl_b32 s{sT2}, s{sT2}, 2')
        k(f's_add_u32 s{sT2}, s{sT2}, s{sRB}')
        for i in range(3):
            SKI = None
            if i == 2:
                SKI = k.newlabel('noswz3')
                k(f's_cmp_ge_u32 s2, 64')
                k(f's_cbranch_scc1 {SKI}')
            k(f's_lshr_b32 s{sT0}, s2, 2')
            if i: k(f's_add_u32 s{sT0}, s{sT0}, {64*i}')
            if i == 0:
                k(f's_cmp_lt_u32 s{sT0}, 32')
                k(f's_cselect_b32 s{SSZ}, s40, s48')
                k(f's_cselect_b32 s{SSZ+1}, s41, s49')
                k(f's_mov_b32 s{SSZ+2}, {1792*1024:#x}')
                k(f's_cselect_b32 s{SSZ+2}, {512*1024:#x}, s{SSZ+2}')
                k(f's_cselect_b32 s{sT1}, 0, 32')
                k(f's_and_b32 s{SSZ+1}, s{SSZ+1}, 0xffff')
                k(f's_mov_b32 s{SSZ+3}, 0x20000')
                k(f's_sub_u32 s{sT1}, s{sT0}, s{sT1}')
            else:
                if i == 1: k.srd(SSZ, 48, 49, 1792 * 1024)
                k(f's_sub_u32 s{sT1}, s{sT0}, 32')
            k(f's_lshl_b32 s{sT1}, s{sT1}, 14')
            k(f's_lshl_b32 s{sZD[i]}, s{sT2}, 6')
            k(f's_add_u32 s{sT1}, s{sT1}, s{sZD[i]}')
            for j in range(8):
                k(f'buffer_load_ushort v{SWZ[i]+j}, v{vZ1 if j < 4 else vZ2}, s[{SSZ}:{SSZ+3}], s{sT1} offen offset:{(j%4)*1024}')
            k(f's_lshl_b32 s{sZD[i]}, s{sT0}, 4')
            k(f's_add_u32 s{sZD[i]}, s{sZD[i]}, s{sT2}')
            k(f's_lshl_b32 s{sZD[i]}, s{sZD[i]}, 10')
            k(f's_add_u32 s{sZD[i]}, s{sZD[i]}, {WS_WF:#x}')
            if SKI: k.label(SKI)
    def side_stores():
        k(f'v_lshlrev_b32 v2, 4, v{vLANE}')
        for i in range(3):
            SKI = None
            if i == 2:
                SKI = k.newlabel('noswz3s')
                k(f's_cmp_ge_u32 s2, 64')
                k(f's_cbranch_scc1 {SKI}')
            for r in range(4):
                k(f'v_lshl_or_b32 v{68+r}, v{SWZ[i]+2*r+1}, 16, v{SWZ[i]+2*r}')
            k(f'buffer_store_dwordx4 v[68:71], v2, s[{SWS}:{SWS+3}], s{sZD[i]} offen {ST1}')
            k('s_nop 1')
            if SKI: k.label(SKI)
    k.vmwait(('W', 0))
    BAR()
    k.stamp()
    dmaW(('W', 3)); dmaW(('W', 4))
    def prod_iter(c):
        if c + 1 < 16:
            tw, tx = ('W', c + 1), ('X', (c + 1) // 2)
            iw = max([i for i, t in enumerate(k.vm) if t == tw], default=-1)
            ix = max([i for i, t in enumerate(k.vm) if t == tx], default=-1)
            if max(iw, ix) >= 0:
                k.vmwait(tw if iw > ix else tx)
        BAR()
        stat_reads(c & 1, c & 1)
        groups = []
        if 'nodma' not in EXP:
            if c % 2 == 0 and c // 2 + 2 < 8: groups += dmaX_groups(('X', c // 2 + 2))
            if c + 5 < 16: groups += dmaW_groups(('W', c + 5))
        ops = stat_ops((c - 1) & 1) if c >= 1 else []
        per = (len(ops) + max(len(groups), 1) - 1) // max(len(groups), 1)
        for gr in groups:
            emit_group(gr)
            for _ in range(per):
                if ops: k(ops.pop(0))
        for t in ops: k(t)
        if c == 14:
            side_loads()
        k('s_waitcnt lgkmcnt(0)')
    prod_iter(0)
    PL = k.newlabel('ploop')
    k(f's_mov_b32 s{sC}, 0')
    k.label(PL)
    n_before = len(k.lines)
    prod_iter(1); prod_iter(2)
    body12 = k.lines[n_before:]
    k(f's_add_u32 s{sC}, s{sC}, 1')
    k(f's_cmp_lt_u32 s{sC}, 5')
    k(f's_cbranch_scc1 {PL}')
    n_mark = len(k.lines)
    for c in range(3, 11, 2):
        n0_ = len(k.lines)
        prod_iter(c); prod_iter(c + 1)
        assert k.lines[n0_:] == body12, c
        del k.lines[n0_:]
    for c in range(11, 16):
        prod_iter(c)
    for t in stat_ops(15 & 1): k(t)
    k.stamp()
    k(f'v_add_f32 v{RS}, v{RS}, v{RS+1}')
    k(f'v_add_f32 v{RS+2}, v{RS+2}, v{RS+3}')
    k(f'v_mov_b32 v{RS+1}, v{RS}')
    k(f'v_mov_b32 v{RS+3}, v{RS+2}')
    k('s_nop 1')
    k(f'v_permlane32_swap_b32 v{RS}, v{RS+1}')
    k(f'v_permlane32_swap_b32 v{RS+2}, v{RS+3}')
    k('s_nop 1')
    k(f'v_add_f32 v5, v{RS}, v{RS+1}')
    k(f'v_add_f32 v6, v{RS+2}, v{RS+3}')
    k(f'v_mul_f32 v5, {fhex(1/512)}, v5')
    k(f'v_mul_f32 v6, {fhex(1/512)}, v6')
    k(f'v_fma_f32 v6, -v5, v5, v6')
    k(f'v_max_f32 v6, 0, v6')
    k(f'v_add_f32 v6, {fhex(1e-5)}, v6')
    k(f'v_rsq_f32 v6, v6')
    k('s_nop 0')
    k(f'v_mul_f32 v5, v5, v6')
    k(f's_lshl_b32 s{sT0}, s{sRB}, 7')
    k(f'v_lshlrev_b32 v2, 2, v{vN}')
    k(f'v_add_u32 v2, s{sT0}, v2')
    k(f'v_add_u32 v2, {L_RSUM}, v2')
    k(f'ds_write_b32 v2, v6')
    k(f'ds_write_b32 v2, v5 offset:512')
    k('s_waitcnt lgkmcnt(0)')
    BAR()
    k.stamp()
    k(f's_lshr_b32 s{sT0}, s{sRB}, 1')
    k(f's_and_b32 s{sT1}, s{sRB}, 1')
    k(f's_lshl_b32 s{sTA}, s{sT0}, 1')
    k(f's_or_b32 s{sTA}, s{sTA}, s{sT1}')
    k(f's_xor_b32 s{sTB}, s{sTA}, 1')
    k(f's_lshl_b32 s{sSA}, s{sT1}, 1')
    k(f's_or_b32 s{sSA}, s{sSA}, s{sT0}')
    k(f's_xor_b32 s{sSB}, s{sSA}, 1')
    k(f's_lshl_b32 s{sT0}, s{sT0}, 15')
    k(f's_lshl_b32 s{sT1}, s{sT1}, 13')
    k(f's_add_u32 s{sT0}, s{sT0}, s{sT1}')
    k(f'v_lshlrev_b32 v6, 4, v{vLANE}')
    k(f'v_add_u32 v3, s{sT0}, v6')
    for q in range(8):
        k(f'ds_read_b128 {v(64+4*q if False else 28+0,4)}, v3') if False else None
    PA = 64
    k('s_waitcnt vmcnt(0)')
    side_stores()
    k('s_setprio 1')
    for q in range(8):
        k(f'ds_read_b128 {v(PA+4*q,4)}, v3 offset:{q*1024}')
    k(f'v_lshlrev_b32 v5, 4, v{vH}')
    k(f'v_add_u32 v5, {L_SW}, v5')
    k(f's_lshl_b32 s{sC}, s{sRBK}, 2')
    k('s_waitcnt lgkmcnt(0)')
    f_epilogue(sTB, [PA, PA + 16])
    NZ = k.newlabel('nozero')
    k(f's_cmp_ge_u32 s2, 32')
    k(f's_cbranch_scc1 {NZ}')
    k(f's_cmp_lg_u32 s{sRB}, 0')
    k(f's_cbranch_scc1 {NZ}')
    k(f's_lshl_b32 s{sT0}, s2, 8')
    k(f's_add_u32 s{sT0}, s{sT0}, {WS_CNT:#x}')
    k(f'v_lshlrev_b32 v2, 2, v{vLANE}')
    k(f'v_mov_b32 v3, 0')
    k(f'buffer_store_dword v3, v2, s[{SWS}:{SWS+3}], s{sT0} offen sc0 sc1')
    k.label(NZ)
    k.stamp()
    if k.st_en:
        k('s_waitcnt vmcnt(0)')
    k.stamp(); k.stamp(real=True)
    k.stamp_dump(0, sW, vtmp=3)
    k.label(END)
    k('s_endpgm')
    return k.text(168, 100 if DBG else 80)

K2_CONST = 131072
K2_LDS = K2_CONST + 8192 + 256 + 16384
def gen_k2():
    k = Kern('k2_kernel')
    END = 'k2_end'
    SWS = 4
    sW, sHEAD, sQT, sIT, sT0, sT1, sFB = 8, 9, 10, 11, 12, 13, 14
    sKS, sVS, sLD = 22, 23, 24
    vLANE, vKA, vVA, vO16, vINC, vVA0 = 1, 2, 3, 4, 5, 6
    QF = 8
    NEGM = 16
    O = 32
    S = [48, 64]
    P = 80
    KF = [88, 92]
    VF = [96, 104]
    T = 112
    FA = 128
    FB = 144
    sFT0, sFT1, sFW, sA0, sA1, sA2, sTB, sNBP = 28, 29, 30, 31, 32, 33, 34, 35
    sFT0i, sFT1i, sFWi = 36, 37, 38
    sST, sSW, sWOB = 29, 39, 58
    UN = 8
    k('s_cmp_ge_u32 s2, 256')
    k(f's_cbranch_scc1 {END}')
    k.stamp_init('2' in DBG)
    k.stamp(); k.stamp(real=True)
    k('s_load_dwordx2 s[20:21], s[0:1], 72')
    k('v_lshrrev_b32 v2, 6, v0')
    k(f'v_and_b32 v{vLANE}, 63, v0')
    k(f'v_readfirstlane_b32 s{sW}, v2')
    k(f's_and_b32 s{sHEAD}, s2, 31')
    k(f's_lshr_b32 s{sQT}, s2, 5')
    k(f's_lshl_b32 s{sQT}, s{sQT}, 3')
    k(f'v_lshlrev_b32 v{vO16}, 4, v{vLANE}')
    k(f's_add_u32 s{sQT}, s{sQT}, s{sW}')
    k(f's_lshl_b32 s{sT0}, s{sHEAD}, 16')
    k(f's_lshl_b32 s{sT1}, s{sQT}, 10')
    k(f's_add_u32 s25, s{sT1}, s{sT0}')
    k(f's_lshl_b32 s{sLD}, s{sW}, 10')
    k(f's_add_u32 s{sT0}, s{sT0}, s{sLD}')
    k(f's_add_u32 s{sKS}, s{sT0}, {32*65536:#x}')
    k(f's_add_u32 s{sVS}, s{sT0}, {64*65536:#x}')
    k('s_waitcnt lgkmcnt(0)')
    k.srd(SWS, 20, 21, WS_SIZE)
    k(f'buffer_load_dwordx4 {v(QF,4)}, v{vO16}, s[{SWS}:{SWS+3}], s25 offen')
    def dma_round(i):
        k(f's_add_u32 m0, s{sLD}, {i*8192}')
        k(f's_add_u32 s26, s{sKS}, {i*8192}')
        k.vmop(f'buffer_load_dwordx4 v{vO16}, s[{SWS}:{SWS+3}], s26 offen lds', 'dma')
        k(f's_add_u32 m0, s{sLD}, {65536 + i*8192}')
        k(f's_add_u32 s26, s{sVS}, {i*8192}')
        k.vmop(f'buffer_load_dwordx4 v{vO16}, s[{SWS}:{SWS+3}], s26 offen lds', 'dma')
    dma_round(0)
    dma_round(1)
    k('v_lshlrev_b32 v7, 4, v0')
    k(f'v_add_u32 v7, {K2_CONST}, v7')
    for i in range(4):
        k(f'v_mov_b32 v{T+i}, 0')
    k('v_and_b32 v12, 31, v0')
    k('v_cmp_eq_u32 vcc, 0, v12')
    k(f'v_mov_b32 v13, 0x3f803f80')
    k('s_nop 0')
    for i in range(4):
        k(f'v_cndmask_b32 v{T+i}, v{T+i}, v13, vcc')
    k(f'ds_write_b128 v7, {v(T,4)}')
    for i in range(4):
        k(f'v_mov_b32 v{T+4+i}, 0')
    k(f'v_mov_b32 v7, {K2_CONST + 8192}')
    k(f'v_lshl_add_u32 v7, v{vLANE}, 2, v7')
    k(f'ds_write_b32 v7, v{T+4}')
    k(f'v_lshrrev_b32 v7, 5, v{vLANE}')
    k(f'v_lshlrev_b32 v7, 8, v7')
    k(f'v_and_b32 v12, 15, v{vLANE}')
    k(f'v_lshl_add_u32 v7, v12, 4, v7')
    k(f'v_add_u32 v{vVA0}, 0x10000, v7')
    k(f'v_mov_b32 v{vINC}, {UN*1024}')
    k(f'v_and_b32 v12, 31, v{vLANE}')
    k(f'v_mov_b32 v13, {K2_CONST + 16}')
    k(f'v_mov_b32 v14, 0')
    k('v_cmp_lt_u32 vcc, 15, v12')
    k('s_nop 1')
    k(f'v_cndmask_b32 v{vVA0}, v{vVA0}, v13, vcc')
    k(f'v_cndmask_b32 v{vINC}, v{vINC}, v14, vcc')
    k(f'v_mov_b32 v13, {K2_CONST}')
    k('v_cmp_eq_u32 vcc, 16, v12')
    k('s_nop 1')
    k(f'v_cndmask_b32 v{vVA0}, v{vVA0}, v13, vcc')
    k(f'v_subrev_u32 v14, 20, v12')
    k(f'v_mov_b32 v13, {K2_CONST + 64}')
    k('v_cmp_gt_u32 vcc, 8, v14')
    k('s_nop 1')
    k(f'v_cndmask_b32 v{vVA0}, v{vVA0}, v13, vcc')
    k(f's_mov_b32 s{sFB}, 0')
    k(f's_and_b32 s{sTB}, s2, 7')
    k(f's_lshr_b32 s{sT0}, s2, 3')
    k(f's_and_b32 s{sT0}, s{sT0}, 3')
    k(f's_lshl_b32 s{sT0}, s{sT0}, 3')
    k(f's_add_u32 s{sTB}, s{sTB}, s{sT0}')
    k(f's_lshr_b32 s{sNBP}, s2, 5')
    k(f's_lshr_b32 s{sT0}, s{sW}, 2')
    k(f's_mul_i32 s{sT0}, s{sT0}, 56')
    k(f's_add_u32 s{sT0}, s{sT0}, 32')
    k(f's_lshl_b32 s{sFT0i}, s{sTB}, 1')
    k(f's_bfe_u32 s{sT1}, s{sW}, 0x10001')
    k(f's_add_u32 s{sFT0i}, s{sFT0i}, s{sT1}')
    k(f's_mul_i32 s{sFT0i}, s{sFT0i}, 144')
    k(f's_add_u32 s{sFT0i}, s{sFT0i}, s{sT0}')
    k(f's_lshl_b32 s{sFT0i}, s{sFT0i}, 10')
    k(f's_add_u32 s{sFT0i}, s{sFT0i}, {WS_TF:#x}')
    k(f's_lshl_b32 s{sFWi}, s{sT0}, 4')
    k(f's_lshl_b32 s{sT1}, s{sNBP}, 1')
    k(f's_add_u32 s{sFWi}, s{sFWi}, s{sT1}')
    k(f's_and_b32 s{sT1}, s{sW}, 1')
    k(f's_add_u32 s{sFWi}, s{sFWi}, s{sT1}')
    k(f's_lshl_b32 s{sFWi}, s{sFWi}, 10')
    k(f's_add_u32 s{sFWi}, s{sFWi}, {WS_WF:#x}')
    k(f's_lshr_b32 s{sWOB}, s{sW}, 2')
    k(f's_lshl_b32 s{sWOB}, s{sWOB}, 8')
    k(f's_lshl_b32 s{sT1}, s{sNBP}, 1')
    k(f's_add_u32 s{sWOB}, s{sWOB}, s{sT1}')
    k(f's_and_b32 s{sT1}, s{sW}, 1')
    k(f's_add_u32 s{sWOB}, s{sWOB}, s{sT1}')
    k(f's_lshl_b32 s{sWOB}, s{sWOB}, 10')
    k(f's_add_u32 s{sWOB}, s{sWOB}, {WS_WF:#x}')
    k('s_waitcnt vmcnt(2) lgkmcnt(0)' if EARLY else 's_waitcnt vmcnt(0) lgkmcnt(0)')
    k('s_barrier')
    k.stamp()
    k(f'ds_read_b128 {v(KF[0],4)}, v{vO16}')
    k('s_waitcnt lgkmcnt(0)')
    k(MFMA(v(S[0],16), v(KF[0],4), v(QF,4), '0'))
    k('s_nop 15')
    k(f'v_max3_f32 v{T}, v{S[0]}, v{S[0]+1}, v{S[0]+2}')
    for i in range(3, 15, 2):
        k(f'v_max3_f32 v{T}, v{T}, v{S[0]+i}, v{S[0]+i+1}')
    k(f'v_max_f32 v{T}, v{T}, v{S[0]+15}')
    RESTART = k.newlabel('restart')
    k.label(RESTART)
    k(f'v_mov_b32 v{T+1}, v{T}')
    k(f'v_mov_b32 v{vKA}, v{vO16}')
    k(f'v_mov_b32 v{vVA}, v{vVA0}')
    k(f'v_permlane32_swap_b32 v{T}, v{T+1}')
    k(f'ds_read_b128 {v(KF[0],4)}, v{vKA}')
    k(f'ds_read_b128 {v(VF[0],4)}, v{vVA}')
    k(f'ds_read_b128 {v(VF[0]+4,4)}, v{vVA} offset:512')
    k(f'ds_read_b128 {v(KF[1],4)}, v{vKA} offset:1024')
    k(f'v_max_f32 v{T}, v{T}, v{T+1}')
    for i in range(16):
        k(f'v_sub_f32 v{NEGM+i}, 0, v{T}')
    for i in range(16):
        k(f'v_mov_b32 v{O+i}, 0')
    for i in range(8):
        k(f'v_mov_b32 v{VF[1]+i}, 0')
    for i in range(8):
        k(f'v_mov_b32 v{P+i}, 0')
    for i in range(12, 16):
        k(f'v_mov_b32 v{S[1]+i}, 0')
    for i in range(16):
        k(f'v_mov_b32 v{FA+i}, 0')
    k(f's_mov_b32 s{sFT0}, s{sFT0i}')
    k(f's_mov_b32 s{sST}, 1024')
    k(f's_mov_b32 s{sSW}, 16384')
    k(f's_mul_i32 s{sFW}, s{sFB}, 16384')
    k(f's_sub_u32 s{sFW}, s{sFWi}, s{sFW}')
    k('s_waitcnt lgkmcnt(0)')
    k(MFMA(v(S[0],16), v(KF[0],4), v(QF,4), v(NEGM,16)))
    k('s_nop 15')
    def body(dma, prio=None):
        dq = []
        if dma:
            for i in range(2, 8):
                dq.append(i)
        nolds = 'nolds' in EXP
        noffn = 'noffn' in EXP
        k.vm = ['r1', 'r1'] if (dma and EARLY) else []
        def MF(*a):
            if 'nomfma' not in EXP: k(MFMA(*a))
        def floadW(j):
            if noffn: return
            if j == 0 and dma: return
            r = FB + 8 * ((j - 1) % 8)
            k.vmop(f'buffer_load_dwordx4 {v(r+4,4)}, v{vO16}, s[{SWS}:{SWS+3}], s{sFW} offen', 'f')
            k(f's_add_u32 s{sFW}, s{sFW}, s{sSW}')
            if j == 0:
                k(f's_add_u32 s{sA0}, s{sWOB}, 16384')
                k(f's_cmp_lt_u32 s{sIT}, 7')
                k(f's_cselect_b32 s{sFW}, s{sFW}, s{sA0}')
                k(f's_cselect_b32 s{sFT0}, s{sFT0}, s{sWOB}')
                k(f's_cselect_b32 s{sST}, s{sST}, 0x8000')
                k(f's_cselect_b32 s{sSW}, s{sSW}, 0x8000')
        def floadT(q):
            if noffn: return
            r = FB + 8 * q
            k.vmop(f'buffer_load_dwordx4 {v(r,4)}, v{vO16}, s[{SWS}:{SWS+3}], s{sFT0} offen', 'f')
            k(f's_add_u32 s{sFT0}, s{sFT0}, s{sST}')
        def fmma(q):
            if noffn or dma: return
            r = FB + 8 * q
            k('s_waitcnt vmcnt(14)')
            MF(v(FA,16), v(r+4,4), v(r,4), v(FA,16))
        for j in range(UN):
            b = j & 1
            cur, nxt = S[b], S[b ^ 1]
            e = lambda i: k(f'v_exp_f32 v{cur+i}, v{cur+i}')
            c = lambda i: k(f'v_cvt_pk_bf16_f32 v{P+i}, v{cur+2*i}, v{cur+2*i+1}')
            cp = lambda i: k(f'v_cvt_pk_bf16_f32 v{P+i}, v{nxt+2*i}, v{nxt+2*i+1}')
            if dma and EARLY and j == 5:
                k.vmwait('r1')
                k('s_barrier')
            e(0)
            if prio is not None and (j == 0 or prio[j] != prio[j-1]):
                k(f's_setprio {prio[j]}')
            if j == UN - 1:
                k(f'v_add_u32 v{vVA}, v{vINC}, v{vVA}')
            cp(6); e(1); e(2)
            floadW(j)
            cp(7); e(3); e(4)
            MF(v(O,16), v(VF[b^1]+4,4), v(P+4,4), v(O,16))
            voff = ((j + 1) % UN) * 1024
            if not nolds: k(f'ds_read_b128 {v(VF[b^1],4)}, v{vVA} offset:{voff}')
            c(0); e(5); e(6); c(1)
            if not nolds: k('s_waitcnt lgkmcnt(1)')
            e(7)
            MF(v(nxt,16), v(KF[b^1],4), v(QF,4), v(NEGM,16))
            if not nolds: k(f'ds_read_b128 {v(VF[b^1]+4,4)}, v{vVA} offset:{voff+512}')
            e(8); c(2); e(9); e(10); c(3); e(11)
            if dq and j < 6:
                dma_round(dq.pop(0))
            e(12)
            MF(v(O,16), v(VF[b],4), v(P,4), v(O,16))
            if not nolds: k(f'ds_read_b128 {v(KF[b],4)}, v{vKA} offset:{(j+2)*1024}')
            c(4); e(13)
            if j == UN - 1:
                k(f'v_add_u32 v{vKA}, {UN*1024}, v{vKA}')
            e(14); c(5)
            fmma(j)
            floadT(j)
            if j == UN - 1:
                k(f's_add_u32 s{sIT}, s{sIT}, 1')
                k(f's_cmp_lt_u32 s{sIT}, {64//UN}')
            e(15)
    FIRST = k.newlabel('first'); LOOP = k.newlabel('loop'); LOOP2 = k.newlabel('loop2'); AFTER = k.newlabel('after'); R2 = k.newlabel('r2')
    k(f's_mov_b32 s{sIT}, 0')
    k(f's_cmp_eq_u32 s{sFB}, 1')
    k(f's_cbranch_scc1 {LOOP}')
    nh = int(os.environ.get('NH', '6'))
    if nh >= 0:
        k(f's_cmp_ge_u32 s{sW}, 4')
        k(f's_cbranch_scc1 {R2}')
    body(True)
    k('s_waitcnt vmcnt(0)')
    k('s_barrier')
    k.label(LOOP)
    body(False)
    k(f's_cbranch_scc1 {LOOP}')
    if nh >= 0:
        k(f's_branch {AFTER}')
        k.label(R2)
        pr = [1] * nh + [0] * (UN - nh)
        body(True, pr)
        k('s_waitcnt vmcnt(0)')
        k('s_barrier')
        k.label(LOOP2)
        body(False, pr)
        k(f's_cbranch_scc1 {LOOP2}')
        k('s_setprio 0')
        k.label(AFTER)
    k('s_nop 1')
    k(f'v_cvt_pk_bf16_f32 v{P+6}, v{S[1]+12}, v{S[1]+13}')
    k(f'v_cvt_pk_bf16_f32 v{P+7}, v{S[1]+14}, v{S[1]+15}')
    k('s_nop 1')
    k(MFMA(v(O,16), v(VF[1]+4,4), v(P+4,4), v(O,16)))
    k('s_waitcnt lgkmcnt(0)')
    k('s_nop 15')
    k.stamp()
    k(f'v_mov_b32 v{T}, v{O+8}')
    k(f'v_mov_b32 v{T+1}, v{O+8}')
    k('s_nop 1')
    k(f'v_permlane32_swap_b32 v{T}, v{T+1}')
    k('s_nop 1')
    DONE = k.newlabel('done')
    k(f's_cmp_eq_u32 s{sFB}, 1')
    k(f's_cbranch_scc1 {DONE}')
    if EXP != ['']: k(f's_branch {DONE}')
    k(f'v_mov_b32 v{T+2}, {fhex(2.0**40)}')
    k(f'v_cmp_nlt_f32 vcc, v{T}, v{T+2}')
    k(f'v_mov_b32 v{T+1}, 0x207')
    for i in range(8):
        k(f'v_cmp_class_f32 s[26:27], v{O+i}, v{T+1}')
        k('s_or_b64 vcc, vcc, s[26:27]')
    k('s_cmp_eq_u64 vcc, 0')
    k(f's_cbranch_scc1 {DONE}')
    k(f's_mov_b32 s{sFB}, 1')
    k(f'v_mov_b32 v{vKA}, v{vO16}')
    k(f'v_mov_b32 v{T}, 0xff800000')
    k(f's_mov_b32 s{sIT}, 0')
    FL = k.newlabel('fbloop')
    k.label(FL)
    k(f'ds_read_b128 {v(KF[0],4)}, v{vKA}')
    k('s_waitcnt lgkmcnt(0)')
    k(MFMA(v(S[0],16), v(KF[0],4), v(QF,4), '0'))
    k('s_nop 15')
    for i in range(0, 16, 2):
        k(f'v_max3_f32 v{T}, v{T}, v{S[0]+i}, v{S[0]+i+1}')
    k(f'v_add_u32 v{vKA}, 0x400, v{vKA}')
    k(f's_add_u32 s{sIT}, s{sIT}, 1')
    k(f's_cmp_lt_u32 s{sIT}, 64')
    k(f's_cbranch_scc1 {FL}')
    k('s_waitcnt vmcnt(0)')
    for i in range(64):
        k(f'v_mov_b32 v{FB+i}, 0')
    k(f's_branch {RESTART}')
    k.label(DONE)
    k(f'v_rcp_f32 v{T}, v{T}')
    k('s_nop 0')
    for i in range(8):
        k(f'v_mul_f32 v{O+i}, v{O+i}, v{T}')
    for i in range(4):
        k(f'v_cvt_pk_bf16_f32 v{T+4+i}, v{O+2*i}, v{O+2*i+1}')
    k(f's_mul_i32 s{sT0}, s{sQT}, 144')
    k(f's_add_u32 s{sT0}, s{sT0}, s{sHEAD}')
    k(f's_lshl_b32 s{sT0}, s{sT0}, 10')
    k(f's_add_u32 s{sT0}, s{sT0}, {WS_TF:#x}')
    k(f'buffer_store_dwordx4 {v(T+4,4)}, v{vO16}, s[{SWS}:{SWS+3}], s{sT0} offen {OSF}')
    k.stamp(real=('r' in DBG))
    WOF, OF, XR = FB, 16, 80
    SX, SO, SD = 40, 44, 48
    sNB, sTT, sKH, sXO = 50, 51, 52, 53
    k('s_load_dwordx2 s[54:55], s[0:1], 0')
    k('s_load_dwordx2 s[56:57], s[0:1], 56')
    k(f's_load_dwordx2 s[{SD}:{SD+1}], s[0:1], 64')
    k(f's_and_b32 s{sNB}, s{sW}, 1')
    k(f's_bfe_u32 s{sTT}, s{sW}, 0x10001')
    k(f's_lshr_b32 s{sKH}, s{sW}, 2')
    k(f'buffer_load_dwordx4 {v(FB+60,4)}, v{vO16}, s[{SWS}:{SWS+3}], s{sFW} offen')
    vXO = T + 8
    k(f'v_and_b32 v{vXO}, 31, v{vLANE}')
    k(f'v_lshlrev_b32 v{vXO}, 10, v{vXO}')
    k(f'v_lshrrev_b32 v{vXO+1}, 5, v{vLANE}')
    k(f'v_lshl_add_u32 v{vXO}, v{vXO+1}, 3, v{vXO}')
    k(f's_lshl_b32 s{sXO}, s{sTB}, 1')
    k(f's_add_u32 s{sXO}, s{sXO}, s{sTT}')
    k(f's_lshl_b32 s{sXO}, s{sXO}, 15')
    k(f's_lshl_b32 s{sA1}, s{sNBP}, 7')
    k(f's_add_u32 s{sXO}, s{sXO}, s{sA1}')
    k(f's_lshl_b32 s{sA1}, s{sNB}, 6')
    k(f's_add_u32 s{sXO}, s{sXO}, s{sA1}')
    k(f's_lshl_b32 s{sA1}, s{sKH}, 5')
    k(f's_add_u32 s{sXO}, s{sXO}, s{sA1}')
    k('s_waitcnt lgkmcnt(0)')
    k.srd(SX, 54, 55, 2048 * 1024)
    k.srd(SO, 56, 57, 2048 * 1024)
    k(f'buffer_load_dwordx2 {v(XR,2)}, v{vXO}, s[{SX}:{SX+3}], s{sXO} offen')
    k(f'buffer_load_dwordx2 {v(XR+2,2)}, v{vXO}, s[{SX}:{SX+3}], s{sXO} offen offset:16')
    k('s_waitcnt vmcnt(3)')
    k('s_barrier')
    k.stamp()
    NOTW0 = k.newlabel('notw0'); POLL = k.newlabel('poll'); PD = k.newlabel('polldone')
    k(f's_cmp_lg_u32 s{sW}, 0')
    k(f's_cbranch_scc1 {NOTW0}')
    k(f's_lshr_b32 s{sA0}, s2, 5')
    k(f's_lshl_b32 s{sA0}, s{sA0}, 10')
    k(f's_add_u32 s{sA0}, s{sA0}, {WS_CNT:#x}')
    k(f'v_lshlrev_b32 v{T}, 8, v{vLANE}')
    k(f'v_mov_b32 v{T+1}, 1')
    k('s_mov_b64 exec, 15')
    k(f'buffer_atomic_add v{T+1}, v{T}, s[{SWS}:{SWS+3}], s{sA0} offen sc1')
    k('s_mov_b64 exec, 1')
    k(f's_lshl_b32 s{sA0}, s{sTB}, 8')
    k(f's_add_u32 s{sA0}, s{sA0}, {WS_CNT:#x}')
    k(f'v_mov_b32 v{T}, 0')
    k(f's_mov_b32 s{sA1}, 0')
    k.label(POLL)
    k(f'buffer_load_dword v{T+1}, v{T}, s[{SWS}:{SWS+3}], s{sA0} offen {POLLF}')
    k('s_waitcnt vmcnt(0)')
    k(f'v_readfirstlane_b32 s{sA2}, v{T+1}')
    k(f's_add_u32 s{sA1}, s{sA1}, 1')
    k(f's_cmp_ge_u32 s{sA2}, 32')
    k(f's_cbranch_scc1 {PD}')
    k(f's_cmp_lt_u32 s{sA1}, {1 << 16}')
    k(f's_sleep {SLP}')
    k(f's_cbranch_scc1 {POLL}')
    k.label(PD)
    k('s_mov_b64 exec, -1')
    k.label(NOTW0)
    k('s_barrier')
    k.stamp()
    if not ODMA:
        k(f's_lshl_b32 s{sA0}, s{sTB}, 1')
        k(f's_add_u32 s{sA0}, s{sA0}, s{sTT}')
        k(f's_mul_i32 s{sA0}, s{sA0}, 144')
        k(f's_lshl_b32 s{sA1}, s{sKH}, 4')
        k(f's_add_u32 s{sA0}, s{sA0}, s{sA1}')
        k(f's_lshl_b32 s{sA0}, s{sA0}, 10')
        k(f's_add_u32 s{sA0}, s{sA0}, {WS_TF:#x}')
        k.vm = []
        for j in range(16):
            if j and j % 4 == 0: k(f's_add_u32 s{sA0}, s{sA0}, 4096')
            k.vmop(f'buffer_load_dwordx4 {v(OF+4*j,4)}, v{vO16}, s[{SWS}:{SWS+3}], s{sA0} offen offset:{(j%4)*1024} {OLF}', j)
        for j in range(16):
            k.vmwait(j)
            k(MFMA(v(FA,16), v(WOF+4*j,4), v(OF+4*j,4), v(FA,16)))
    else:
        k(f's_lshl_b32 s{sA0}, s{sTB}, 1')
        k(f's_add_u32 s{sA0}, s{sA0}, s{sKH}')
        k(f's_mul_i32 s{sA0}, s{sA0}, 144')
        k(f's_and_b32 s{sA1}, s{sW}, 3')
        k(f's_lshl_b32 s{sA1}, s{sA1}, 3')
        k(f's_add_u32 s{sA0}, s{sA0}, s{sA1}')
        k(f's_lshl_b32 s{sA0}, s{sA0}, 10')
        k(f's_add_u32 s{sA0}, s{sA0}, {WS_TF:#x}')
        k(f's_lshl_b32 s{sA1}, s{sW}, 13')
        for j in range(8):
            k(f's_add_u32 m0, s{sA1}, {j*1024}')
            k(f's_add_u32 s{sA2}, s{sA0}, {j*1024}')
            k(f'buffer_load_dwordx4 v{vO16}, s[{SWS}:{SWS+3}], s{sA2} offen {OLF} lds')
        k(f's_lshl_b32 s{sA0}, s{sTT}, 15')
        k(f's_lshl_b32 s{sA1}, s{sKH}, 14')
        k(f's_add_u32 s{sA0}, s{sA0}, s{sA1}')
        k(f'v_add_u32 v{T}, s{sA0}, v{vO16}')
        k('s_waitcnt vmcnt(0)')
        k('s_barrier')
        for j in range(16):
            k(f'ds_read_b128 {v(OF+4*j,4)}, v{T} offset:{j*1024}')
            if j == 7: k('s_waitcnt lgkmcnt(4)')
        for j in range(16):
            k(f's_waitcnt lgkmcnt({min(15, 15 - j)})')
            k(MFMA(v(FA,16), v(WOF+4*j,4), v(OF+4*j,4), v(FA,16)))
    k('s_nop 15')
    k.stamp()
    RED = K2_CONST + 8192 + 256
    k(f's_and_b32 s{sA0}, s{sW}, 3')
    k(f's_lshl_b32 s{sA0}, s{sA0}, 12')
    k(f's_add_u32 s{sA0}, s{sA0}, {RED}')
    k(f'v_add_u32 v{T}, s{sA0}, v{vO16}')
    LO = k.newlabel('lo'); J = k.newlabel('j')
    R = FB
    k(f's_cmp_eq_u32 s{sKH}, 0')
    k(f's_cbranch_scc1 {LO}')
    k(f'ds_write_b128 v{T}, {v(FA,4)}')
    k(f'ds_write_b128 v{T}, {v(FA+4,4)} offset:1024')
    k('s_waitcnt lgkmcnt(0)')
    k('s_barrier')
    k(f'ds_read_b128 {v(R,4)}, v{T} offset:2048')
    k(f'ds_read_b128 {v(R+4,4)}, v{T} offset:3072')
    for i in range(8):
        k(f'v_mov_b32 v{R+8+i}, v{FA+8+i}')
    k(f's_branch {J}')
    k.label(LO)
    k(f'ds_write_b128 v{T}, {v(FA+8,4)} offset:2048')
    k(f'ds_write_b128 v{T}, {v(FA+12,4)} offset:3072')
    k('s_waitcnt lgkmcnt(0)')
    k('s_barrier')
    k(f'ds_read_b128 {v(R,4)}, v{T}')
    k(f'ds_read_b128 {v(R+4,4)}, v{T} offset:1024')
    for i in range(8):
        k(f'v_mov_b32 v{R+8+i}, v{FA+i}')
    k.label(J)
    for i in range(4):
        k(f'v_lshlrev_b32 v{R+16+2*i}, 16, v{XR+i}')
        k(f'v_and_b32 v{R+17+2*i}, 0xffff0000, v{XR+i}')
    for i in range(8):
        k(f'v_add_f32 v{R+8+i}, v{R+8+i}, v{R+16+i}')
    k('s_waitcnt lgkmcnt(0)')
    for i in range(8):
        k(f'v_add_f32 v{R+8+i}, v{R+8+i}, v{R+i}')
    for i in range(4):
        k(f'v_cvt_pk_bf16_f32 v{R+24+i}, v{R+8+2*i}, v{R+8+2*i+1}')
    k(f'buffer_store_dwordx2 {v(R+24,2)}, v{vXO}, s[{SO}:{SO+3}], s{sXO} offen')
    k(f'buffer_store_dwordx2 {v(R+26,2)}, v{vXO}, s[{SO}:{SO+3}], s{sXO} offen offset:16')
    k.stamp()
    if k.st_en:
        k('s_waitcnt vmcnt(0)')
    k.stamp(); k.stamp(real=True)
    k.stamp_dump(1, sW, vtmp=T+9+2)
    k.label(END)
    k('s_endpgm')
    return k.text(208, 100 if DBG else 64)

K3_LDS = 131072
def gen_k3():
    k = Kern('k3_kernel')
    END = 'k3_end'
    SWS, SX, SO = 4, 8, 12
    sW, sTB, sNBP, sT0, sT1, sTO, sWO, sNB, sTT, sKH, sXO, sL = 16, 17, 18, 19, 20, 21, 23, 30, 31, 32, 33, 34
    vLANE, vO16 = 1, 2
    ACC = 16
    BUF = 32
    PI = 96
    XR = 104
    k('s_cmp_ge_u32 s2, 256')
    k(f's_cbranch_scc1 {END}')
    k.stamp_init('3' in DBG)
    k.stamp(); k.stamp(real=True)
    k('s_load_dwordx2 s[28:29], s[0:1], 72')
    k('s_load_dwordx2 s[24:25], s[0:1], 0')
    k('s_load_dwordx2 s[26:27], s[0:1], 56')
    k('v_lshrrev_b32 v2, 6, v0')
    k(f'v_and_b32 v{vLANE}, 63, v0')
    k(f'v_readfirstlane_b32 s{sW}, v2')
    k(f's_and_b32 s{sTB}, s2, 7')
    k(f's_lshr_b32 s{sT0}, s2, 3')
    k(f's_and_b32 s{sT0}, s{sT0}, 3')
    k(f's_lshl_b32 s{sT0}, s{sT0}, 3')
    k(f's_add_u32 s{sTB}, s{sTB}, s{sT0}')
    k(f's_lshr_b32 s{sNBP}, s2, 5')
    k(f'v_lshlrev_b32 v{vO16}, 4, v{vLANE}')
    k(f's_and_b32 s{sNB}, s{sW}, 1')
    k(f's_bfe_u32 s{sTT}, s{sW}, 0x10001')
    k(f's_lshr_b32 s{sKH}, s{sW}, 2')
    k(f's_and_b32 s{sT0}, s{sW}, 3')
    k(f's_lshl_b32 s{sT0}, s{sT0}, 1')
    k(f's_lshl_b32 s{sT1}, s{sKH}, 4')
    k(f's_add_u32 s{sT0}, s{sT0}, s{sT1}')
    k(f's_mul_i32 s{sTO}, s{sTB}, {2*144}')
    k(f's_add_u32 s{sTO}, s{sTO}, s{sT0}')
    k(f's_lshl_b32 s{sTO}, s{sTO}, 10')
    k(f's_add_u32 s{sTO}, s{sTO}, {WS_TF:#x}')
    k(f's_lshl_b32 s{sWO}, s{sT0}, 4')
    k(f's_lshl_b32 s{sT1}, s{sNBP}, 1')
    k(f's_add_u32 s{sWO}, s{sWO}, s{sT1}')
    k(f's_lshl_b32 s{sWO}, s{sWO}, 10')
    k(f's_add_u32 s{sWO}, s{sWO}, {WS_WF:#x}')
    k(f's_lshl_b32 s{sL}, s{sT0}, 10')
    k('s_waitcnt lgkmcnt(0)')
    k.srd(SWS, 28, 29, WS_SIZE)
    for ph in range(2):
        for dk in range(2):
            ks = ph * 8 + dk
            for tt in range(2):
                k(f's_add_u32 m0, s{sL}, {tt*32768 + ks*1024}')
                k(f's_add_u32 s35, s{sTO}, {tt*144*1024 + ks*1024}')
                k.vmop(f'buffer_load_dwordx4 v{vO16}, s[{SWS}:{SWS+3}], s35 offen lds', ph)
            for nb in range(2):
                k(f's_add_u32 m0, s{sL}, {65536 + nb*32768 + ks*1024}')
                k(f's_add_u32 s35, s{sWO}, {ks*16384 + nb*1024}')
                k.vmop(f'buffer_load_dwordx4 v{vO16}, s[{SWS}:{SWS+3}], s35 offen lds', ph)
    k.srd(SX, 24, 25, 2048 * 1024)
    k.srd(SO, 26, 27, 2048 * 1024)
    k(f's_lshl_b32 s{sT0}, s{sTB}, 3')
    k(f's_add_u32 s{sT0}, s{sT0}, s{sNBP}')
    k(f's_lshl_b32 s{sT0}, s{sT0}, 2')
    k(f's_and_b32 s{sT1}, s{sW}, 3')
    k(f's_add_u32 s{sT0}, s{sT0}, s{sT1}')
    k(f's_lshl_b32 s{sT0}, s{sT0}, 12')
    k(f's_lshl_b32 s{sT1}, s{sKH}, 11')
    k(f's_add_u32 s{sT0}, s{sT0}, s{sT1}')
    k(f's_add_u32 s{sT0}, s{sT0}, {WS_PART:#x}')
    k.vmop(f'buffer_load_dwordx4 {v(PI,4)}, v{vO16}, s[{SWS}:{SWS+3}], s{sT0} offen', 'p')
    k.vmop(f'buffer_load_dwordx4 {v(PI+4,4)}, v{vO16}, s[{SWS}:{SWS+3}], s{sT0} offen offset:1024', 'p')
    k(f'v_and_b32 v3, 31, v{vLANE}')
    k(f'v_lshlrev_b32 v3, 10, v3')
    k(f'v_lshrrev_b32 v4, 5, v{vLANE}')
    k(f'v_lshl_add_u32 v3, v4, 3, v3')
    k(f's_lshl_b32 s{sXO}, s{sTB}, 1')
    k(f's_add_u32 s{sXO}, s{sXO}, s{sTT}')
    k(f's_lshl_b32 s{sXO}, s{sXO}, 15')
    k(f's_lshl_b32 s{sT0}, s{sNBP}, 7')
    k(f's_add_u32 s{sXO}, s{sXO}, s{sT0}')
    k(f's_lshl_b32 s{sT0}, s{sNB}, 6')
    k(f's_add_u32 s{sXO}, s{sXO}, s{sT0}')
    k(f's_lshl_b32 s{sT0}, s{sKH}, 5')
    k(f's_add_u32 s{sXO}, s{sXO}, s{sT0}')
    k.vmop(f'buffer_load_dwordx2 {v(XR,2)}, v3, s[{SX}:{SX+3}], s{sXO} offen', 'x')
    k.vmop(f'buffer_load_dwordx2 {v(XR+2,2)}, v3, s[{SX}:{SX+3}], s{sXO} offen offset:16', 'x')
    k(f's_lshl_b32 s{sT0}, s{sTT}, 15')
    k(f's_lshl_b32 s{sT1}, s{sKH}, 14')
    k(f's_add_u32 s{sT0}, s{sT0}, s{sT1}')
    k(f'v_add_u32 v5, s{sT0}, v{vO16}')
    k(f's_lshl_b32 s{sT0}, s{sNB}, 15')
    k(f's_add_u32 s{sT0}, s{sT0}, s{sT1}')
    k(f's_add_u32 s{sT0}, s{sT0}, 65536')
    k(f'v_add_u32 v6, s{sT0}, v{vO16}')
    for i in range(16):
        k(f'v_mov_b32 v{ACC+i}, 0')
    k.stamp()
    for ph in range(2):
        k.vmwait(ph)
        k('s_barrier')
        if ph == 0: k.stamp()
        for j in range(8):
            ks = ph * 8 + j
            k(f'ds_read_b128 {v(BUF+8*j,4)}, v5 offset:{ks*1024}')
            k(f'ds_read_b128 {v(BUF+8*j+4,4)}, v6 offset:{ks*1024}')
            if j == 6: k('s_waitcnt lgkmcnt(12)') if False else None
        for j in range(8):
            k(f's_waitcnt lgkmcnt({min(15, 14 - 2*j)})')
            k(MFMA(v(ACC,16), v(BUF+8*j+4,4), v(BUF+8*j,4), v(ACC,16)))
    k('s_nop 15')
    k.stamp()
    k('s_barrier')
    k(f's_and_b32 s{sT0}, s{sW}, 3')
    k(f's_lshl_b32 s{sT0}, s{sT0}, 12')
    k(f'v_add_u32 v5, s{sT0}, v{vO16}')
    LO = k.newlabel('lo'); J = k.newlabel('j')
    k(f's_cmp_eq_u32 s{sKH}, 0')
    k(f's_cbranch_scc1 {LO}')
    k(f'ds_write_b128 v5, {v(ACC,4)}')
    k(f'ds_write_b128 v5, {v(ACC+4,4)} offset:1024')
    k('s_waitcnt lgkmcnt(0)')
    k('s_barrier')
    k(f'ds_read_b128 {v(BUF,4)}, v5 offset:2048')
    k(f'ds_read_b128 {v(BUF+4,4)}, v5 offset:3072')
    for i in range(8):
        k(f'v_mov_b32 v{BUF+8+i}, v{ACC+8+i}')
    k(f's_branch {J}')
    k.label(LO)
    k(f'ds_write_b128 v5, {v(ACC+8,4)} offset:2048')
    k(f'ds_write_b128 v5, {v(ACC+12,4)} offset:3072')
    k('s_waitcnt lgkmcnt(0)')
    k('s_barrier')
    k(f'ds_read_b128 {v(BUF,4)}, v5')
    k(f'ds_read_b128 {v(BUF+4,4)}, v5 offset:1024')
    for i in range(8):
        k(f'v_mov_b32 v{BUF+8+i}, v{ACC+i}')
    k.label(J)
    k('s_waitcnt vmcnt(0)')
    for i in range(4):
        k(f'v_lshlrev_b32 v{BUF+16+2*i}, 16, v{XR+i}')
        k(f'v_and_b32 v{BUF+17+2*i}, 0xffff0000, v{XR+i}')
    for i in range(8):
        k(f'v_add_f32 v{PI+i}, v{PI+i}, v{BUF+16+i}')
        k(f'v_add_f32 v{PI+i}, v{PI+i}, v{BUF+8+i}')
    k('s_waitcnt lgkmcnt(0)')
    for i in range(8):
        k(f'v_add_f32 v{PI+i}, v{PI+i}, v{BUF+i}')
    for i in range(4):
        k(f'v_cvt_pk_bf16_f32 v{BUF+24+i}, v{PI+2*i}, v{PI+2*i+1}')
    k(f'buffer_store_dwordx2 {v(BUF+24,2)}, v3, s[{SO}:{SO+3}], s{sXO} offen')
    k(f'buffer_store_dwordx2 {v(BUF+26,2)}, v3, s[{SO}:{SO+3}], s{sXO} offen offset:16')
    k.stamp()
    if k.st_en:
        k('s_waitcnt vmcnt(0)')
    k.stamp(); k.stamp(real=True)
    k.stamp_dump(2, sW, vtmp=3)
    k.label(END)
    k('s_endpgm')
    return k.text(112, 100 if DBG else 40)

HEADER = open('parallel_sum__mha_block__dense_activation_mish__prompt.s.ref').read().split('; Override launch')[0]

def main(out):
    t1, d1 = gen_k1()
    t2, d2 = gen_k2()
    s = HEADER
    s += f'; @launch kernel=k1_kernel grid=(256,1,1) block=(768,1,1) lds={K1_LDS}\n'
    s += f'; @launch kernel=k2_kernel grid=(256,1,1) block=(512,1,1) lds={K2_LDS}\n'
    s += '.amdgcn_target "amdgcn-amd-amdhsa--gfx950"\n'
    s += t1 + t2 + d1 + d2
    open(out, 'w').write(s)

if __name__ == '__main__':
    main(sys.argv[1] if len(sys.argv) > 1 else 'parallel_sum__mha_block__dense_activation_mish__prompt.s')
```

```python
import math, sys, os
DBG = os.environ.get('DBG', '')
EXP = os.environ.get('EXP', '').split(',')
ST1 = os.environ.get('ST1', 'sc1')
ST2 = os.environ.get('ST2', '')
POLLF = os.environ.get('POLLF', 'sc1')
OLF = os.environ.get('OLF', 'sc1')
OSF = os.environ.get('OSF', 'sc0 sc1')
ODMA = os.environ.get('ODMA', '')
EARLY = int(os.environ.get('EARLY', '1'))
WPOS = int(os.environ.get('WPOS', '2'))
SLP = int(os.environ.get('SLP', '4'))
from asmlib import *

LOG2E = 1.4426950408889634
LN2 = 0.6931471805599453
QSCALE = 0.25 * LOG2E

WS_QKV = 0
WS_TF = 0x600000
WS_WF = 0xF00000
WS_PART = 0x1200000
WS_CNT = 0x1180000
WS_SIZE = 0x10000000

def MFMA(d, A, B, C):
    return f'v_mfma_f32_32x32x16_bf16 {d}, {A}, {B}, {C}'

XSL, NXS = 16384, 3
WSL, NWS = 16384, 6
WRB = XSL * NXS
MISC = WRB + WSL * NWS
L_SW = MISC
L_RSUM = MISC + 1024
L_BIAS = MISC + 2048
L_PRIV = MISC + 2560
K1_LDS = MISC + 2560 + 1024

def gen_k1():
    k = Kern('k1_kernel')
    def BAR():
        if 'nobar' not in EXP: k('s_barrier')
    END = 'k1_end'
    SX, SW_, SWS, SSZ, SB, SWQ = 4, 8, 12, 16, 20, 64
    sW, sRB, sCH, sRBK, sCG = 24, 25, 26, 27, 28
    sC, sXD, sWD, sXO, sFO, sQO, sT0, sT1, sT2 = 29, 30, 31, 32, 33, 34, 53, 54, 55
    sXR, sWR = 56, 63
    sFB, sQB, sTA = 57, 58, 59
    sZD = [60, 61, 62]
    sTB, sSA, sSB, sIDX, sNF, sD1, sD2 = 42, 43, 52, 68, 69, 70, 71
    vTID, vLANE, vH, vN = 0, 1, 8, 9
    k(f's_cmp_ge_u32 s2, 256')
    k(f's_cbranch_scc1 {END}')
    k.stamp_init('1' in DBG, sbase=74)
    k.stamp(); k.stamp(real=True)
    k('s_load_dwordx4 s[36:39], s[0:1], 0')
    k('s_load_dwordx4 s[44:47], s[0:1], 32')
    k('s_load_dwordx2 s[40:41], s[0:1], 16')
    k('s_load_dwordx2 s[48:49], s[0:1], 48')
    k('s_load_dwordx2 s[50:51], s[0:1], 72')
    k(f'v_lshrrev_b32 v2, 6, v0')
    k(f'v_and_b32 v{vLANE}, 63, v0')
    k(f'v_readfirstlane_b32 s{sW}, v2')
    k(f'v_lshrrev_b32 v{vH}, 5, v{vLANE}')
    k(f'v_and_b32 v{vN}, 31, v{vLANE}')
    k(f's_and_b32 s{sT0}, s2, 7')
    k(f's_lshr_b32 s{sT1}, s2, 3')
    k(f's_and_b32 s{sRBK}, s{sT0}, 1')
    k(f's_lshl_b32 s{sRBK}, s{sRBK}, 3')
    k(f's_and_b32 s{sT2}, s{sT1}, 7')
    k(f's_add_u32 s{sRBK}, s{sRBK}, s{sT2}')
    k(f's_lshr_b32 s{sCG}, s{sT0}, 1')
    k(f's_mul_i32 s{sFB}, s{sCG}, 14')
    k(f's_lshl_b32 s{sCG}, s{sCG}, 2')
    k(f's_lshr_b32 s{sT2}, s{sT1}, 3')
    k(f's_add_u32 s{sCG}, s{sCG}, s{sT2}')
    k(f's_lshl_b32 s{sT0}, s{sT2}, 2')
    k(f's_add_u32 s{sFB}, s{sFB}, s{sT0}')
    k(f's_cmp_eq_u32 s{sT2}, 3')
    k(f's_cselect_b32 s{sNF}, 2, 4')
    k(f's_and_b32 s{sRB}, s{sW}, 3')
    k(f's_lshr_b32 s{sCH}, s{sW}, 2')
    k(f's_mul_i32 s{sQB}, s{sCG}, 3')
    PROD = k.newlabel('prod'); ROLE1 = k.newlabel('role1')
    k(f's_cmp_eq_u32 s{sCH}, 2')
    k(f's_cbranch_scc1 {PROD}')
    k(f'v_bfe_u32 v2, v{vN}, 1, 3')
    k(f'v_xor_b32 v2, v2, v{vH}')
    k(f'v_lshlrev_b32 v2, 4, v2')
    k(f'v_lshl_add_u32 v4, v{vN}, 7, v2')
    k(f'v_bfe_u32 v6, v{vLANE}, 2, 2')
    k(f'v_lshl_add_u32 v5, v{vH}, 3, v6')
    k(f'v_lshlrev_b32 v5, 8, v5')
    k(f'v_bfe_u32 v7, v{vLANE}, 4, 1')
    k(f'v_lshl_add_u32 v5, v7, 5, v5')
    k(f'v_and_b32 v7, 3, v{vLANE}')
    k(f'v_lshl_add_u32 v5, v7, 3, v5')
    k(f'v_add_u32 v5, {WRB}, v5')
    SEL, CS, ACC = 24, 28, 32
    vX, vW = 10, 18
    XA, XB = [96, 100], [104, 108]
    WSET = [112, 124]
    CW = 136
    k(f'v_mov_b32 v2, 0')
    k(f'v_mov_b32 v3, 0x3f803f80')
    k(f'v_cmp_eq_u32 vcc, 0, v{vN}')
    k(f'v_cmp_eq_u32 s[72:73], 17, v{vN}')
    k('s_nop 1')
    k('s_or_b64 vcc, vcc, s[72:73]')
    k('s_nop 1')
    k(f'v_cndmask_b32 v{SEL}, v2, v3, vcc')
    for i in range(1, 4):
        k(f'v_mov_b32 v{SEL+i}, v{SEL}')
    k(f's_mov_b32 s{sXR}, 0')
    k(f's_mov_b32 s{sWR}, 0')
    k(f's_lshl_b32 s{sIDX}, s{sRB}, 2')
    k('s_waitcnt lgkmcnt(0)')
    k.srd(SWS, 50, 51, WS_SIZE)
    k(f's_cmp_eq_u32 s{sCH}, 1')
    k(f's_cbranch_scc1 {ROLE1}')

    def f_epilogue(stile, accs):
        k(f's_lshl_b32 s{sT0}, s{stile}, 7')
        k(f'v_lshlrev_b32 v4, 2, v{vN}')
        k(f'v_add_u32 v4, s{sT0}, v4')
        k(f'v_add_u32 v4, {L_RSUM}, v4')
        k(f'ds_read_b32 v10, v4')
        k(f'ds_read_b32 v11, v4 offset:512')
        RL, RML, TWO, C2, LN2P = 14, 16, 22, 24, 26
        k(f'v_mov_b32 v{TWO}, 2.0'); k(f'v_mov_b32 v{TWO+1}, 2.0')
        k(f'v_mov_b32 v{C2}, {fhex(-2*LN2)}'); k(f'v_mov_b32 v{C2+1}, {fhex(-2*LN2)}')
        k(f'v_mov_b32 v{LN2P}, {fhex(LN2)}'); k(f'v_mov_b32 v{LN2P+1}, {fhex(LN2)}')
        VEC = [[96, 112], [128, 144]]
        TU, E, TT = 112, 96, 160
        for wj, ss in enumerate((sSA, sSB)):
            k(f's_lshl_b32 s{sT0}, s{ss}, 7')
            k(f'v_add_u32 v7, s{sT0}, v5')
            for g_ in range(4):
                k(f'ds_read_b128 {v(VEC[wj][0]+4*g_,4)}, v7 offset:{g_*32}')
                k(f'ds_read_b128 {v(VEC[wj][1]+4*g_,4)}, v7 offset:{L_BIAS - L_SW + g_*32}')
            if wj == 0: k('s_waitcnt lgkmcnt(8)')
            if wj == 0:
                for d in range(2):
                    k(f'v_mul_f32 v{RL+d}, {fhex(LOG2E)}, v10')
                    k(f'v_mul_f32 v{RML+d}, {fhex(LOG2E)}, v11')
        P2 = lambda r: v(r, 2)
        SKS = k.newlabel('noslot')
        k(f's_cmp_ge_u32 s{sSA}, s{sNF}')
        k(f's_cbranch_scc1 {SKS}')
        for wj, ss in enumerate((sSA, sSB)):
            A = accs[wj]
            SWV, CLV = VEC[wj]
            k(f's_add_u32 s{sT0}, s{sC}, s{stile}')
            k(f's_mul_i32 s{sT0}, s{sT0}, 144')
            k(f's_add_u32 s{sT1}, s{sFB}, s{ss}')
            k(f's_lshl_b32 s{sT1}, s{sT1}, 1')
            k(f's_add_u32 s{sT0}, s{sT0}, s{sT1}')
            k(f's_add_u32 s{sT0}, s{sT0}, 32')
            k(f's_lshl_b32 s{sT0}, s{sT0}, 10')
            k(f's_add_u32 s{sD1}, s{sT0}, {WS_TF:#x}')
            k(f's_waitcnt lgkmcnt({8 if wj == 0 else 0})')
            for i in range(0, 16, 2):
                k(f'v_pk_fma_f32 {P2(CLV+i)}, {P2(RML)}, {P2(SWV+i)}, {P2(CLV+i)} neg_lo:[1,0,0] neg_hi:[1,0,0]')
            for i in range(0, 16, 2):
                k(f'v_pk_fma_f32 {P2(A+i)}, {P2(A+i)}, {P2(RL)}, {P2(CLV+i)}')
            for i in range(16):
                k(f'v_exp_f32 v{SWV+i}, v{A+i}')
            for i in range(0, 16, 2):
                k(f'v_pk_add_f32 {P2(CLV+i)}, {P2(SWV+i)}, {P2(TWO)}')
            for i in range(0, 16, 2):
                k(f'v_pk_fma_f32 {P2(SWV+i)}, {P2(SWV+i)}, {P2(CLV+i)}, {P2(TWO)}')
            for i in range(16):
                k(f'v_rcp_f32 v{SWV+i}, v{SWV+i}')
            for i in range(0, 16, 2):
                k(f'v_pk_fma_f32 {P2(SWV+i)}, {P2(SWV+i)}, {P2(C2)}, {P2(LN2P)}')
            for i in range(0, 16, 2):
                k(f'v_pk_mul_f32 {P2(A+i)}, {P2(A+i)}, {P2(SWV+i)}')
            for i in range(8):
                k(f'v_cvt_pk_bf16_f32 v{TT+i}, v{A+2*i}, v{A+2*i+1}')
            k(f'buffer_store_dwordx4 {v(TT,4)}, v6, s[{SWS}:{SWS+3}], s{sD1} offen {ST1}')
            k(f'buffer_store_dwordx4 {v(TT+4,4)}, v6, s[{SWS}:{SWS+3}], s{sD1} offen offset:1024 {ST1}')
            k('s_nop 1')
        k.label(SKS)

    def role(rid, types):
        WB_ = 0 if rid == 0 else 8192
        rot = (rid == 1 and len(set(types)) == 1)
        if rid == 0:
            k.srd(SB, 46, 47, 1792 * 2)
            k(f's_lshl_b32 s{sT0}, s{sFB}, 6')
            k(f'v_lshlrev_b32 v2, 1, v{vTID}')
            k(f'buffer_load_ushort v21, v2, s[{SB}:{SB+3}], s{sT0} offen')
            k(f's_lshr_b32 s{sT0}, s{sW}, 1')
            k(f's_and_b32 s{sT1}, s{sW}, 1')
            k(f's_lshl_b32 s{sTA}, s{sT0}, 1')
            k(f's_or_b32 s{sTA}, s{sTA}, s{sT1}')
            k(f's_xor_b32 s{sTB}, s{sTA}, 1')
            k(f's_lshl_b32 s{sSA}, s{sT1}, 1')
            k(f's_or_b32 s{sSA}, s{sSA}, s{sT0}')
            k(f's_xor_b32 s{sSB}, s{sSA}, 1')
            nx, nwf = 2, 2
            for i, st_ in enumerate((sTA, sTB)):
                k(f's_lshl_b32 s{sT0}, s{st_}, 12')
                k(f'v_add_u32 v{vX+4*i}, s{sT0}, v4')
                for kk in range(1, 4):
                    k(f'v_xor_b32 v{vX+4*i+kk}, {kk*32}, v{vX+4*i}')
            for j, ss in enumerate((sSA, sSB)):
                k(f'v_xor_b32 v7, s{ss}, v6')
                k(f'v_lshl_add_u32 v{vW+j}, v7, 6, v5')
            tiles = [(0, 0), (0, 1), (1, 0), (1, 1)]
        else:
            k(f's_mov_b32 s{sTA}, s{sRB}')
            nx, nwf = 1, 3
            k(f's_lshl_b32 s{sT0}, s{sRB}, 12')
            k(f'v_add_u32 v{vX}, s{sT0}, v4')
            for kk in range(1, 4):
                k(f'v_xor_b32 v{vX+kk}, {kk*32}, v{vX}')
            SL = [sSA, sSB, sTB]
            for j in range(3):
                if rot:
                    k(f's_add_u32 s{SL[j]}, s{sRB}, {j}')
                    k(f's_cmp_ge_u32 s{SL[j]}, 3')
                    k(f's_cselect_b32 s{sT0}, 3, 0')
                    k(f's_sub_u32 s{SL[j]}, s{SL[j]}, s{sT0}')
                    k(f's_cmp_ge_u32 s{SL[j]}, 3')
                    k(f's_cselect_b32 s{sT0}, 3, 0')
                    k(f's_sub_u32 s{SL[j]}, s{SL[j]}, s{sT0}')
                else:
                    k(f's_mov_b32 s{SL[j]}, {j}')
                k(f'v_xor_b32 v7, s{SL[j]}, v6')
                k(f'v_lshl_add_u32 v{vW+j}, v7, 6, v5')
            tiles = [(0, 0), (0, 1), (0, 2)]
        nt = len(tiles)
        XR = [XA, XB]
        for i in range(16 * nt):
            k(f'v_mov_b32 v{ACC+i}, 0')
        for i in range(4):
            k(f'v_mov_b32 v{CS+i}, 0')
        def rd_list(kk, ks, st):
            off = WB_ + ks * 4096
            def xr(i): return [f'ds_read_b128 {v(XR[i][st],4)}, v{vX+4*i+kk}']
            def wr(j): return [f'ds_read_b64_tr_b16 {v(WSET[st]+4*j,2)}, v{vW+j} offset:{off}',
                               f'ds_read_b64_tr_b16 {v(WSET[st]+4*j+2,2)}, v{vW+j} offset:{off+1024}']
            if rid == 0: return xr(0) + wr(0) + wr(1) + xr(1)
            return xr(0) + wr(0) + wr(1) + wr(2)
        need = [3, 5, 6, 6] if rid == 0 else [3, 5, 7]
        NOLD = 6 if rid == 0 else 7
        def advW():
            L = [f's_add_u32 s{sWR}, s{sWR}, {WSL}', f's_cmp_eq_u32 s{sWR}, {NWS*WSL}',
                 f's_mov_b32 s{sT2}, {WSL}', f's_cselect_b32 s{sT2}, {(WSL - NWS*WSL) & 0xffffffff:#x}, s{sT2}', f's_cselect_b32 s{sWR}, 0, s{sWR}']
            for j in range(nwf):
                L.append(f'v_add_u32 v{vW+j}, s{sT2}, v{vW+j}')
            return L
        def advX():
            L = [f's_add_u32 s{sXR}, s{sXR}, {XSL}', f's_cmp_eq_u32 s{sXR}, {NXS*XSL}',
                 f's_mov_b32 s{sT1}, {XSL}', f's_cselect_b32 s{sT1}, {(XSL - NXS*XSL) & 0xffffffff:#x}, s{sT1}', f's_cselect_b32 s{sXR}, 0, s{sXR}']
            for i in range(4 * nx):
                L.append(f'v_add_u32 v{vX+i}, s{sT1}, v{vX+i}')
            return L
        def kstep(st, nxt_reads, pre=(), post=()):
            if 'nocomp' in EXP:
                for s_ in post: k(s_)
                return
            rl = list(nxt_reads)
            if 'nolds1' in EXP: rl = []
            pre = list(pre)
            per = (len(rl) + nt - 1) // nt
            pper = (len(pre) + nt - 2) // (nt - 1) if pre else 0
            new = 0
            for t, (xi, wj) in enumerate(tiles):
                X = v(XR[xi][st], 4); W = v(WSET[st] + 4 * wj, 4); A = v(ACC + 16 * t, 16)
                k(f's_waitcnt lgkmcnt({NOLD - need[t] + new})')
                ty = 'T' if rid == 0 else types[t]
                if ty == 'N': k(MFMA(A, X, W, A))
                else: k(MFMA(A, W, X, A))
                if t == 0:
                    for s_ in pre: k(s_)
                for _ in range(per):
                    if rl:
                        k(rl.pop(0)); new += 1
                if 'nodot' not in EXP and 'noh' not in EXP:
                    if t == 1 and (rid == 0 or rot):
                        k(f'v_mfma_f32_16x16x32_bf16 {v(CS,4)}, {v(SEL,4)}, {v(WSET[st],4)}, {v(CS,4)}')
                    if rid == 1 and not rot and t == 2:
                        k(f's_set_gpr_idx_on s{sIDX}, gpr_idx(SRC0)')
                        k('s_nop 0')
                        for r in range(4):
                            k(f'v_mov_b32 v{CW+r}, v{WSET[st]+r}')
                        k('s_set_gpr_idx_off')
                        k('s_nop 1')
                        k(f'v_mfma_f32_16x16x32_bf16 {v(CS,4)}, {v(SEL,4)}, {v(CW,4)}, {v(CS,4)}')
            for s_ in post: k(s_)
            assert not rl
        def iteration(par, post=()):
            if 'bartop' in EXP: BAR()
            kstep(0, rd_list(2 * par + 1, 1, 1))
            pre = ([] if 'bartop' in EXP else ['s_barrier']) + advW() + (advX() if par == 1 else [])
            kstep(1, rd_list((2 * par + 2) % 4, 0, 0), pre=pre, post=post)
        k.stamp()
        BAR()
        k.stamp()
        for t in rd_list(0, 0, 0): k(t)
        LOOP = k.newlabel('loop')
        k(f's_mov_b32 s{sC}, 0')
        k.label(LOOP)
        iteration(0)
        iteration(1, post=[f's_add_u32 s{sC}, s{sC}, 1', f's_cmp_lt_u32 s{sC}, 8'])
        k(f's_cbranch_scc1 {LOOP}')
        k('s_nop 7')
        k.stamp()
        NS = k.newlabel('nosw')
        if rid == 0:
            k(f's_lshl_b32 s{sT0}, s{sSA}, 7')
            k(f's_add_u32 s{sT0}, s{sT0}, {L_SW}')
        elif rot:
            k(f's_lshl_b32 s{sT0}, s{sSA}, 7')
            k(f's_add_u32 s{sT0}, s{sT0}, {L_SW + 512}')
        else:
            k(f's_cmp_eq_u32 s{sRB}, 3')
            k(f's_cbranch_scc1 {NS}')
            k(f's_lshl_b32 s{sT0}, s{sRB}, 7')
            k(f's_add_u32 s{sT0}, s{sT0}, {L_SW + 512}')
        k(f'v_lshlrev_b32 v3, 2, v{vLANE}')
        k(f'v_add_u32 v3, s{sT0}, v3')
        k('s_mov_b64 exec, 0xffff')
        k(f'ds_write_b32 v3, v{CS}')
        k(f'ds_write_b32 v3, v{CS+1} offset:64')
        k('s_mov_b64 exec, -1')
        k.label(NS)
        if rid == 0:
            k(f's_lshr_b32 s{sT0}, s{sW}, 1')
            k(f's_lshl_b32 s{sT0}, s{sT0}, 15')
            k(f's_and_b32 s{sT1}, s{sW}, 1')
            k(f's_lshl_b32 s{sT1}, s{sT1}, 13')
            k(f's_add_u32 s{sT0}, s{sT0}, s{sT1}')
            k(f'v_lshlrev_b32 v3, 4, v{vLANE}')
            k(f'v_add_u32 v3, s{sT0}, v3')
            for q in range(8):
                k(f'ds_write_b128 v3, {v(ACC+32+4*q,4)} offset:{q*1024}')
            NB = k.newlabel('nobias')
            k(f's_cmp_ge_u32 s{sW}, 2')
            k(f's_cbranch_scc1 {NB}')
            k('s_waitcnt vmcnt(0)')
            k(f'v_lshlrev_b32 v3, 16, v21')
            k(f'v_mul_f32 v3, {fhex(LOG2E)}, v3')
            k(f'v_lshlrev_b32 v4, 2, v{vTID}')
            k(f'v_add_u32 v4, {L_BIAS}, v4')
            k(f'ds_write_b32 v4, v3')
            k.label(NB)
        k('s_waitcnt lgkmcnt(0)')
        BAR()
        k.stamp()
        def tokstats_issue(stile, r0):
            k(f's_lshl_b32 s{sT0}, s{stile}, 7')
            k(f'v_lshlrev_b32 v4, 2, v{vN}')
            k(f'v_add_u32 v4, s{sT0}, v4')
            k(f'v_add_u32 v4, {L_RSUM}, v4')
            k(f'ds_read_b32 v{r0}, v4')
            k(f'ds_read_b32 v{r0+1}, v4 offset:512')
        k(f'v_lshlrev_b32 v5, 4, v{vH}')
        k(f'v_add_u32 v5, {L_SW}, v5')
        k(f'v_lshlrev_b32 v6, 4, v{vLANE}')
        k(f's_lshl_b32 s{sC}, s{sRBK}, 2')
        if rid == 0:
            f_epilogue(sTA, [ACC, ACC + 16])
        else:
            k('s_setprio 2')
            vR, vRM = 10, 11
            tokstats_issue(sTA, 10)
            if 'N' in types:
                k(f's_lshl_b32 s{sT0}, s{sTA}, 7')
                k(f'v_lshlrev_b32 v7, 4, v{vH}')
                k(f'v_add_u32 v7, s{sT0}, v7')
                k(f'v_add_u32 v7, {L_RSUM}, v7')
                for g_ in range(4):
                    k(f'ds_read_b128 {v(120+4*g_,4)}, v7 offset:{g_*32}')
                    k(f'ds_read_b128 {v(136+4*g_,4)}, v7 offset:{g_*32 + 512}')
                k(f'v_lshrrev_b32 v12, 4, v{vN}')
                k(f'v_lshlrev_b32 v12, 16, v12')
                k(f'v_lshl_add_u32 v12, v{vH}, 8, v12')
                k(f'v_and_b32 v13, 15, v{vN}')
                k(f'v_lshl_add_u32 v12, v13, 4, v12')
            k(f's_add_u32 s{sD1}, s{sC}, s{sTA}')
            SL = [sSA, sSB, sTB]
            CV = [80, 96, 152]
            for j in range(3):
                k(f's_lshl_b32 s{sD2}, s{SL[j]}, 7')
                if types[j] == 'T':
                    k(f'v_add_u32 v7, s{sD2}, v5')
                    for g_ in range(4):
                        k(f'ds_read_b128 {v(CV[j]+4*g_,4)}, v7 offset:{512 + g_*32}')
                else:
                    k(f'v_lshlrev_b32 v13, 2, v{vN}')
                    k(f'v_add_u32 v13, s{sD2}, v13')
                    k(f'v_add_u32 v13, {L_SW + 512}, v13')
                    k(f'ds_read_b32 v{16+j}, v13')
                if j == 1: k('s_waitcnt lgkmcnt(8)')
            k('s_waitcnt lgkmcnt(0)')
            for j in range(3):
                A = ACC + 16 * j
                T = 112
                k(f's_add_u32 s{sT1}, s{sQB}, s{SL[j]}')
                k(f's_lshl_b32 s{sT0}, s{sT1}, 17')
                k(f's_lshl_b32 s{sT2}, s{sD1}, 10')
                k(f's_add_u32 s{sT0}, s{sT0}, s{sT2}')
                if types[j] == 'T':
                    SWR = CV[j]
                    k(f's_cmp_lt_u32 s{sT1}, 16')
                    k(f's_cselect_b32 s{sD2}, {fhex(QSCALE)}, 1.0')
                    k(f'v_mul_f32 v14, s{sD2}, v{vR}')
                    k(f'v_mul_f32 v15, s{sD2}, v{vRM}')
                    for i in range(16):
                        k(f'v_mul_f32 v{SWR+i}, v15, v{SWR+i}')
                    for i in range(16):
                        k(f'v_fma_f32 v{A+i}, v{A+i}, v14, -v{SWR+i}')
                    for i in range(8):
                        k(f'v_cvt_pk_bf16_f32 v{T+i}, v{A+2*i}, v{A+2*i+1}')
                    k(f's_add_u32 s{sT2}, s{sT0}, 0x10000')
                    k(f'buffer_store_dwordx4 {v(T,4)}, v6, s[{SWS}:{SWS+3}], s{sT0} offen {ST1}')
                    k(f'buffer_store_dwordx4 {v(T+4,4)}, v6, s[{SWS}:{SWS+3}], s{sT2} offen {ST1}')
                    k('s_nop 1')
                else:
                    SWR = 80
                    for i in range(16):
                        k(f'v_mul_f32 v{SWR+i}, v{16+j}, v{136+i}')
                    for i in range(16):
                        k(f'v_fma_f32 v{A+i}, v{A+i}, v{120+i}, -v{SWR+i}')
                    for i in range(8):
                        k(f'v_cvt_pk_bf16_f32 v{T+i}, v{A+2*i}, v{A+2*i+1}')
                    k(f'buffer_store_dwordx4 {v(T,4)}, v12, s[{SWS}:{SWS+3}], s{sT0} offen {ST1}')
                    k(f'buffer_store_dwordx4 {v(T+4,4)}, v12, s[{SWS}:{SWS+3}], s{sT0} offen offset:512 {ST1}')
                    k('s_nop 1')
        k.stamp()
        if k.st_en:
            k('s_waitcnt vmcnt(0)')
        k.stamp(); k.stamp(real=True)
        k.stamp_dump(0, sW, vtmp=3)
        k('s_endpgm')

    n0 = k.st_n
    role(0, None)
    k.label(ROLE1)
    V1 = k.newlabel('ttn'); V2 = k.newlabel('nnn')
    k(f's_cmp_eq_u32 s{sCG}, 10')
    k(f's_cbranch_scc1 {V1}')
    k(f's_cmp_gt_u32 s{sCG}, 10')
    k(f's_cbranch_scc1 {V2}')
    k.st_n = n0
    role(1, ['T', 'T', 'T'])
    k.label(V1)
    k.st_n = n0
    role(1, ['T', 'T', 'N'])
    k.label(V2)
    k.st_n = n0
    role(1, ['N', 'N', 'N'])

    k.label(PROD)
    k.st_n = n0
    if os.environ.get('PPRIO'): k(f's_setprio {os.environ["PPRIO"]}')
    vOX0, vOX1, vOF, vOQ = 10, 11, 12, 13
    vXs = 14
    XF = [20, 24]
    TMP = 28
    RS = 36
    SWZ = [40, 48, 56]
    vZ1, vZ2 = 64, 65
    k(f'v_lshrrev_b32 v2, 3, v{vLANE}')
    k(f'v_and_b32 v3, 7, v{vLANE}')
    k(f'v_lshrrev_b32 v4, 4, v{vLANE}')
    k(f'v_xor_b32 v5, v3, v4')
    k(f'v_lshlrev_b32 v5, 4, v5')
    k(f'v_lshl_add_u32 v{vOX0}, v2, 10, v5')
    k(f'v_xor_b32 v{vOX1}, 64, v{vOX0}')
    k(f'v_add_u32 v{vOX1}, 0x2000, v{vOX1}')
    k(f'v_and_b32 v3, 3, v{vLANE}')
    k(f'v_bfe_u32 v5, v{vLANE}, 2, 2')
    k(f'v_xor_b32 v5, v5, v4')
    k(f'v_lshlrev_b32 v6, 4, v3')
    k(f'v_lshl_add_u32 v6, v5, 6, v6')
    k(f'v_mul_u32_u24 v7, 3584, v4')
    k(f'v_add_u32 v{vOF}, v7, v6')
    k(f'v_mul_u32_u24 v7, 3072, v4')
    k(f'v_add_u32 v{vOQ}, v7, v6')
    k(f'v_mov_b32 v7, 0x7f000000')
    k(f'v_cmp_eq_u32 vcc, 3, v5')
    k(f'v_cmp_le_u32 s[72:73], s{sNF}, v5')
    k('s_nop 1')
    k(f'v_cndmask_b32 v{vOQ}, v{vOQ}, v7, vcc')
    k(f'v_cndmask_b32 v{vOF}, v{vOF}, v7, s[72:73]')
    k(f's_lshl_b32 s{sXO}, s{sRBK}, 17')
    k(f's_lshl_b32 s{sT0}, s{sRB}, 15')
    k(f's_add_u32 s{sXO}, s{sXO}, s{sT0}')
    k(f's_mul_i32 s{sFO}, s{sRB}, {8*3584}')
    k(f's_lshl_b32 s{sT0}, s{sFB}, 6')
    k(f's_add_u32 s{sFO}, s{sFO}, s{sT0}')
    k(f's_mul_i32 s{sQO}, s{sRB}, {8*3072}')
    k(f's_lshl_b32 s{sT0}, s{sQB}, 6')
    k(f's_add_u32 s{sQO}, s{sQO}, s{sT0}')
    k(f's_lshl_b32 s{sXD}, s{sRB}, 12')
    k(f's_lshl_b32 s{sWD}, s{sRB}, 11')
    k(f's_add_u32 s{sWD}, s{sWD}, {WRB}')
    k('s_waitcnt lgkmcnt(0)')
    k.srd(SX, 36, 37, 2048 * 512 * 2)
    k.srd(SW_, 44, 45, 512 * 3584)
    k.srd(SWQ, 38, 39, 512 * 3072)
    def dmaX_groups(tag):
        return [[f's_mov_b32 m0, s{sXD}', f's_add_u32 s{sT0}, s{sXO}, 16384', (f'buffer_load_dwordx4 v{vOX0}, s[{SX}:{SX+3}], s{sXO} offen lds', tag)],
                [f's_add_u32 m0, s{sXD}, 1024', 's_nop 0', (f'buffer_load_dwordx4 v{vOX1}, s[{SX}:{SX+3}], s{sXO} offen lds', tag)],
                [f's_add_u32 m0, s{sXD}, 2048', f's_add_u32 s{sXO}, s{sXO}, 128', (f'buffer_load_dwordx4 v{vOX0}, s[{SX}:{SX+3}], s{sT0} offen lds', tag)],
                [f's_add_u32 m0, s{sXD}, 3072', f's_add_u32 s{sXD}, s{sXD}, {XSL}', (f'buffer_load_dwordx4 v{vOX1}, s[{SX}:{SX+3}], s{sT0} offen lds', tag),
                 f's_cmp_ge_u32 s{sXD}, {NXS*XSL}', f's_cselect_b32 s{sT0}, {NXS*XSL}, 0', f's_sub_u32 s{sXD}, s{sXD}, s{sT0}']]
    def dmaW_groups(tag):
        return [[f's_mov_b32 m0, s{sWD}', f's_add_u32 s{sT2}, s{sFO}, {4*3584}', (f'buffer_load_dwordx4 v{vOF}, s[{SW_}:{SW_+3}], s{sFO} offen lds', tag)],
                [f's_add_u32 m0, s{sWD}, 1024', f's_add_u32 s{sFO}, s{sFO}, {32*3584}', (f'buffer_load_dwordx4 v{vOF}, s[{SW_}:{SW_+3}], s{sT2} offen lds', tag)],
                [f's_add_u32 m0, s{sWD}, 8192', f's_add_u32 s{sT2}, s{sQO}, {4*3072}', (f'buffer_load_dwordx4 v{vOQ}, s[{SWQ}:{SWQ+3}], s{sQO} offen lds', tag)],
                [f's_add_u32 m0, s{sWD}, 9216', f's_add_u32 s{sQO}, s{sQO}, {32*3072}', (f'buffer_load_dwordx4 v{vOQ}, s[{SWQ}:{SWQ+3}], s{sT2} offen lds', tag),
                 f's_add_u32 s{sWD}, s{sWD}, {WSL}', f's_cmp_ge_u32 s{sWD}, {WRB + NWS*WSL}', f's_cselect_b32 s{sT2}, {NWS*WSL}, 0', f's_sub_u32 s{sWD}, s{sWD}, s{sT2}']]
    def emit_group(gr):
        for t in gr:
            if isinstance(t, tuple): k.vmop(t[0], t[1])
            else: k(t)
    def dmaX(tag):
        for gr in dmaX_groups(tag): emit_group(gr)
    def dmaW(tag):
        for gr in dmaW_groups(tag): emit_group(gr)
    k.vm = []
    dmaX(('X', 0)); dmaW(('W', 0)); dmaW(('W', 1))
    k.stamp()
    dmaX(('X', 1)); dmaW(('W', 2))
    k(f'v_bfe_u32 v2, v{vN}, 1, 3')
    k(f'v_xor_b32 v2, v2, v{vH}')
    k(f'v_lshlrev_b32 v2, 4, v2')
    k(f'v_lshl_add_u32 v4, v{vN}, 7, v2')
    k(f's_lshl_b32 s{sT0}, s{sRB}, 12')
    k(f'v_add_u32 v{vXs}, s{sT0}, v4')
    for kk in range(1, 4):
        k(f'v_xor_b32 v{vXs+kk}, {kk*32}, v{vXs}')
    for i in range(4):
        k(f'v_mov_b32 v{RS+i}, 0')
    k(f's_mov_b32 s{sXR}, 0')
    k.srd(SWS, 50, 51, WS_SIZE)
    XFB = [[20, 24], [72, 76]]
    def stat_reads(par, buf):
        if 'nodot' in EXP or 'nostat' in EXP: return
        k(f'ds_read_b128 {v(XFB[buf][0],4)}, v{vXs+2*par}')
        k(f'ds_read_b128 {v(XFB[buf][1],4)}, v{vXs+2*par+1}')
        if par == 1:
            k(f's_add_u32 s{sXR}, s{sXR}, {XSL}')
            k(f's_cmp_eq_u32 s{sXR}, {NXS*XSL}')
            k(f's_mov_b32 s{sT1}, {XSL}')
            k(f's_cselect_b32 s{sT1}, {(XSL - NXS*XSL) & 0xffffffff:#x}, s{sT1}')
            k(f's_cselect_b32 s{sXR}, 0, s{sXR}')
            for i in range(4):
                k(f'v_add_u32 v{vXs+i}, s{sT1}, v{vXs+i}')
    def stat_ops(buf):
        if 'nodot' in EXP or 'nostat' in EXP: return []
        L = []
        for s_ in range(2):
            for q in range(4):
                x = XFB[buf][s_] + q
                L += [f'v_and_b32 v{TMP+2*q}, 0xffff0000, v{x}', f'v_lshlrev_b32 v{TMP+2*q+1}, 16, v{x}']
            for q in range(4):
                L += [f'v_add_f32 v{RS}, v{RS}, v{TMP+2*q}', f'v_fmac_f32 v{RS+2}, v{TMP+2*q}, v{TMP+2*q}',
                      f'v_add_f32 v{RS+1}, v{RS+1}, v{TMP+2*q+1}', f'v_fmac_f32 v{RS+3}, v{TMP+2*q+1}, v{TMP+2*q+1}']
        return L
    def side_loads():
        k(f'v_lshlrev_b32 v2, 12, v{vH}')
        k(f'v_lshl_add_u32 v{vZ1}, v{vN}, 1, v2')
        k(f'v_add_u32 v{vZ2}, 0x2000, v{vZ1}')
        k(f's_and_b32 s{sT2}, s2, 3')
        k(f's_lshl_b32 s{sT2}, s{sT2}, 2')
        k(f's_add_u32 s{sT2}, s{sT2}, s{sRB}')
        for i in range(3):
            SKI = None
            if i == 2:
                SKI = k.newlabel('noswz3')
                k(f's_cmp_ge_u32 s2, 64')
                k(f's_cbranch_scc1 {SKI}')
            k(f's_lshr_b32 s{sT0}, s2, 2')
            if i: k(f's_add_u32 s{sT0}, s{sT0}, {64*i}')
            if i == 0:
                k(f's_cmp_lt_u32 s{sT0}, 32')
                k(f's_cselect_b32 s{SSZ}, s40, s48')
                k(f's_cselect_b32 s{SSZ+1}, s41, s49')
                k(f's_mov_b32 s{SSZ+2}, {1792*1024:#x}')
                k(f's_cselect_b32 s{SSZ+2}, {512*1024:#x}, s{SSZ+2}')
                k(f's_cselect_b32 s{sT1}, 0, 32')
                k(f's_and_b32 s{SSZ+1}, s{SSZ+1}, 0xffff')
                k(f's_mov_b32 s{SSZ+3}, 0x20000')
                k(f's_sub_u32 s{sT1}, s{sT0}, s{sT1}')
            else:
                if i == 1: k.srd(SSZ, 48, 49, 1792 * 1024)
                k(f's_sub_u32 s{sT1}, s{sT0}, 32')
            k(f's_lshl_b32 s{sT1}, s{sT1}, 14')
            k(f's_lshl_b32 s{sZD[i]}, s{sT2}, 6')
            k(f's_add_u32 s{sT1}, s{sT1}, s{sZD[i]}')
            for j in range(8):
                k(f'buffer_load_ushort v{SWZ[i]+j}, v{vZ1 if j < 4 else vZ2}, s[{SSZ}:{SSZ+3}], s{sT1} offen offset:{(j%4)*1024}')
            k(f's_lshl_b32 s{sZD[i]}, s{sT0}, 4')
            k(f's_add_u32 s{sZD[i]}, s{sZD[i]}, s{sT2}')
            k(f's_lshl_b32 s{sZD[i]}, s{sZD[i]}, 10')
            k(f's_add_u32 s{sZD[i]}, s{sZD[i]}, {WS_WF:#x}')
            if SKI: k.label(SKI)
    def side_stores():
        k(f'v_lshlrev_b32 v2, 4, v{vLANE}')
        for i in range(3):
            SKI = None
            if i == 2:
                SKI = k.newlabel('noswz3s')
                k(f's_cmp_ge_u32 s2, 64')
                k(f's_cbranch_scc1 {SKI}')
            for r in range(4):
                k(f'v_lshl_or_b32 v{68+r}, v{SWZ[i]+2*r+1}, 16, v{SWZ[i]+2*r}')
            k(f'buffer_store_dwordx4 v[68:71], v2, s[{SWS}:{SWS+3}], s{sZD[i]} offen {ST1}')
            k('s_nop 1')
            if SKI: k.label(SKI)
    k.vmwait(('W', 0))
    BAR()
    k.stamp()
    dmaW(('W', 3)); dmaW(('W', 4))
    def prod_iter(c):
        if c + 1 < 16:
            tw, tx = ('W', c + 1), ('X', (c + 1) // 2)
            iw = max([i for i, t in enumerate(k.vm) if t == tw], default=-1)
            ix = max([i for i, t in enumerate(k.vm) if t == tx], default=-1)
            if max(iw, ix) >= 0:
                k.vmwait(tw if iw > ix else tx)
        BAR()
        stat_reads(c & 1, c & 1)
        groups = []
        if 'nodma' not in EXP:
            if c % 2 == 0 and c // 2 + 2 < 8: groups += dmaX_groups(('X', c // 2 + 2))
            if c + 5 < 16: groups += dmaW_groups(('W', c + 5))
        ops = stat_ops((c - 1) & 1) if c >= 1 else []
        per = (len(ops) + max(len(groups), 1) - 1) // max(len(groups), 1)
        for gr in groups:
            emit_group(gr)
            for _ in range(per):
                if ops: k(ops.pop(0))
        for t in ops: k(t)
        if c == 14:
            side_loads()
        k('s_waitcnt lgkmcnt(0)')
    prod_iter(0)
    PL = k.newlabel('ploop')
    k(f's_mov_b32 s{sC}, 0')
    k.label(PL)
    n_before = len(k.lines)
    prod_iter(1); prod_iter(2)
    body12 = k.lines[n_before:]
    k(f's_add_u32 s{sC}, s{sC}, 1')
    k(f's_cmp_lt_u32 s{sC}, 5')
    k(f's_cbranch_scc1 {PL}')
    n_mark = len(k.lines)
    for c in range(3, 11, 2):
        n0_ = len(k.lines)
        prod_iter(c); prod_iter(c + 1)
        assert k.lines[n0_:] == body12, c
        del k.lines[n0_:]
    for c in range(11, 16):
        prod_iter(c)
    for t in stat_ops(15 & 1): k(t)
    k.stamp()
    k(f'v_add_f32 v{RS}, v{RS}, v{RS+1}')
    k(f'v_add_f32 v{RS+2}, v{RS+2}, v{RS+3}')
    k(f'v_mov_b32 v{RS+1}, v{RS}')
    k(f'v_mov_b32 v{RS+3}, v{RS+2}')
    k('s_nop 1')
    k(f'v_permlane32_swap_b32 v{RS}, v{RS+1}')
    k(f'v_permlane32_swap_b32 v{RS+2}, v{RS+3}')
    k('s_nop 1')
    k(f'v_add_f32 v5, v{RS}, v{RS+1}')
    k(f'v_add_f32 v6, v{RS+2}, v{RS+3}')
    k(f'v_mul_f32 v5, {fhex(1/512)}, v5')
    k(f'v_mul_f32 v6, {fhex(1/512)}, v6')
    k(f'v_fma_f32 v6, -v5, v5, v6')
    k(f'v_max_f32 v6, 0, v6')
    def rbf(r):
        k(f'v_cvt_pk_bf16_f32 v{r}, v{r}, v{r}')
        k(f'v_lshlrev_b32 v{r}, 16, v{r}')
    rbf(5); rbf(6)
    k(f'v_add_f32 v6, {fhex(1e-5)}, v6')
    rbf(6)
    k(f'v_sqrt_f32 v6, v6')
    k('s_nop 0')
    rbf(6)
    k(f'v_rcp_f32 v6, v6')
    k('s_nop 0')
    k(f'v_mul_f32 v5, v5, v6')
    k(f's_lshl_b32 s{sT0}, s{sRB}, 7')
    k(f'v_lshlrev_b32 v2, 2, v{vN}')
    k(f'v_add_u32 v2, s{sT0}, v2')
    k(f'v_add_u32 v2, {L_RSUM}, v2')
    k(f'ds_write_b32 v2, v6')
    k(f'ds_write_b32 v2, v5 offset:512')
    k('s_waitcnt lgkmcnt(0)')
    BAR()
    k.stamp()
    k(f's_lshr_b32 s{sT0}, s{sRB}, 1')
    k(f's_and_b32 s{sT1}, s{sRB}, 1')
    k(f's_lshl_b32 s{sTA}, s{sT0}, 1')
    k(f's_or_b32 s{sTA}, s{sTA}, s{sT1}')
    k(f's_xor_b32 s{sTB}, s{sTA}, 1')
    k(f's_lshl_b32 s{sSA}, s{sT1}, 1')
    k(f's_or_b32 s{sSA}, s{sSA}, s{sT0}')
    k(f's_xor_b32 s{sSB}, s{sSA}, 1')
    k(f's_lshl_b32 s{sT0}, s{sT0}, 15')
    k(f's_lshl_b32 s{sT1}, s{sT1}, 13')
    k(f's_add_u32 s{sT0}, s{sT0}, s{sT1}')
    k(f'v_lshlrev_b32 v6, 4, v{vLANE}')
    k(f'v_add_u32 v3, s{sT0}, v6')
    for q in range(8):
        k(f'ds_read_b128 {v(64+4*q if False else 28+0,4)}, v3') if False else None
    PA = 64
    k('s_waitcnt vmcnt(0)')
    side_stores()
    k('s_setprio 1')
    for q in range(8):
        k(f'ds_read_b128 {v(PA+4*q,4)}, v3 offset:{q*1024}')
    k(f'v_lshlrev_b32 v5, 4, v{vH}')
    k(f'v_add_u32 v5, {L_SW}, v5')
    k(f's_lshl_b32 s{sC}, s{sRBK}, 2')
    k('s_waitcnt lgkmcnt(0)')
    f_epilogue(sTB, [PA, PA + 16])
    NZ = k.newlabel('nozero')
    k(f's_cmp_ge_u32 s2, 32')
    k(f's_cbranch_scc1 {NZ}')
    k(f's_cmp_lg_u32 s{sRB}, 0')
    k(f's_cbranch_scc1 {NZ}')
    k(f's_lshl_b32 s{sT0}, s2, 8')
    k(f's_add_u32 s{sT0}, s{sT0}, {WS_CNT:#x}')
    k(f'v_lshlrev_b32 v2, 2, v{vLANE}')
    k(f'v_mov_b32 v3, 0')
    k(f'buffer_store_dword v3, v2, s[{SWS}:{SWS+3}], s{sT0} offen sc0 sc1')
    k.label(NZ)
    k.stamp()
    if k.st_en:
        k('s_waitcnt vmcnt(0)')
    k.stamp(); k.stamp(real=True)
    k.stamp_dump(0, sW, vtmp=3)
    k.label(END)
    k('s_endpgm')
    return k.text(168, 100 if DBG else 80)

K2_CONST = 131072
K2_LDS = K2_CONST + 8192 + 256 + 16384
def gen_k2():
    k = Kern('k2_kernel')
    END = 'k2_end'
    SWS = 4
    sW, sHEAD, sQT, sIT, sT0, sT1, sFB = 8, 9, 10, 11, 12, 13, 14
    sKS, sVS, sLD = 22, 23, 24
    vLANE, vKA, vVA, vO16, vINC, vVA0 = 1, 2, 3, 4, 5, 6
    QF = 8
    NEGM = 16
    O = 32
    S = [48, 64]
    P = 80
    KF = [88, 92]
    VF = [96, 104]
    T = 112
    FA = 128
    FB = 144
    sFT0, sFT1, sFW, sA0, sA1, sA2, sTB, sNBP = 28, 29, 30, 31, 32, 33, 34, 35
    sFT0i, sFT1i, sFWi = 36, 37, 38
    sST, sSW, sWOB = 29, 39, 58
    UN = 8
    k('s_cmp_ge_u32 s2, 256')
    k(f's_cbranch_scc1 {END}')
    k.stamp_init('2' in DBG)
    k.stamp(); k.stamp(real=True)
    k('s_load_dwordx2 s[20:21], s[0:1], 72')
    k('v_lshrrev_b32 v2, 6, v0')
    k(f'v_and_b32 v{vLANE}, 63, v0')
    k(f'v_readfirstlane_b32 s{sW}, v2')
    k(f's_and_b32 s{sHEAD}, s2, 31')
    k(f's_lshr_b32 s{sQT}, s2, 5')
    k(f's_lshl_b32 s{sQT}, s{sQT}, 3')
    k(f'v_lshlrev_b32 v{vO16}, 4, v{vLANE}')
    k(f's_add_u32 s{sQT}, s{sQT}, s{sW}')
    k(f's_lshl_b32 s{sT0}, s{sHEAD}, 16')
    k(f's_lshl_b32 s{sT1}, s{sQT}, 10')
    k(f's_add_u32 s25, s{sT1}, s{sT0}')
    k(f's_lshl_b32 s{sLD}, s{sW}, 10')
    k(f's_add_u32 s{sT0}, s{sT0}, s{sLD}')
    k(f's_add_u32 s{sKS}, s{sT0}, {32*65536:#x}')
    k(f's_add_u32 s{sVS}, s{sT0}, {64*65536:#x}')
    k('s_waitcnt lgkmcnt(0)')
    k.srd(SWS, 20, 21, WS_SIZE)
    k(f'buffer_load_dwordx4 {v(QF,4)}, v{vO16}, s[{SWS}:{SWS+3}], s25 offen')
    def dma_round(i):
        k(f's_add_u32 m0, s{sLD}, {i*8192}')
        k(f's_add_u32 s26, s{sKS}, {i*8192}')
        k.vmop(f'buffer_load_dwordx4 v{vO16}, s[{SWS}:{SWS+3}], s26 offen lds', 'dma')
        k(f's_add_u32 m0, s{sLD}, {65536 + i*8192}')
        k(f's_add_u32 s26, s{sVS}, {i*8192}')
        k.vmop(f'buffer_load_dwordx4 v{vO16}, s[{SWS}:{SWS+3}], s26 offen lds', 'dma')
    dma_round(0)
    dma_round(1)
    k('v_lshlrev_b32 v7, 4, v0')
    k(f'v_add_u32 v7, {K2_CONST}, v7')
    for i in range(4):
        k(f'v_mov_b32 v{T+i}, 0')
    k('v_and_b32 v12, 31, v0')
    k('v_cmp_eq_u32 vcc, 0, v12')
    k(f'v_mov_b32 v13, 0x3f803f80')
    k('s_nop 0')
    for i in range(4):
        k(f'v_cndmask_b32 v{T+i}, v{T+i}, v13, vcc')
    k(f'ds_write_b128 v7, {v(T,4)}')
    for i in range(4):
        k(f'v_mov_b32 v{T+4+i}, 0')
    k(f'v_mov_b32 v7, {K2_CONST + 8192}')
    k(f'v_lshl_add_u32 v7, v{vLANE}, 2, v7')
    k(f'ds_write_b32 v7, v{T+4}')
    k(f'v_lshrrev_b32 v7, 5, v{vLANE}')
    k(f'v_lshlrev_b32 v7, 8, v7')
    k(f'v_and_b32 v12, 15, v{vLANE}')
    k(f'v_lshl_add_u32 v7, v12, 4, v7')
    k(f'v_add_u32 v{vVA0}, 0x10000, v7')
    k(f'v_mov_b32 v{vINC}, {UN*1024}')
    k(f'v_and_b32 v12, 31, v{vLANE}')
    k(f'v_mov_b32 v13, {K2_CONST + 16}')
    k(f'v_mov_b32 v14, 0')
    k('v_cmp_lt_u32 vcc, 15, v12')
    k('s_nop 1')
    k(f'v_cndmask_b32 v{vVA0}, v{vVA0}, v13, vcc')
    k(f'v_cndmask_b32 v{vINC}, v{vINC}, v14, vcc')
    k(f'v_mov_b32 v13, {K2_CONST}')
    k('v_cmp_eq_u32 vcc, 16, v12')
    k('s_nop 1')
    k(f'v_cndmask_b32 v{vVA0}, v{vVA0}, v13, vcc')
    k(f'v_subrev_u32 v14, 20, v12')
    k(f'v_mov_b32 v13, {K2_CONST + 64}')
    k('v_cmp_gt_u32 vcc, 8, v14')
    k('s_nop 1')
    k(f'v_cndmask_b32 v{vVA0}, v{vVA0}, v13, vcc')
    k(f's_mov_b32 s{sFB}, 0')
    k(f's_and_b32 s{sTB}, s2, 7')
    k(f's_lshr_b32 s{sT0}, s2, 3')
    k(f's_and_b32 s{sT0}, s{sT0}, 3')
    k(f's_lshl_b32 s{sT0}, s{sT0}, 3')
    k(f's_add_u32 s{sTB}, s{sTB}, s{sT0}')
    k(f's_lshr_b32 s{sNBP}, s2, 5')
    k(f's_lshr_b32 s{sT0}, s{sW}, 2')
    k(f's_mul_i32 s{sT0}, s{sT0}, 56')
    k(f's_add_u32 s{sT0}, s{sT0}, 32')
    k(f's_lshl_b32 s{sFT0i}, s{sTB}, 1')
    k(f's_bfe_u32 s{sT1}, s{sW}, 0x10001')
    k(f's_add_u32 s{sFT0i}, s{sFT0i}, s{sT1}')
    k(f's_mul_i32 s{sFT0i}, s{sFT0i}, 144')
    k(f's_add_u32 s{sFT0i}, s{sFT0i}, s{sT0}')
    k(f's_lshl_b32 s{sFT0i}, s{sFT0i}, 10')
    k(f's_add_u32 s{sFT0i}, s{sFT0i}, {WS_TF:#x}')
    k(f's_lshl_b32 s{sFWi}, s{sT0}, 4')
    k(f's_lshl_b32 s{sT1}, s{sNBP}, 1')
    k(f's_add_u32 s{sFWi}, s{sFWi}, s{sT1}')
    k(f's_and_b32 s{sT1}, s{sW}, 1')
    k(f's_add_u32 s{sFWi}, s{sFWi}, s{sT1}')
    k(f's_lshl_b32 s{sFWi}, s{sFWi}, 10')
    k(f's_add_u32 s{sFWi}, s{sFWi}, {WS_WF:#x}')
    k(f's_lshr_b32 s{sWOB}, s{sW}, 2')
    k(f's_lshl_b32 s{sWOB}, s{sWOB}, 8')
    k(f's_lshl_b32 s{sT1}, s{sNBP}, 1')
    k(f's_add_u32 s{sWOB}, s{sWOB}, s{sT1}')
    k(f's_and_b32 s{sT1}, s{sW}, 1')
    k(f's_add_u32 s{sWOB}, s{sWOB}, s{sT1}')
    k(f's_lshl_b32 s{sWOB}, s{sWOB}, 10')
    k(f's_add_u32 s{sWOB}, s{sWOB}, {WS_WF:#x}')
    k('s_waitcnt vmcnt(2) lgkmcnt(0)' if EARLY else 's_waitcnt vmcnt(0) lgkmcnt(0)')
    k('s_barrier')
    k.stamp()
    k(f'ds_read_b128 {v(KF[0],4)}, v{vO16}')
    k('s_waitcnt lgkmcnt(0)')
    k(MFMA(v(S[0],16), v(KF[0],4), v(QF,4), '0'))
    k('s_nop 15')
    k(f'v_max3_f32 v{T}, v{S[0]}, v{S[0]+1}, v{S[0]+2}')
    for i in range(3, 15, 2):
        k(f'v_max3_f32 v{T}, v{T}, v{S[0]+i}, v{S[0]+i+1}')
    k(f'v_max_f32 v{T}, v{T}, v{S[0]+15}')
    RESTART = k.newlabel('restart')
    k.label(RESTART)
    k(f'v_mov_b32 v{T+1}, v{T}')
    k(f'v_mov_b32 v{vKA}, v{vO16}')
    k(f'v_mov_b32 v{vVA}, v{vVA0}')
    k(f'v_permlane32_swap_b32 v{T}, v{T+1}')
    k(f'ds_read_b128 {v(KF[0],4)}, v{vKA}')
    k(f'ds_read_b128 {v(VF[0],4)}, v{vVA}')
    k(f'ds_read_b128 {v(VF[0]+4,4)}, v{vVA} offset:512')
    k(f'ds_read_b128 {v(KF[1],4)}, v{vKA} offset:1024')
    k(f'v_max_f32 v{T}, v{T}, v{T+1}')
    for i in range(16):
        k(f'v_sub_f32 v{NEGM+i}, 0, v{T}')
    for i in range(16):
        k(f'v_mov_b32 v{O+i}, 0')
    for i in range(8):
        k(f'v_mov_b32 v{VF[1]+i}, 0')
    for i in range(8):
        k(f'v_mov_b32 v{P+i}, 0')
    for i in range(12, 16):
        k(f'v_mov_b32 v{S[1]+i}, 0')
    for i in range(16):
        k(f'v_mov_b32 v{FA+i}, 0')
    k(f's_mov_b32 s{sFT0}, s{sFT0i}')
    k(f's_mov_b32 s{sST}, 1024')
    k(f's_mov_b32 s{sSW}, 16384')
    k(f's_mul_i32 s{sFW}, s{sFB}, 16384')
    k(f's_sub_u32 s{sFW}, s{sFWi}, s{sFW}')
    k('s_waitcnt lgkmcnt(0)')
    k(MFMA(v(S[0],16), v(KF[0],4), v(QF,4), v(NEGM,16)))
    k('s_nop 15')
    def body(dma, prio=None):
        dq = []
        if dma:
            for i in range(2, 8):
                dq.append(i)
        nolds = 'nolds' in EXP
        noffn = 'noffn' in EXP
        k.vm = ['r1', 'r1'] if (dma and EARLY) else []
        def MF(*a):
            if 'nomfma' not in EXP: k(MFMA(*a))
        def floadW(j):
            if noffn: return
            if j == 0 and dma: return
            r = FB + 8 * ((j - 1) % 8)
            k.vmop(f'buffer_load_dwordx4 {v(r+4,4)}, v{vO16}, s[{SWS}:{SWS+3}], s{sFW} offen', 'f')
            k(f's_add_u32 s{sFW}, s{sFW}, s{sSW}')
            if j == 0:
                k(f's_add_u32 s{sA0}, s{sWOB}, 16384')
                k(f's_cmp_lt_u32 s{sIT}, 7')
                k(f's_cselect_b32 s{sFW}, s{sFW}, s{sA0}')
                k(f's_cselect_b32 s{sFT0}, s{sFT0}, s{sWOB}')
                k(f's_cselect_b32 s{sST}, s{sST}, 0x8000')
                k(f's_cselect_b32 s{sSW}, s{sSW}, 0x8000')
        def floadT(q):
            if noffn: return
            r = FB + 8 * q
            k.vmop(f'buffer_load_dwordx4 {v(r,4)}, v{vO16}, s[{SWS}:{SWS+3}], s{sFT0} offen', 'f')
            k(f's_add_u32 s{sFT0}, s{sFT0}, s{sST}')
        def fmma(q):
            if noffn or dma: return
            r = FB + 8 * q
            k('s_waitcnt vmcnt(14)')
            MF(v(FA,16), v(r+4,4), v(r,4), v(FA,16))
        for j in range(UN):
            b = j & 1
            cur, nxt = S[b], S[b ^ 1]
            e = lambda i: k(f'v_exp_f32 v{cur+i}, v{cur+i}')
            c = lambda i: k(f'v_cvt_pk_bf16_f32 v{P+i}, v{cur+2*i}, v{cur+2*i+1}')
            cp = lambda i: k(f'v_cvt_pk_bf16_f32 v{P+i}, v{nxt+2*i}, v{nxt+2*i+1}')
            if dma and EARLY and j == 5:
                k.vmwait('r1')
                k('s_barrier')
            e(0)
            if prio is not None and (j == 0 or prio[j] != prio[j-1]):
                k(f's_setprio {prio[j]}')
            if j == UN - 1:
                k(f'v_add_u32 v{vVA}, v{vINC}, v{vVA}')
            cp(6); e(1); e(2)
            if WPOS == 0: floadW(j)
            cp(7); e(3); e(4)
            MF(v(O,16), v(VF[b^1]+4,4), v(P+4,4), v(O,16))
            if WPOS == 1: floadW(j)
            voff = ((j + 1) % UN) * 1024
            if not nolds: k(f'ds_read_b128 {v(VF[b^1],4)}, v{vVA} offset:{voff}')
            if WPOS == 2: floadW(j)
            c(0); e(5); e(6); c(1)
            if not nolds: k('s_waitcnt lgkmcnt(1)')
            e(7)
            MF(v(nxt,16), v(KF[b^1],4), v(QF,4), v(NEGM,16))
            if not nolds: k(f'ds_read_b128 {v(VF[b^1]+4,4)}, v{vVA} offset:{voff+512}')
            e(8); c(2); e(9); e(10); c(3); e(11)
            if dq and j < 6:
                dma_round(dq.pop(0))
            e(12)
            MF(v(O,16), v(VF[b],4), v(P,4), v(O,16))
            if not nolds: k(f'ds_read_b128 {v(KF[b],4)}, v{vKA} offset:{(j+2)*1024}')
            c(4); e(13)
            if j == UN - 1:
                k(f'v_add_u32 v{vKA}, {UN*1024}, v{vKA}')
            e(14); c(5)
            fmma(j)
            floadT(j)
            if j == UN - 1:
                k(f's_add_u32 s{sIT}, s{sIT}, 1')
                k(f's_cmp_lt_u32 s{sIT}, {64//UN}')
            e(15)
    FIRST = k.newlabel('first'); LOOP = k.newlabel('loop'); LOOP2 = k.newlabel('loop2'); AFTER = k.newlabel('after'); R2 = k.newlabel('r2')
    k(f's_mov_b32 s{sIT}, 0')
    k(f's_cmp_eq_u32 s{sFB}, 1')
    k(f's_cbranch_scc1 {LOOP}')
    nh = int(os.environ.get('NH', '6'))
    if nh >= 0:
        k(f's_cmp_ge_u32 s{sW}, 4')
        k(f's_cbranch_scc1 {R2}')
    body(True)
    k('s_waitcnt vmcnt(0)')
    k('s_barrier')
    k.label(LOOP)
    body(False)
    k(f's_cbranch_scc1 {LOOP}')
    if nh >= 0:
        k(f's_branch {AFTER}')
        k.label(R2)
        pr = [1] * nh + [0] * (UN - nh)
        body(True, pr)
        k('s_waitcnt vmcnt(0)')
        k('s_barrier')
        k.label(LOOP2)
        body(False, pr)
        k(f's_cbranch_scc1 {LOOP2}')
        k('s_setprio 0')
        k.label(AFTER)
    k('s_nop 1')
    k(f'v_cvt_pk_bf16_f32 v{P+6}, v{S[1]+12}, v{S[1]+13}')
    k(f'v_cvt_pk_bf16_f32 v{P+7}, v{S[1]+14}, v{S[1]+15}')
    k('s_nop 1')
    k(MFMA(v(O,16), v(VF[1]+4,4), v(P+4,4), v(O,16)))
    k('s_waitcnt lgkmcnt(0)')
    k('s_nop 15')
    k.stamp()
    k(f'v_mov_b32 v{T}, v{O+8}')
    k(f'v_mov_b32 v{T+1}, v{O+8}')
    k('s_nop 1')
    k(f'v_permlane32_swap_b32 v{T}, v{T+1}')
    k('s_nop 1')
    DONE = k.newlabel('done')
    k(f's_cmp_eq_u32 s{sFB}, 1')
    k(f's_cbranch_scc1 {DONE}')
    if EXP != ['']: k(f's_branch {DONE}')
    k(f'v_mov_b32 v{T+2}, {fhex(2.0**40)}')
    k(f'v_cmp_nlt_f32 vcc, v{T}, v{T+2}')
    k(f'v_mov_b32 v{T+1}, 0x207')
    for i in range(8):
        k(f'v_cmp_class_f32 s[26:27], v{O+i}, v{T+1}')
        k('s_or_b64 vcc, vcc, s[26:27]')
    k('s_cmp_eq_u64 vcc, 0')
    k(f's_cbranch_scc1 {DONE}')
    k(f's_mov_b32 s{sFB}, 1')
    k(f'v_mov_b32 v{vKA}, v{vO16}')
    k(f'v_mov_b32 v{T}, 0xff800000')
    k(f's_mov_b32 s{sIT}, 0')
    FL = k.newlabel('fbloop')
    k.label(FL)
    k(f'ds_read_b128 {v(KF[0],4)}, v{vKA}')
    k('s_waitcnt lgkmcnt(0)')
    k(MFMA(v(S[0],16), v(KF[0],4), v(QF,4), '0'))
    k('s_nop 15')
    for i in range(0, 16, 2):
        k(f'v_max3_f32 v{T}, v{T}, v{S[0]+i}, v{S[0]+i+1}')
    k(f'v_add_u32 v{vKA}, 0x400, v{vKA}')
    k(f's_add_u32 s{sIT}, s{sIT}, 1')
    k(f's_cmp_lt_u32 s{sIT}, 64')
    k(f's_cbranch_scc1 {FL}')
    k('s_waitcnt vmcnt(0)')
    for i in range(64):
        k(f'v_mov_b32 v{FB+i}, 0')
    k(f's_branch {RESTART}')
    k.label(DONE)
    k(f'v_rcp_f32 v{T}, v{T}')
    k('s_nop 0')
    for i in range(8):
        k(f'v_mul_f32 v{O+i}, v{O+i}, v{T}')
    for i in range(4):
        k(f'v_cvt_pk_bf16_f32 v{T+4+i}, v{O+2*i}, v{O+2*i+1}')
    k(f's_mul_i32 s{sT0}, s{sQT}, 144')
    k(f's_add_u32 s{sT0}, s{sT0}, s{sHEAD}')
    k(f's_lshl_b32 s{sT0}, s{sT0}, 10')
    k(f's_add_u32 s{sT0}, s{sT0}, {WS_TF:#x}')
    k(f'buffer_store_dwordx4 {v(T+4,4)}, v{vO16}, s[{SWS}:{SWS+3}], s{sT0} offen {OSF}')
    k.stamp(real=('r' in DBG))
    WOF, OF, XR = FB, 16, 80
    SX, SO, SD = 40, 44, 48
    sNB, sTT, sKH, sXO = 50, 51, 52, 53
    k('s_load_dwordx2 s[54:55], s[0:1], 0')
    k('s_load_dwordx2 s[56:57], s[0:1], 56')
    k(f's_load_dwordx2 s[{SD}:{SD+1}], s[0:1], 64')
    k(f's_and_b32 s{sNB}, s{sW}, 1')
    k(f's_bfe_u32 s{sTT}, s{sW}, 0x10001')
    k(f's_lshr_b32 s{sKH}, s{sW}, 2')
    k(f'buffer_load_dwordx4 {v(FB+60,4)}, v{vO16}, s[{SWS}:{SWS+3}], s{sFW} offen')
    vXO = T + 8
    k(f'v_and_b32 v{vXO}, 31, v{vLANE}')
    k(f'v_lshlrev_b32 v{vXO}, 10, v{vXO}')
    k(f'v_lshrrev_b32 v{vXO+1}, 5, v{vLANE}')
    k(f'v_lshl_add_u32 v{vXO}, v{vXO+1}, 3, v{vXO}')
    k(f's_lshl_b32 s{sXO}, s{sTB}, 1')
    k(f's_add_u32 s{sXO}, s{sXO}, s{sTT}')
    k(f's_lshl_b32 s{sXO}, s{sXO}, 15')
    k(f's_lshl_b32 s{sA1}, s{sNBP}, 7')
    k(f's_add_u32 s{sXO}, s{sXO}, s{sA1}')
    k(f's_lshl_b32 s{sA1}, s{sNB}, 6')
    k(f's_add_u32 s{sXO}, s{sXO}, s{sA1}')
    k(f's_lshl_b32 s{sA1}, s{sKH}, 5')
    k(f's_add_u32 s{sXO}, s{sXO}, s{sA1}')
    k('s_waitcnt lgkmcnt(0)')
    k.srd(SX, 54, 55, 2048 * 1024)
    k.srd(SO, 56, 57, 2048 * 1024)
    k(f'buffer_load_dwordx2 {v(XR,2)}, v{vXO}, s[{SX}:{SX+3}], s{sXO} offen')
    k(f'buffer_load_dwordx2 {v(XR+2,2)}, v{vXO}, s[{SX}:{SX+3}], s{sXO} offen offset:16')
    k('s_waitcnt vmcnt(3)')
    k('s_barrier')
    k.stamp()
    NOTW0 = k.newlabel('notw0'); POLL = k.newlabel('poll'); PD = k.newlabel('polldone')
    k(f's_cmp_lg_u32 s{sW}, 0')
    k(f's_cbranch_scc1 {NOTW0}')
    k(f's_lshr_b32 s{sA0}, s2, 5')
    k(f's_lshl_b32 s{sA0}, s{sA0}, 10')
    k(f's_add_u32 s{sA0}, s{sA0}, {WS_CNT:#x}')
    k(f'v_lshlrev_b32 v{T}, 8, v{vLANE}')
    k(f'v_mov_b32 v{T+1}, 1')
    k('s_mov_b64 exec, 15')
    k(f'buffer_atomic_add v{T+1}, v{T}, s[{SWS}:{SWS+3}], s{sA0} offen sc1')
    k('s_mov_b64 exec, 1')
    k(f's_lshl_b32 s{sA0}, s{sTB}, 8')
    k(f's_add_u32 s{sA0}, s{sA0}, {WS_CNT:#x}')
    k(f'v_mov_b32 v{T}, 0')
    k(f's_mov_b32 s{sA1}, 0')
    k.label(POLL)
    k(f'buffer_load_dword v{T+1}, v{T}, s[{SWS}:{SWS+3}], s{sA0} offen {POLLF}')
    k('s_waitcnt vmcnt(0)')
    k(f'v_readfirstlane_b32 s{sA2}, v{T+1}')
    k(f's_add_u32 s{sA1}, s{sA1}, 1')
    k(f's_cmp_ge_u32 s{sA2}, 32')
    k(f's_cbranch_scc1 {PD}')
    k(f's_cmp_lt_u32 s{sA1}, {1 << 16}')
    k(f's_sleep {SLP}')
    k(f's_cbranch_scc1 {POLL}')
    k.label(PD)
    k('s_mov_b64 exec, -1')
    k.label(NOTW0)
    k('s_barrier')
    k.stamp()
    if not ODMA:
        k(f's_lshl_b32 s{sA0}, s{sTB}, 1')
        k(f's_add_u32 s{sA0}, s{sA0}, s{sTT}')
        k(f's_mul_i32 s{sA0}, s{sA0}, 144')
        k(f's_lshl_b32 s{sA1}, s{sKH}, 4')
        k(f's_add_u32 s{sA0}, s{sA0}, s{sA1}')
        k(f's_lshl_b32 s{sA0}, s{sA0}, 10')
        k(f's_add_u32 s{sA0}, s{sA0}, {WS_TF:#x}')
        k.vm = []
        for j in range(16):
            if j and j % 4 == 0: k(f's_add_u32 s{sA0}, s{sA0}, 4096')
            k.vmop(f'buffer_load_dwordx4 {v(OF+4*j,4)}, v{vO16}, s[{SWS}:{SWS+3}], s{sA0} offen offset:{(j%4)*1024} {OLF}', j)
        for j in range(16):
            k.vmwait(j)
            k(MFMA(v(FA,16), v(WOF+4*j,4), v(OF+4*j,4), v(FA,16)))
    else:
        k(f's_lshl_b32 s{sA0}, s{sTB}, 1')
        k(f's_add_u32 s{sA0}, s{sA0}, s{sKH}')
        k(f's_mul_i32 s{sA0}, s{sA0}, 144')
        k(f's_and_b32 s{sA1}, s{sW}, 3')
        k(f's_lshl_b32 s{sA1}, s{sA1}, 3')
        k(f's_add_u32 s{sA0}, s{sA0}, s{sA1}')
        k(f's_lshl_b32 s{sA0}, s{sA0}, 10')
        k(f's_add_u32 s{sA0}, s{sA0}, {WS_TF:#x}')
        k(f's_lshl_b32 s{sA1}, s{sW}, 13')
        for j in range(8):
            k(f's_add_u32 m0, s{sA1}, {j*1024}')
            k(f's_add_u32 s{sA2}, s{sA0}, {j*1024}')
            k(f'buffer_load_dwordx4 v{vO16}, s[{SWS}:{SWS+3}], s{sA2} offen {OLF} lds')
        k(f's_lshl_b32 s{sA0}, s{sTT}, 15')
        k(f's_lshl_b32 s{sA1}, s{sKH}, 14')
        k(f's_add_u32 s{sA0}, s{sA0}, s{sA1}')
        k(f'v_add_u32 v{T}, s{sA0}, v{vO16}')
        k('s_waitcnt vmcnt(0)')
        k('s_barrier')
        for j in range(16):
            k(f'ds_read_b128 {v(OF+4*j,4)}, v{T} offset:{j*1024}')
            if j == 7: k('s_waitcnt lgkmcnt(4)')
        for j in range(16):
            k(f's_waitcnt lgkmcnt({min(15, 15 - j)})')
            k(MFMA(v(FA,16), v(WOF+4*j,4), v(OF+4*j,4), v(FA,16)))
    k('s_nop 15')
    k.stamp()
    RED = K2_CONST + 8192 + 256
    k(f's_and_b32 s{sA0}, s{sW}, 3')
    k(f's_lshl_b32 s{sA0}, s{sA0}, 12')
    k(f's_add_u32 s{sA0}, s{sA0}, {RED}')
    k(f'v_add_u32 v{T}, s{sA0}, v{vO16}')
    LO = k.newlabel('lo'); J = k.newlabel('j')
    R = FB
    k(f's_cmp_eq_u32 s{sKH}, 0')
    k(f's_cbranch_scc1 {LO}')
    k(f'ds_write_b128 v{T}, {v(FA,4)}')
    k(f'ds_write_b128 v{T}, {v(FA+4,4)} offset:1024')
    k('s_waitcnt lgkmcnt(0)')
    k('s_barrier')
    k(f'ds_read_b128 {v(R,4)}, v{T} offset:2048')
    k(f'ds_read_b128 {v(R+4,4)}, v{T} offset:3072')
    for i in range(8):
        k(f'v_mov_b32 v{R+8+i}, v{FA+8+i}')
    k(f's_branch {J}')
    k.label(LO)
    k(f'ds_write_b128 v{T}, {v(FA+8,4)} offset:2048')
    k(f'ds_write_b128 v{T}, {v(FA+12,4)} offset:3072')
    k('s_waitcnt lgkmcnt(0)')
    k('s_barrier')
    k(f'ds_read_b128 {v(R,4)}, v{T}')
    k(f'ds_read_b128 {v(R+4,4)}, v{T} offset:1024')
    for i in range(8):
        k(f'v_mov_b32 v{R+8+i}, v{FA+i}')
    k.label(J)
    for i in range(4):
        k(f'v_lshlrev_b32 v{R+16+2*i}, 16, v{XR+i}')
        k(f'v_and_b32 v{R+17+2*i}, 0xffff0000, v{XR+i}')
    for i in range(8):
        k(f'v_add_f32 v{R+8+i}, v{R+8+i}, v{R+16+i}')
    k('s_waitcnt lgkmcnt(0)')
    for i in range(8):
        k(f'v_add_f32 v{R+8+i}, v{R+8+i}, v{R+i}')
    for i in range(4):
        k(f'v_cvt_pk_bf16_f32 v{R+24+i}, v{R+8+2*i}, v{R+8+2*i+1}')
    k(f'buffer_store_dwordx2 {v(R+24,2)}, v{vXO}, s[{SO}:{SO+3}], s{sXO} offen')
    k(f'buffer_store_dwordx2 {v(R+26,2)}, v{vXO}, s[{SO}:{SO+3}], s{sXO} offen offset:16')
    k.stamp()
    if k.st_en:
        k('s_waitcnt vmcnt(0)')
    k.stamp(); k.stamp(real=True)
    k.stamp_dump(1, sW, vtmp=T+9+2)
    k.label(END)
    k('s_endpgm')
    return k.text(208, 100 if DBG else 64)

K3_LDS = 131072
def gen_k3():
    k = Kern('k3_kernel')
    END = 'k3_end'
    SWS, SX, SO = 4, 8, 12
    sW, sTB, sNBP, sT0, sT1, sTO, sWO, sNB, sTT, sKH, sXO, sL = 16, 17, 18, 19, 20, 21, 23, 30, 31, 32, 33, 34
    vLANE, vO16 = 1, 2
    ACC = 16
    BUF = 32
    PI = 96
    XR = 104
    k('s_cmp_ge_u32 s2, 256')
    k(f's_cbranch_scc1 {END}')
    k.stamp_init('3' in DBG)
    k.stamp(); k.stamp(real=True)
    k('s_load_dwordx2 s[28:29], s[0:1], 72')
    k('s_load_dwordx2 s[24:25], s[0:1], 0')
    k('s_load_dwordx2 s[26:27], s[0:1], 56')
    k('v_lshrrev_b32 v2, 6, v0')
    k(f'v_and_b32 v{vLANE}, 63, v0')
    k(f'v_readfirstlane_b32 s{sW}, v2')
    k(f's_and_b32 s{sTB}, s2, 7')
    k(f's_lshr_b32 s{sT0}, s2, 3')
    k(f's_and_b32 s{sT0}, s{sT0}, 3')
    k(f's_lshl_b32 s{sT0}, s{sT0}, 3')
    k(f's_add_u32 s{sTB}, s{sTB}, s{sT0}')
    k(f's_lshr_b32 s{sNBP}, s2, 5')
    k(f'v_lshlrev_b32 v{vO16}, 4, v{vLANE}')
    k(f's_and_b32 s{sNB}, s{sW}, 1')
    k(f's_bfe_u32 s{sTT}, s{sW}, 0x10001')
    k(f's_lshr_b32 s{sKH}, s{sW}, 2')
    k(f's_and_b32 s{sT0}, s{sW}, 3')
    k(f's_lshl_b32 s{sT0}, s{sT0}, 1')
    k(f's_lshl_b32 s{sT1}, s{sKH}, 4')
    k(f's_add_u32 s{sT0}, s{sT0}, s{sT1}')
    k(f's_mul_i32 s{sTO}, s{sTB}, {2*144}')
    k(f's_add_u32 s{sTO}, s{sTO}, s{sT0}')
    k(f's_lshl_b32 s{sTO}, s{sTO}, 10')
    k(f's_add_u32 s{sTO}, s{sTO}, {WS_TF:#x}')
    k(f's_lshl_b32 s{sWO}, s{sT0}, 4')
    k(f's_lshl_b32 s{sT1}, s{sNBP}, 1')
    k(f's_add_u32 s{sWO}, s{sWO}, s{sT1}')
    k(f's_lshl_b32 s{sWO}, s{sWO}, 10')
    k(f's_add_u32 s{sWO}, s{sWO}, {WS_WF:#x}')
    k(f's_lshl_b32 s{sL}, s{sT0}, 10')
    k('s_waitcnt lgkmcnt(0)')
    k.srd(SWS, 28, 29, WS_SIZE)
    for ph in range(2):
        for dk in range(2):
            ks = ph * 8 + dk
            for tt in range(2):
                k(f's_add_u32 m0, s{sL}, {tt*32768 + ks*1024}')
                k(f's_add_u32 s35, s{sTO}, {tt*144*1024 + ks*1024}')
                k.vmop(f'buffer_load_dwordx4 v{vO16}, s[{SWS}:{SWS+3}], s35 offen lds', ph)
            for nb in range(2):
                k(f's_add_u32 m0, s{sL}, {65536 + nb*32768 + ks*1024}')
                k(f's_add_u32 s35, s{sWO}, {ks*16384 + nb*1024}')
                k.vmop(f'buffer_load_dwordx4 v{vO16}, s[{SWS}:{SWS+3}], s35 offen lds', ph)
    k.srd(SX, 24, 25, 2048 * 1024)
    k.srd(SO, 26, 27, 2048 * 1024)
    k(f's_lshl_b32 s{sT0}, s{sTB}, 3')
    k(f's_add_u32 s{sT0}, s{sT0}, s{sNBP}')
    k(f's_lshl_b32 s{sT0}, s{sT0}, 2')
    k(f's_and_b32 s{sT1}, s{sW}, 3')
    k(f's_add_u32 s{sT0}, s{sT0}, s{sT1}')
    k(f's_lshl_b32 s{sT0}, s{sT0}, 12')
    k(f's_lshl_b32 s{sT1}, s{sKH}, 11')
    k(f's_add_u32 s{sT0}, s{sT0}, s{sT1}')
    k(f's_add_u32 s{sT0}, s{sT0}, {WS_PART:#x}')
    k.vmop(f'buffer_load_dwordx4 {v(PI,4)}, v{vO16}, s[{SWS}:{SWS+3}], s{sT0} offen', 'p')
    k.vmop(f'buffer_load_dwordx4 {v(PI+4,4)}, v{vO16}, s[{SWS}:{SWS+3}], s{sT0} offen offset:1024', 'p')
    k(f'v_and_b32 v3, 31, v{vLANE}')
    k(f'v_lshlrev_b32 v3, 10, v3')
    k(f'v_lshrrev_b32 v4, 5, v{vLANE}')
    k(f'v_lshl_add_u32 v3, v4, 3, v3')
    k(f's_lshl_b32 s{sXO}, s{sTB}, 1')
    k(f's_add_u32 s{sXO}, s{sXO}, s{sTT}')
    k(f's_lshl_b32 s{sXO}, s{sXO}, 15')
    k(f's_lshl_b32 s{sT0}, s{sNBP}, 7')
    k(f's_add_u32 s{sXO}, s{sXO}, s{sT0}')
    k(f's_lshl_b32 s{sT0}, s{sNB}, 6')
    k(f's_add_u32 s{sXO}, s{sXO}, s{sT0}')
    k(f's_lshl_b32 s{sT0}, s{sKH}, 5')
    k(f's_add_u32 s{sXO}, s{sXO}, s{sT0}')
    k.vmop(f'buffer_load_dwordx2 {v(XR,2)}, v3, s[{SX}:{SX+3}], s{sXO} offen', 'x')
    k.vmop(f'buffer_load_dwordx2 {v(XR+2,2)}, v3, s[{SX}:{SX+3}], s{sXO} offen offset:16', 'x')
    k(f's_lshl_b32 s{sT0}, s{sTT}, 15')
    k(f's_lshl_b32 s{sT1}, s{sKH}, 14')
    k(f's_add_u32 s{sT0}, s{sT0}, s{sT1}')
    k(f'v_add_u32 v5, s{sT0}, v{vO16}')
    k(f's_lshl_b32 s{sT0}, s{sNB}, 15')
    k(f's_add_u32 s{sT0}, s{sT0}, s{sT1}')
    k(f's_add_u32 s{sT0}, s{sT0}, 65536')
    k(f'v_add_u32 v6, s{sT0}, v{vO16}')
    for i in range(16):
        k(f'v_mov_b32 v{ACC+i}, 0')
    k.stamp()
    for ph in range(2):
        k.vmwait(ph)
        k('s_barrier')
        if ph == 0: k.stamp()
        for j in range(8):
            ks = ph * 8 + j
            k(f'ds_read_b128 {v(BUF+8*j,4)}, v5 offset:{ks*1024}')
            k(f'ds_read_b128 {v(BUF+8*j+4,4)}, v6 offset:{ks*1024}')
            if j == 6: k('s_waitcnt lgkmcnt(12)') if False else None
        for j in range(8):
            k(f's_waitcnt lgkmcnt({min(15, 14 - 2*j)})')
            k(MFMA(v(ACC,16), v(BUF+8*j+4,4), v(BUF+8*j,4), v(ACC,16)))
    k('s_nop 15')
    k.stamp()
    k('s_barrier')
    k(f's_and_b32 s{sT0}, s{sW}, 3')
    k(f's_lshl_b32 s{sT0}, s{sT0}, 12')
    k(f'v_add_u32 v5, s{sT0}, v{vO16}')
    LO = k.newlabel('lo'); J = k.newlabel('j')
    k(f's_cmp_eq_u32 s{sKH}, 0')
    k(f's_cbranch_scc1 {LO}')
    k(f'ds_write_b128 v5, {v(ACC,4)}')
    k(f'ds_write_b128 v5, {v(ACC+4,4)} offset:1024')
    k('s_waitcnt lgkmcnt(0)')
    k('s_barrier')
    k(f'ds_read_b128 {v(BUF,4)}, v5 offset:2048')
    k(f'ds_read_b128 {v(BUF+4,4)}, v5 offset:3072')
    for i in range(8):
        k(f'v_mov_b32 v{BUF+8+i}, v{ACC+8+i}')
    k(f's_branch {J}')
    k.label(LO)
    k(f'ds_write_b128 v5, {v(ACC+8,4)} offset:2048')
    k(f'ds_write_b128 v5, {v(ACC+12,4)} offset:3072')
    k('s_waitcnt lgkmcnt(0)')
    k('s_barrier')
    k(f'ds_read_b128 {v(BUF,4)}, v5')
    k(f'ds_read_b128 {v(BUF+4,4)}, v5 offset:1024')
    for i in range(8):
        k(f'v_mov_b32 v{BUF+8+i}, v{ACC+i}')
    k.label(J)
    k('s_waitcnt vmcnt(0)')
    for i in range(4):
        k(f'v_lshlrev_b32 v{BUF+16+2*i}, 16, v{XR+i}')
        k(f'v_and_b32 v{BUF+17+2*i}, 0xffff0000, v{XR+i}')
    for i in range(8):
        k(f'v_add_f32 v{PI+i}, v{PI+i}, v{BUF+16+i}')
        k(f'v_add_f32 v{PI+i}, v{PI+i}, v{BUF+8+i}')
    k('s_waitcnt lgkmcnt(0)')
    for i in range(8):
        k(f'v_add_f32 v{PI+i}, v{PI+i}, v{BUF+i}')
    for i in range(4):
        k(f'v_cvt_pk_bf16_f32 v{BUF+24+i}, v{PI+2*i}, v{PI+2*i+1}')
    k(f'buffer_store_dwordx2 {v(BUF+24,2)}, v3, s[{SO}:{SO+3}], s{sXO} offen')
    k(f'buffer_store_dwordx2 {v(BUF+26,2)}, v3, s[{SO}:{SO+3}], s{sXO} offen offset:16')
    k.stamp()
    if k.st_en:
        k('s_waitcnt vmcnt(0)')
    k.stamp(); k.stamp(real=True)
    k.stamp_dump(2, sW, vtmp=3)
    k.label(END)
    k('s_endpgm')
    return k.text(112, 100 if DBG else 40)

HEADER = open('parallel_sum__mha_block__dense_activation_mish__prompt.s.ref').read().split('; Override launch')[0]

DESC = """; Generated by a hand-written generator script (gen/gen.py).  Two launches:
"""
def main(out):
    t1, d1 = gen_k1()
    t2, d2 = gen_k2()
    s = HEADER
    s += f'; @launch kernel=k1_kernel grid=(256,1,1) block=(768,1,1) lds={K1_LDS}\n'
    s += f'; @launch kernel=k2_kernel grid=(256,1,1) block=(512,1,1) lds={K2_LDS}\n'
    s += DESC
    s += '.amdgcn_target "amdgcn-amd-amdhsa--gfx950"\n'
    s += t1 + t2 + d1 + d2
    open(out, 'w').write(s)

if __name__ == '__main__':
    main(sys.argv[1] if len(sys.argv) > 1 else 'parallel_sum__mha_block__dense_activation_mish__prompt.s')
```

```python
import math, sys, os
DBG = os.environ.get('DBG', '')
EXP = os.environ.get('EXP', '').split(',')
ST1 = os.environ.get('ST1', 'sc1')
ST2 = os.environ.get('ST2', '')
POLLF = os.environ.get('POLLF', 'sc1')
OLF = os.environ.get('OLF', 'sc1')
OSF = os.environ.get('OSF', 'sc0 sc1')
ODMA = os.environ.get('ODMA', '')
EARLY = int(os.environ.get('EARLY', '1'))
WPOS = int(os.environ.get('WPOS', '2'))
SLP = int(os.environ.get('SLP', '4'))
from asmlib import *

LOG2E = 1.4426950408889634
LN2 = 0.6931471805599453
QSCALE = 0.25 * LOG2E

WS_QKV = 0
WS_TF = 0x600000
WS_WF = 0xF00000
WS_PART = 0x1200000
WS_CNT = 0x1180000
WS_SIZE = 0x10000000

def MFMA(d, A, B, C):
    return f'v_mfma_f32_32x32x16_bf16 {d}, {A}, {B}, {C}'

XSL, NXS = 16384, 3
WSL, NWS = 16384, 6
WRB = XSL * NXS
MISC = WRB + WSL * NWS
L_SW = MISC
L_RSUM = MISC + 1024
L_BIAS = MISC + 2048
L_PRIV = MISC + 2560
K1_LDS = MISC + 2560 + 1024

def gen_k1():
    k = Kern('k1_kernel')
    if 'nost' in EXP:
        _call = k.__call__
        class KW(Kern):
            def __call__(self, txt):
                if txt.startswith('buffer_store_dwordx4'): return
                Kern.__call__(self, txt)
        k.__class__ = KW
    def BAR():
        if 'nobar' not in EXP: k('s_barrier')
    END = 'k1_end'
    SX, SW_, SWS, SSZ, SB, SWQ = 4, 8, 12, 16, 20, 64
    sW, sRB, sCH, sRBK, sCG = 24, 25, 26, 27, 28
    sC, sXD, sWD, sXO, sFO, sQO, sT0, sT1, sT2 = 29, 30, 31, 32, 33, 34, 53, 54, 55
    sXR, sWR = 56, 63
    sFB, sQB, sTA = 57, 58, 59
    sZD = [60, 61, 62]
    sTB, sSA, sSB, sIDX, sNF, sD1, sD2 = 42, 43, 52, 68, 69, 70, 71
    vTID, vLANE, vH, vN = 0, 1, 8, 9
    k(f's_cmp_ge_u32 s2, 256')
    k(f's_cbranch_scc1 {END}')
    k.stamp_init('1' in DBG, sbase=74)
    k.stamp(); k.stamp(real=True)
    k('s_load_dwordx4 s[36:39], s[0:1], 0')
    k('s_load_dwordx4 s[44:47], s[0:1], 32')
    k('s_load_dwordx2 s[40:41], s[0:1], 16')
    k('s_load_dwordx2 s[48:49], s[0:1], 48')
    k('s_load_dwordx2 s[50:51], s[0:1], 72')
    k(f'v_lshrrev_b32 v2, 6, v0')
    k(f'v_and_b32 v{vLANE}, 63, v0')
    k(f'v_readfirstlane_b32 s{sW}, v2')
    k(f'v_lshrrev_b32 v{vH}, 5, v{vLANE}')
    k(f'v_and_b32 v{vN}, 31, v{vLANE}')
    k(f's_and_b32 s{sT0}, s2, 7')
    k(f's_lshr_b32 s{sT1}, s2, 3')
    k(f's_and_b32 s{sRBK}, s{sT0}, 1')
    k(f's_lshl_b32 s{sRBK}, s{sRBK}, 3')
    k(f's_and_b32 s{sT2}, s{sT1}, 7')
    k(f's_add_u32 s{sRBK}, s{sRBK}, s{sT2}')
    k(f's_lshr_b32 s{sCG}, s{sT0}, 1')
    k(f's_mul_i32 s{sFB}, s{sCG}, 14')
    k(f's_lshl_b32 s{sCG}, s{sCG}, 2')
    k(f's_lshr_b32 s{sT2}, s{sT1}, 3')
    k(f's_add_u32 s{sCG}, s{sCG}, s{sT2}')
    k(f's_lshl_b32 s{sT0}, s{sT2}, 2')
    k(f's_add_u32 s{sFB}, s{sFB}, s{sT0}')
    k(f's_cmp_eq_u32 s{sT2}, 3')
    k(f's_cselect_b32 s{sNF}, 2, 4')
    k(f's_and_b32 s{sRB}, s{sW}, 3')
    k(f's_lshr_b32 s{sCH}, s{sW}, 2')
    k(f's_mul_i32 s{sQB}, s{sCG}, 3')
    PROD = k.newlabel('prod'); ROLE1 = k.newlabel('role1')
    k(f's_cmp_eq_u32 s{sCH}, 2')
    k(f's_cbranch_scc1 {PROD}')
    k(f'v_bfe_u32 v2, v{vN}, 1, 3')
    k(f'v_xor_b32 v2, v2, v{vH}')
    k(f'v_lshlrev_b32 v2, 4, v2')
    k(f'v_lshl_add_u32 v4, v{vN}, 7, v2')
    k(f'v_bfe_u32 v6, v{vLANE}, 2, 2')
    k(f'v_lshl_add_u32 v5, v{vH}, 3, v6')
    k(f'v_lshlrev_b32 v5, 8, v5')
    k(f'v_bfe_u32 v7, v{vLANE}, 4, 1')
    k(f'v_lshl_add_u32 v5, v7, 5, v5')
    k(f'v_and_b32 v7, 3, v{vLANE}')
    k(f'v_lshl_add_u32 v5, v7, 3, v5')
    k(f'v_add_u32 v5, {WRB}, v5')
    SEL, CS, ACC = 24, 28, 32
    vX, vW = 10, 18
    XA, XB = [96, 100], [104, 108]
    WSET = [112, 124]
    CW = 136
    k(f'v_mov_b32 v2, 0')
    k(f'v_mov_b32 v3, 0x3f803f80')
    k(f'v_cmp_eq_u32 vcc, 0, v{vN}')
    k(f'v_cmp_eq_u32 s[72:73], 17, v{vN}')
    k('s_nop 1')
    k('s_or_b64 vcc, vcc, s[72:73]')
    k('s_nop 1')
    k(f'v_cndmask_b32 v{SEL}, v2, v3, vcc')
    for i in range(1, 4):
        k(f'v_mov_b32 v{SEL+i}, v{SEL}')
    k(f's_mov_b32 s{sXR}, 0')
    k(f's_mov_b32 s{sWR}, 0')
    k(f's_lshl_b32 s{sIDX}, s{sRB}, 2')
    k('s_waitcnt lgkmcnt(0)')
    k.srd(SWS, 50, 51, WS_SIZE)
    k(f's_cmp_eq_u32 s{sCH}, 1')
    k(f's_cbranch_scc1 {ROLE1}')

    def f_epilogue(stile, accs):
        k(f's_lshl_b32 s{sT0}, s{stile}, 7')
        k(f'v_lshlrev_b32 v4, 2, v{vN}')
        k(f'v_add_u32 v4, s{sT0}, v4')
        k(f'v_add_u32 v4, {L_RSUM}, v4')
        k(f'ds_read_b32 v10, v4')
        k(f'ds_read_b32 v11, v4 offset:512')
        RL, RML, TWO, C2, LN2P = 14, 16, 22, 24, 26
        k(f'v_mov_b32 v{TWO}, 2.0'); k(f'v_mov_b32 v{TWO+1}, 2.0')
        k(f'v_mov_b32 v{C2}, {fhex(-2*LN2)}'); k(f'v_mov_b32 v{C2+1}, {fhex(-2*LN2)}')
        k(f'v_mov_b32 v{LN2P}, {fhex(LN2)}'); k(f'v_mov_b32 v{LN2P+1}, {fhex(LN2)}')
        VEC = [[96, 112], [128, 144]]
        TU, E, TT = 112, 96, 160
        for wj, ss in enumerate((sSA, sSB)):
            k(f's_lshl_b32 s{sT0}, s{ss}, 7')
            k(f'v_add_u32 v7, s{sT0}, v5')
            for g_ in range(4):
                k(f'ds_read_b128 {v(VEC[wj][0]+4*g_,4)}, v7 offset:{g_*32}')
                k(f'ds_read_b128 {v(VEC[wj][1]+4*g_,4)}, v7 offset:{L_BIAS - L_SW + g_*32}')
            if wj == 0: k('s_waitcnt lgkmcnt(8)')
            if wj == 0:
                for d in range(2):
                    k(f'v_mul_f32 v{RL+d}, {fhex(LOG2E)}, v10')
                    k(f'v_mul_f32 v{RML+d}, {fhex(LOG2E)}, v11')
        P2 = lambda r: v(r, 2)
        SKS = k.newlabel('noslot')
        k(f's_cmp_ge_u32 s{sSA}, s{sNF}')
        k(f's_cbranch_scc1 {SKS}')
        for wj, ss in enumerate((sSA, sSB)):
            A = accs[wj]
            SWV, CLV = VEC[wj]
            k(f's_add_u32 s{sT0}, s{sC}, s{stile}')
            k(f's_mul_i32 s{sT0}, s{sT0}, 144')
            k(f's_add_u32 s{sT1}, s{sFB}, s{ss}')
            k(f's_lshl_b32 s{sT1}, s{sT1}, 1')
            k(f's_add_u32 s{sT0}, s{sT0}, s{sT1}')
            k(f's_add_u32 s{sT0}, s{sT0}, 32')
            k(f's_lshl_b32 s{sT0}, s{sT0}, 10')
            k(f's_add_u32 s{sD1}, s{sT0}, {WS_TF:#x}')
            k(f's_waitcnt lgkmcnt({8 if wj == 0 else 0})')
            for i in range(0, 16, 2):
                k(f'v_pk_fma_f32 {P2(CLV+i)}, {P2(RML)}, {P2(SWV+i)}, {P2(CLV+i)} neg_lo:[1,0,0] neg_hi:[1,0,0]')
            for i in range(0, 16, 2):
                k(f'v_pk_fma_f32 {P2(A+i)}, {P2(A+i)}, {P2(RL)}, {P2(CLV+i)}')
            for i in range(16):
                k(f'v_exp_f32 v{SWV+i}, v{A+i}')
            for i in range(0, 16, 2):
                k(f'v_pk_add_f32 {P2(CLV+i)}, {P2(SWV+i)}, {P2(TWO)}')
            for i in range(0, 16, 2):
                k(f'v_pk_fma_f32 {P2(SWV+i)}, {P2(SWV+i)}, {P2(CLV+i)}, {P2(TWO)}')
            for i in range(16):
                k(f'v_rcp_f32 v{SWV+i}, v{SWV+i}')
            for i in range(0, 16, 2):
                k(f'v_pk_fma_f32 {P2(SWV+i)}, {P2(SWV+i)}, {P2(C2)}, {P2(LN2P)}')
            for i in range(0, 16, 2):
                k(f'v_pk_mul_f32 {P2(A+i)}, {P2(A+i)}, {P2(SWV+i)}')
            for i in range(8):
                k(f'v_cvt_pk_bf16_f32 v{TT+i}, v{A+2*i}, v{A+2*i+1}')
            k(f'buffer_store_dwordx4 {v(TT,4)}, v6, s[{SWS}:{SWS+3}], s{sD1} offen {ST1}')
            k(f'buffer_store_dwordx4 {v(TT+4,4)}, v6, s[{SWS}:{SWS+3}], s{sD1} offen offset:1024 {ST1}')
            k('s_nop 1')
        k.label(SKS)

    def role(rid, types):
        WB_ = 0 if rid == 0 else 8192
        rot = (rid == 1 and len(set(types)) == 1)
        if rid == 0:
            k.srd(SB, 46, 47, 1792 * 2)
            k(f's_lshl_b32 s{sT0}, s{sFB}, 6')
            k(f'v_lshlrev_b32 v2, 1, v{vTID}')
            k(f'buffer_load_ushort v21, v2, s[{SB}:{SB+3}], s{sT0} offen')
            k(f's_lshr_b32 s{sT0}, s{sW}, 1')
            k(f's_and_b32 s{sT1}, s{sW}, 1')
            k(f's_lshl_b32 s{sTA}, s{sT0}, 1')
            k(f's_or_b32 s{sTA}, s{sTA}, s{sT1}')
            k(f's_xor_b32 s{sTB}, s{sTA}, 1')
            k(f's_lshl_b32 s{sSA}, s{sT1}, 1')
            k(f's_or_b32 s{sSA}, s{sSA}, s{sT0}')
            k(f's_xor_b32 s{sSB}, s{sSA}, 1')
            nx, nwf = 2, 2
            for i, st_ in enumerate((sTA, sTB)):
                k(f's_lshl_b32 s{sT0}, s{st_}, 12')
                k(f'v_add_u32 v{vX+4*i}, s{sT0}, v4')
                for kk in range(1, 4):
                    k(f'v_xor_b32 v{vX+4*i+kk}, {kk*32}, v{vX+4*i}')
            for j, ss in enumerate((sSA, sSB)):
                k(f'v_xor_b32 v7, s{ss}, v6')
                k(f'v_lshl_add_u32 v{vW+j}, v7, 6, v5')
            tiles = [(0, 0), (0, 1), (1, 0), (1, 1)]
        else:
            k(f's_mov_b32 s{sTA}, s{sRB}')
            nx, nwf = 1, 3
            k(f's_lshl_b32 s{sT0}, s{sRB}, 12')
            k(f'v_add_u32 v{vX}, s{sT0}, v4')
            for kk in range(1, 4):
                k(f'v_xor_b32 v{vX+kk}, {kk*32}, v{vX}')
            SL = [sSA, sSB, sTB]
            for j in range(3):
                if rot:
                    k(f's_add_u32 s{SL[j]}, s{sRB}, {j}')
                    k(f's_cmp_ge_u32 s{SL[j]}, 3')
                    k(f's_cselect_b32 s{sT0}, 3, 0')
                    k(f's_sub_u32 s{SL[j]}, s{SL[j]}, s{sT0}')
                    k(f's_cmp_ge_u32 s{SL[j]}, 3')
                    k(f's_cselect_b32 s{sT0}, 3, 0')
                    k(f's_sub_u32 s{SL[j]}, s{SL[j]}, s{sT0}')
                else:
                    k(f's_mov_b32 s{SL[j]}, {j}')
                k(f'v_xor_b32 v7, s{SL[j]}, v6')
                k(f'v_lshl_add_u32 v{vW+j}, v7, 6, v5')
            tiles = [(0, 0), (0, 1), (0, 2)]
        nt = len(tiles)
        XR = [XA, XB]
        for i in range(16 * nt):
            k(f'v_mov_b32 v{ACC+i}, 0')
        for i in range(4):
            k(f'v_mov_b32 v{CS+i}, 0')
        def rd_list(kk, ks, st):
            off = WB_ + ks * 4096
            def xr(i): return [f'ds_read_b128 {v(XR[i][st],4)}, v{vX+4*i+kk}']
            def wr(j): return [f'ds_read_b64_tr_b16 {v(WSET[st]+4*j,2)}, v{vW+j} offset:{off}',
                               f'ds_read_b64_tr_b16 {v(WSET[st]+4*j+2,2)}, v{vW+j} offset:{off+1024}']
            if rid == 0: return xr(0) + wr(0) + wr(1) + xr(1)
            return xr(0) + wr(0) + wr(1) + wr(2)
        need = [3, 5, 6, 6] if rid == 0 else [3, 5, 7]
        NOLD = 6 if rid == 0 else 7
        def advW():
            L = [f's_add_u32 s{sWR}, s{sWR}, {WSL}', f's_cmp_eq_u32 s{sWR}, {NWS*WSL}',
                 f's_mov_b32 s{sT2}, {WSL}', f's_cselect_b32 s{sT2}, {(WSL - NWS*WSL) & 0xffffffff:#x}, s{sT2}', f's_cselect_b32 s{sWR}, 0, s{sWR}']
            for j in range(nwf):
                L.append(f'v_add_u32 v{vW+j}, s{sT2}, v{vW+j}')
            return L
        def advX():
            L = [f's_add_u32 s{sXR}, s{sXR}, {XSL}', f's_cmp_eq_u32 s{sXR}, {NXS*XSL}',
                 f's_mov_b32 s{sT1}, {XSL}', f's_cselect_b32 s{sT1}, {(XSL - NXS*XSL) & 0xffffffff:#x}, s{sT1}', f's_cselect_b32 s{sXR}, 0, s{sXR}']
            for i in range(4 * nx):
                L.append(f'v_add_u32 v{vX+i}, s{sT1}, v{vX+i}')
            return L
        def kstep(st, nxt_reads, pre=(), post=()):
            if 'nocomp' in EXP:
                for s_ in post: k(s_)
                return
            rl = list(nxt_reads)
            if 'nolds1' in EXP: rl = []
            pre = list(pre)
            per = (len(rl) + nt - 1) // nt
            pper = (len(pre) + nt - 2) // (nt - 1) if pre else 0
            new = 0
            for t, (xi, wj) in enumerate(tiles):
                X = v(XR[xi][st], 4); W = v(WSET[st] + 4 * wj, 4); A = v(ACC + 16 * t, 16)
                k(f's_waitcnt lgkmcnt({NOLD - need[t] + new})')
                ty = 'T' if rid == 0 else types[t]
                if ty == 'N': k(MFMA(A, X, W, A))
                else: k(MFMA(A, W, X, A))
                if t == 0:
                    for s_ in pre: k(s_)
                for _ in range(per):
                    if rl:
                        k(rl.pop(0)); new += 1
                if 'nodot' not in EXP and 'noh' not in EXP:
                    if t == 1 and (rid == 0 or rot):
                        k(f'v_mfma_f32_16x16x32_bf16 {v(CS,4)}, {v(SEL,4)}, {v(WSET[st],4)}, {v(CS,4)}')
                    if rid == 1 and not rot and t == 2:
                        k(f's_set_gpr_idx_on s{sIDX}, gpr_idx(SRC0)')
                        k('s_nop 0')
                        for r in range(4):
                            k(f'v_mov_b32 v{CW+r}, v{WSET[st]+r}')
                        k('s_set_gpr_idx_off')
                        k('s_nop 1')
                        k(f'v_mfma_f32_16x16x32_bf16 {v(CS,4)}, {v(SEL,4)}, {v(CW,4)}, {v(CS,4)}')
            for s_ in post: k(s_)
            assert not rl
        def iteration(par, post=()):
            if 'bartop' in EXP: BAR()
            kstep(0, rd_list(2 * par + 1, 1, 1))
            pre = ([] if 'bartop' in EXP else ['s_barrier']) + advW() + (advX() if par == 1 else [])
            kstep(1, rd_list((2 * par + 2) % 4, 0, 0), pre=pre, post=post)
        k.stamp()
        BAR()
        k.stamp()
        for t in rd_list(0, 0, 0): k(t)
        LOOP = k.newlabel('loop')
        k(f's_mov_b32 s{sC}, 0')
        k.label(LOOP)
        iteration(0)
        iteration(1, post=[f's_add_u32 s{sC}, s{sC}, 1', f's_cmp_lt_u32 s{sC}, 8'])
        k(f's_cbranch_scc1 {LOOP}')
        k('s_nop 7')
        k.stamp()
        NS = k.newlabel('nosw')
        if rid == 0:
            k(f's_lshl_b32 s{sT0}, s{sSA}, 7')
            k(f's_add_u32 s{sT0}, s{sT0}, {L_SW}')
        elif rot:
            k(f's_lshl_b32 s{sT0}, s{sSA}, 7')
            k(f's_add_u32 s{sT0}, s{sT0}, {L_SW + 512}')
        else:
            k(f's_cmp_eq_u32 s{sRB}, 3')
            k(f's_cbranch_scc1 {NS}')
            k(f's_lshl_b32 s{sT0}, s{sRB}, 7')
            k(f's_add_u32 s{sT0}, s{sT0}, {L_SW + 512}')
        k(f'v_lshlrev_b32 v3, 2, v{vLANE}')
        k(f'v_add_u32 v3, s{sT0}, v3')
        k('s_mov_b64 exec, 0xffff')
        k(f'ds_write_b32 v3, v{CS}')
        k(f'ds_write_b32 v3, v{CS+1} offset:64')
        k('s_mov_b64 exec, -1')
        k.label(NS)
        if rid == 0:
            k(f's_lshr_b32 s{sT0}, s{sW}, 1')
            k(f's_lshl_b32 s{sT0}, s{sT0}, 15')
            k(f's_and_b32 s{sT1}, s{sW}, 1')
            k(f's_lshl_b32 s{sT1}, s{sT1}, 13')
            k(f's_add_u32 s{sT0}, s{sT0}, s{sT1}')
            k(f'v_lshlrev_b32 v3, 4, v{vLANE}')
            k(f'v_add_u32 v3, s{sT0}, v3')
            for q in range(8):
                k(f'ds_write_b128 v3, {v(ACC+32+4*q,4)} offset:{q*1024}')
            NB = k.newlabel('nobias')
            k(f's_cmp_ge_u32 s{sW}, 2')
            k(f's_cbranch_scc1 {NB}')
            k('s_waitcnt vmcnt(0)')
            k(f'v_lshlrev_b32 v3, 16, v21')
            k(f'v_mul_f32 v3, {fhex(LOG2E)}, v3')
            k(f'v_lshlrev_b32 v4, 2, v{vTID}')
            k(f'v_add_u32 v4, {L_BIAS}, v4')
            k(f'ds_write_b32 v4, v3')
            k.label(NB)
        k('s_waitcnt lgkmcnt(0)')
        BAR()
        k.stamp()
        def tokstats_issue(stile, r0):
            k(f's_lshl_b32 s{sT0}, s{stile}, 7')
            k(f'v_lshlrev_b32 v4, 2, v{vN}')
            k(f'v_add_u32 v4, s{sT0}, v4')
            k(f'v_add_u32 v4, {L_RSUM}, v4')
            k(f'ds_read_b32 v{r0}, v4')
            k(f'ds_read_b32 v{r0+1}, v4 offset:512')
        k(f'v_lshlrev_b32 v5, 4, v{vH}')
        k(f'v_add_u32 v5, {L_SW}, v5')
        k(f'v_lshlrev_b32 v6, 4, v{vLANE}')
        k(f's_lshl_b32 s{sC}, s{sRBK}, 2')
        if rid == 0:
            k.label('k1_fepi')
            f_epilogue(sTA, [ACC, ACC + 16])
        else:
            k('s_setprio 2')
            vR, vRM = 10, 11
            tokstats_issue(sTA, 10)
            if 'N' in types:
                k(f's_lshl_b32 s{sT0}, s{sTA}, 7')
                k(f'v_lshlrev_b32 v7, 4, v{vH}')
                k(f'v_add_u32 v7, s{sT0}, v7')
                k(f'v_add_u32 v7, {L_RSUM}, v7')
                for g_ in range(4):
                    k(f'ds_read_b128 {v(120+4*g_,4)}, v7 offset:{g_*32}')
                    k(f'ds_read_b128 {v(136+4*g_,4)}, v7 offset:{g_*32 + 512}')
                k(f'v_lshrrev_b32 v12, 4, v{vN}')
                k(f'v_lshlrev_b32 v12, 16, v12')
                k(f'v_lshl_add_u32 v12, v{vH}, 8, v12')
                k(f'v_and_b32 v13, 15, v{vN}')
                k(f'v_lshl_add_u32 v12, v13, 4, v12')
            k(f's_add_u32 s{sD1}, s{sC}, s{sTA}')
            SL = [sSA, sSB, sTB]
            CV = [80, 96, 152]
            for j in range(3):
                k(f's_lshl_b32 s{sD2}, s{SL[j]}, 7')
                if types[j] == 'T':
                    k(f'v_add_u32 v7, s{sD2}, v5')
                    for g_ in range(4):
                        k(f'ds_read_b128 {v(CV[j]+4*g_,4)}, v7 offset:{512 + g_*32}')
                else:
                    k(f'v_lshlrev_b32 v13, 2, v{vN}')
                    k(f'v_add_u32 v13, s{sD2}, v13')
                    k(f'v_add_u32 v13, {L_SW + 512}, v13')
                    k(f'ds_read_b32 v{16+j}, v13')
                if j == 1: k('s_waitcnt lgkmcnt(8)')
            k('s_waitcnt lgkmcnt(0)')
            for j in range(3):
                A = ACC + 16 * j
                T = 112
                k(f's_add_u32 s{sT1}, s{sQB}, s{SL[j]}')
                k(f's_lshl_b32 s{sT0}, s{sT1}, 17')
                k(f's_lshl_b32 s{sT2}, s{sD1}, 10')
                k(f's_add_u32 s{sT0}, s{sT0}, s{sT2}')
                if types[j] == 'T':
                    SWR = CV[j]
                    k(f's_cmp_lt_u32 s{sT1}, 16')
                    k(f's_cselect_b32 s{sD2}, {fhex(QSCALE)}, 1.0')
                    k(f'v_mul_f32 v14, s{sD2}, v{vR}')
                    k(f'v_mul_f32 v15, s{sD2}, v{vRM}')
                    for i in range(16):
                        k(f'v_mul_f32 v{SWR+i}, v15, v{SWR+i}')
                    for i in range(16):
                        k(f'v_fma_f32 v{A+i}, v{A+i}, v14, -v{SWR+i}')
                    for i in range(8):
                        k(f'v_cvt_pk_bf16_f32 v{T+i}, v{A+2*i}, v{A+2*i+1}')
                    k(f's_add_u32 s{sT2}, s{sT0}, 0x10000')
                    k(f'buffer_store_dwordx4 {v(T,4)}, v6, s[{SWS}:{SWS+3}], s{sT0} offen {ST1}')
                    k(f'buffer_store_dwordx4 {v(T+4,4)}, v6, s[{SWS}:{SWS+3}], s{sT2} offen {ST1}')
                    k('s_nop 1')
                else:
                    SWR = 80
                    for i in range(16):
                        k(f'v_mul_f32 v{SWR+i}, v{16+j}, v{136+i}')
                    for i in range(16):
                        k(f'v_fma_f32 v{A+i}, v{A+i}, v{120+i}, -v{SWR+i}')
                    for i in range(8):
                        k(f'v_cvt_pk_bf16_f32 v{T+i}, v{A+2*i}, v{A+2*i+1}')
                    k(f'buffer_store_dwordx4 {v(T,4)}, v12, s[{SWS}:{SWS+3}], s{sT0} offen {ST1}')
                    k(f'buffer_store_dwordx4 {v(T+4,4)}, v12, s[{SWS}:{SWS+3}], s{sT0} offen offset:512 {ST1}')
                    k('s_nop 1')
        k.stamp()
        if k.st_en:
            k('s_waitcnt vmcnt(0)')
        k.stamp(); k.stamp(real=True)
        k.stamp_dump(0, sW, vtmp=3)
        k('s_endpgm')

    n0 = k.st_n
    role(0, None)
    k.label(ROLE1)
    V1 = k.newlabel('ttn'); V2 = k.newlabel('nnn')
    k(f's_cmp_eq_u32 s{sCG}, 10')
    k(f's_cbranch_scc1 {V1}')
    k(f's_cmp_gt_u32 s{sCG}, 10')
    k(f's_cbranch_scc1 {V2}')
    k.st_n = n0
    role(1, ['T', 'T', 'T'])
    k.label(V1)
    k.st_n = n0
    role(1, ['T', 'T', 'N'])
    k.label(V2)
    k.st_n = n0
    role(1, ['N', 'N', 'N'])

    k.label(PROD)
    k.st_n = n0
    if os.environ.get('PPRIO'): k(f's_setprio {os.environ["PPRIO"]}')
    vOX0, vOX1, vOF, vOQ = 10, 11, 12, 13
    vXs = 14
    XF = [20, 24]
    TMP = 28
    RS = 36
    SWZ = [40, 48, 56]
    vZ1, vZ2 = 64, 65
    k(f'v_lshrrev_b32 v2, 3, v{vLANE}')
    k(f'v_and_b32 v3, 7, v{vLANE}')
    k(f'v_lshrrev_b32 v4, 4, v{vLANE}')
    k(f'v_xor_b32 v5, v3, v4')
    k(f'v_lshlrev_b32 v5, 4, v5')
    k(f'v_lshl_add_u32 v{vOX0}, v2, 10, v5')
    k(f'v_xor_b32 v{vOX1}, 64, v{vOX0}')
    k(f'v_add_u32 v{vOX1}, 0x2000, v{vOX1}')
    k(f'v_and_b32 v3, 3, v{vLANE}')
    k(f'v_bfe_u32 v5, v{vLANE}, 2, 2')
    k(f'v_xor_b32 v5, v5, v4')
    k(f'v_lshlrev_b32 v6, 4, v3')
    k(f'v_lshl_add_u32 v6, v5, 6, v6')
    k(f'v_mul_u32_u24 v7, 3584, v4')
    k(f'v_add_u32 v{vOF}, v7, v6')
    k(f'v_mul_u32_u24 v7, 3072, v4')
    k(f'v_add_u32 v{vOQ}, v7, v6')
    k(f'v_mov_b32 v7, 0x7f000000')
    k(f'v_cmp_eq_u32 vcc, 3, v5')
    k(f'v_cmp_le_u32 s[72:73], s{sNF}, v5')
    k('s_nop 1')
    k(f'v_cndmask_b32 v{vOQ}, v{vOQ}, v7, vcc')
    k(f'v_cndmask_b32 v{vOF}, v{vOF}, v7, s[72:73]')
    k(f's_lshl_b32 s{sXO}, s{sRBK}, 17')
    k(f's_lshl_b32 s{sT0}, s{sRB}, 15')
    k(f's_add_u32 s{sXO}, s{sXO}, s{sT0}')
    k(f's_mul_i32 s{sFO}, s{sRB}, {8*3584}')
    k(f's_lshl_b32 s{sT0}, s{sFB}, 6')
    k(f's_add_u32 s{sFO}, s{sFO}, s{sT0}')
    k(f's_mul_i32 s{sQO}, s{sRB}, {8*3072}')
    k(f's_lshl_b32 s{sT0}, s{sQB}, 6')
    k(f's_add_u32 s{sQO}, s{sQO}, s{sT0}')
    k(f's_lshl_b32 s{sXD}, s{sRB}, 12')
    k(f's_lshl_b32 s{sWD}, s{sRB}, 11')
    k(f's_add_u32 s{sWD}, s{sWD}, {WRB}')
    k('s_waitcnt lgkmcnt(0)')
    k.srd(SX, 36, 37, 2048 * 512 * 2)
    k.srd(SW_, 44, 45, 512 * 3584)
    k.srd(SWQ, 38, 39, 512 * 3072)
    def dmaX_groups(tag):
        return [[f's_mov_b32 m0, s{sXD}', f's_add_u32 s{sT0}, s{sXO}, 16384', (f'buffer_load_dwordx4 v{vOX0}, s[{SX}:{SX+3}], s{sXO} offen lds', tag)],
                [f's_add_u32 m0, s{sXD}, 1024', 's_nop 0', (f'buffer_load_dwordx4 v{vOX1}, s[{SX}:{SX+3}], s{sXO} offen lds', tag)],
                [f's_add_u32 m0, s{sXD}, 2048', f's_add_u32 s{sXO}, s{sXO}, 128', (f'buffer_load_dwordx4 v{vOX0}, s[{SX}:{SX+3}], s{sT0} offen lds', tag)],
                [f's_add_u32 m0, s{sXD}, 3072', f's_add_u32 s{sXD}, s{sXD}, {XSL}', (f'buffer_load_dwordx4 v{vOX1}, s[{SX}:{SX+3}], s{sT0} offen lds', tag),
                 f's_cmp_ge_u32 s{sXD}, {NXS*XSL}', f's_cselect_b32 s{sT0}, {NXS*XSL}, 0', f's_sub_u32 s{sXD}, s{sXD}, s{sT0}']]
    def dmaW_groups(tag):
        return [[f's_mov_b32 m0, s{sWD}', f's_add_u32 s{sT2}, s{sFO}, {4*3584}', (f'buffer_load_dwordx4 v{vOF}, s[{SW_}:{SW_+3}], s{sFO} offen lds', tag)],
                [f's_add_u32 m0, s{sWD}, 1024', f's_add_u32 s{sFO}, s{sFO}, {32*3584}', (f'buffer_load_dwordx4 v{vOF}, s[{SW_}:{SW_+3}], s{sT2} offen lds', tag)],
                [f's_add_u32 m0, s{sWD}, 8192', f's_add_u32 s{sT2}, s{sQO}, {4*3072}', (f'buffer_load_dwordx4 v{vOQ}, s[{SWQ}:{SWQ+3}], s{sQO} offen lds', tag)],
                [f's_add_u32 m0, s{sWD}, 9216', f's_add_u32 s{sQO}, s{sQO}, {32*3072}', (f'buffer_load_dwordx4 v{vOQ}, s[{SWQ}:{SWQ+3}], s{sT2} offen lds', tag),
                 f's_add_u32 s{sWD}, s{sWD}, {WSL}', f's_cmp_ge_u32 s{sWD}, {WRB + NWS*WSL}', f's_cselect_b32 s{sT2}, {NWS*WSL}, 0', f's_sub_u32 s{sWD}, s{sWD}, s{sT2}']]
    def emit_group(gr):
        for t in gr:
            if isinstance(t, tuple): k.vmop(t[0], t[1])
            else: k(t)
    def dmaX(tag):
        for gr in dmaX_groups(tag): emit_group(gr)
    def dmaW(tag):
        for gr in dmaW_groups(tag): emit_group(gr)
    k.vm = []
    dmaX(('X', 0)); dmaW(('W', 0)); dmaW(('W', 1))
    k.stamp()
    dmaX(('X', 1)); dmaW(('W', 2))
    k(f'v_bfe_u32 v2, v{vN}, 1, 3')
    k(f'v_xor_b32 v2, v2, v{vH}')
    k(f'v_lshlrev_b32 v2, 4, v2')
    k(f'v_lshl_add_u32 v4, v{vN}, 7, v2')
    k(f's_lshl_b32 s{sT0}, s{sRB}, 12')
    k(f'v_add_u32 v{vXs}, s{sT0}, v4')
    for kk in range(1, 4):
        k(f'v_xor_b32 v{vXs+kk}, {kk*32}, v{vXs}')
    for i in range(4):
        k(f'v_mov_b32 v{RS+i}, 0')
    k(f's_mov_b32 s{sXR}, 0')
    k.srd(SWS, 50, 51, WS_SIZE)
    XFB = [[20, 24], [72, 76]]
    def stat_reads(par, buf):
        if 'nodot' in EXP or 'nostat' in EXP: return
        k(f'ds_read_b128 {v(XFB[buf][0],4)}, v{vXs+2*par}')
        k(f'ds_read_b128 {v(XFB[buf][1],4)}, v{vXs+2*par+1}')
        if par == 1:
            k(f's_add_u32 s{sXR}, s{sXR}, {XSL}')
            k(f's_cmp_eq_u32 s{sXR}, {NXS*XSL}')
            k(f's_mov_b32 s{sT1}, {XSL}')
            k(f's_cselect_b32 s{sT1}, {(XSL - NXS*XSL) & 0xffffffff:#x}, s{sT1}')
            k(f's_cselect_b32 s{sXR}, 0, s{sXR}')
            for i in range(4):
                k(f'v_add_u32 v{vXs+i}, s{sT1}, v{vXs+i}')
    def stat_ops(buf):
        if 'nodot' in EXP or 'nostat' in EXP: return []
        L = []
        for s_ in range(2):
            for q in range(4):
                x = XFB[buf][s_] + q
                L += [f'v_and_b32 v{TMP+2*q}, 0xffff0000, v{x}', f'v_lshlrev_b32 v{TMP+2*q+1}, 16, v{x}']
            for q in range(4):
                L += [f'v_add_f32 v{RS}, v{RS}, v{TMP+2*q}', f'v_fmac_f32 v{RS+2}, v{TMP+2*q}, v{TMP+2*q}',
                      f'v_add_f32 v{RS+1}, v{RS+1}, v{TMP+2*q+1}', f'v_fmac_f32 v{RS+3}, v{TMP+2*q+1}, v{TMP+2*q+1}']
        return L
    def side_loads():
        k(f'v_lshlrev_b32 v2, 12, v{vH}')
        k(f'v_lshl_add_u32 v{vZ1}, v{vN}, 1, v2')
        k(f'v_add_u32 v{vZ2}, 0x2000, v{vZ1}')
        k(f's_and_b32 s{sT2}, s2, 3')
        k(f's_lshl_b32 s{sT2}, s{sT2}, 2')
        k(f's_add_u32 s{sT2}, s{sT2}, s{sRB}')
        for i in range(3):
            SKI = None
            if i == 2:
                SKI = k.newlabel('noswz3')
                k(f's_cmp_ge_u32 s2, 64')
                k(f's_cbranch_scc1 {SKI}')
            k(f's_lshr_b32 s{sT0}, s2, 2')
            if i: k(f's_add_u32 s{sT0}, s{sT0}, {64*i}')
            if i == 0:
                k(f's_cmp_lt_u32 s{sT0}, 32')
                k(f's_cselect_b32 s{SSZ}, s40, s48')
                k(f's_cselect_b32 s{SSZ+1}, s41, s49')
                k(f's_mov_b32 s{SSZ+2}, {1792*1024:#x}')
                k(f's_cselect_b32 s{SSZ+2}, {512*1024:#x}, s{SSZ+2}')
                k(f's_cselect_b32 s{sT1}, 0, 32')
                k(f's_and_b32 s{SSZ+1}, s{SSZ+1}, 0xffff')
                k(f's_mov_b32 s{SSZ+3}, 0x20000')
                k(f's_sub_u32 s{sT1}, s{sT0}, s{sT1}')
            else:
                if i == 1: k.srd(SSZ, 48, 49, 1792 * 1024)
                k(f's_sub_u32 s{sT1}, s{sT0}, 32')
            k(f's_lshl_b32 s{sT1}, s{sT1}, 14')
            k(f's_lshl_b32 s{sZD[i]}, s{sT2}, 6')
            k(f's_add_u32 s{sT1}, s{sT1}, s{sZD[i]}')
            for j in range(8):
                k(f'buffer_load_ushort v{SWZ[i]+j}, v{vZ1 if j < 4 else vZ2}, s[{SSZ}:{SSZ+3}], s{sT1} offen offset:{(j%4)*1024}')
            k(f's_lshl_b32 s{sZD[i]}, s{sT0}, 4')
            k(f's_add_u32 s{sZD[i]}, s{sZD[i]}, s{sT2}')
            k(f's_lshl_b32 s{sZD[i]}, s{sZD[i]}, 10')
            k(f's_add_u32 s{sZD[i]}, s{sZD[i]}, {WS_WF:#x}')
            if SKI: k.label(SKI)
    def side_stores():
        k(f'v_lshlrev_b32 v2, 4, v{vLANE}')
        for i in range(3):
            SKI = None
            if i == 2:
                SKI = k.newlabel('noswz3s')
                k(f's_cmp_ge_u32 s2, 64')
                k(f's_cbranch_scc1 {SKI}')
            for r in range(4):
                k(f'v_lshl_or_b32 v{68+r}, v{SWZ[i]+2*r+1}, 16, v{SWZ[i]+2*r}')
            k(f'buffer_store_dwordx4 v[68:71], v2, s[{SWS}:{SWS+3}], s{sZD[i]} offen {ST1}')
            k('s_nop 1')
            if SKI: k.label(SKI)
    k.vmwait(('W', 0))
    BAR()
    k.stamp()
    dmaW(('W', 3)); dmaW(('W', 4))
    def prod_iter(c):
        if c + 1 < 16:
            tw, tx = ('W', c + 1), ('X', (c + 1) // 2)
            iw = max([i for i, t in enumerate(k.vm) if t == tw], default=-1)
            ix = max([i for i, t in enumerate(k.vm) if t == tx], default=-1)
            if max(iw, ix) >= 0:
                k.vmwait(tw if iw > ix else tx)
        BAR()
        stat_reads(c & 1, c & 1)
        groups = []
        if 'nodma' not in EXP:
            if c % 2 == 0 and c // 2 + 2 < 8: groups += dmaX_groups(('X', c // 2 + 2))
            if c + 5 < 16: groups += dmaW_groups(('W', c + 5))
        ops = stat_ops((c - 1) & 1) if c >= 1 else []
        per = (len(ops) + max(len(groups), 1) - 1) // max(len(groups), 1)
        for gr in groups:
            emit_group(gr)
            for _ in range(per):
                if ops: k(ops.pop(0))
        for t in ops: k(t)
        if c == 14:
            side_loads()
        k('s_waitcnt lgkmcnt(0)')
    prod_iter(0)
    PL = k.newlabel('ploop')
    k(f's_mov_b32 s{sC}, 0')
    k.label(PL)
    n_before = len(k.lines)
    prod_iter(1); prod_iter(2)
    body12 = k.lines[n_before:]
    k(f's_add_u32 s{sC}, s{sC}, 1')
    k(f's_cmp_lt_u32 s{sC}, 5')
    k(f's_cbranch_scc1 {PL}')
    n_mark = len(k.lines)
    for c in range(3, 11, 2):
        n0_ = len(k.lines)
        prod_iter(c); prod_iter(c + 1)
        assert k.lines[n0_:] == body12, c
        del k.lines[n0_:]
    for c in range(11, 16):
        prod_iter(c)
    for t in stat_ops(15 & 1): k(t)
    k.stamp()
    k(f'v_add_f32 v{RS}, v{RS}, v{RS+1}')
    k(f'v_add_f32 v{RS+2}, v{RS+2}, v{RS+3}')
    k(f'v_mov_b32 v{RS+1}, v{RS}')
    k(f'v_mov_b32 v{RS+3}, v{RS+2}')
    k('s_nop 1')
    k(f'v_permlane32_swap_b32 v{RS}, v{RS+1}')
    k(f'v_permlane32_swap_b32 v{RS+2}, v{RS+3}')
    k('s_nop 1')
    k(f'v_add_f32 v5, v{RS}, v{RS+1}')
    k(f'v_add_f32 v6, v{RS+2}, v{RS+3}')
    k(f'v_mul_f32 v5, {fhex(1/512)}, v5')
    k(f'v_mul_f32 v6, {fhex(1/512)}, v6')
    k(f'v_fma_f32 v6, -v5, v5, v6')
    k(f'v_max_f32 v6, 0, v6')
    def rbf(r):
        k(f'v_cvt_pk_bf16_f32 v{r}, v{r}, v{r}')
        k(f'v_lshlrev_b32 v{r}, 16, v{r}')
    rbf(5); rbf(6)
    k(f'v_add_f32 v6, {fhex(1e-5)}, v6')
    rbf(6)
    k(f'v_sqrt_f32 v6, v6')
    k('s_nop 0')
    rbf(6)
    k(f'v_rcp_f32 v6, v6')
    k('s_nop 0')
    k(f'v_mul_f32 v5, v5, v6')
    k(f's_lshl_b32 s{sT0}, s{sRB}, 7')
    k(f'v_lshlrev_b32 v2, 2, v{vN}')
    k(f'v_add_u32 v2, s{sT0}, v2')
    k(f'v_add_u32 v2, {L_RSUM}, v2')
    k(f'ds_write_b32 v2, v6')
    k(f'ds_write_b32 v2, v5 offset:512')
    k('s_waitcnt lgkmcnt(0)')
    BAR()
    k.stamp()
    k(f's_lshr_b32 s{sT0}, s{sRB}, 1')
    k(f's_and_b32 s{sT1}, s{sRB}, 1')
    k(f's_lshl_b32 s{sTA}, s{sT0}, 1')
    k(f's_or_b32 s{sTA}, s{sTA}, s{sT1}')
    k(f's_xor_b32 s{sTB}, s{sTA}, 1')
    k(f's_lshl_b32 s{sSA}, s{sT1}, 1')
    k(f's_or_b32 s{sSA}, s{sSA}, s{sT0}')
    k(f's_xor_b32 s{sSB}, s{sSA}, 1')
    k(f's_lshl_b32 s{sT0}, s{sT0}, 15')
    k(f's_lshl_b32 s{sT1}, s{sT1}, 13')
    k(f's_add_u32 s{sT0}, s{sT0}, s{sT1}')
    k(f'v_lshlrev_b32 v6, 4, v{vLANE}')
    k(f'v_add_u32 v3, s{sT0}, v6')
    for q in range(8):
        k(f'ds_read_b128 {v(64+4*q if False else 28+0,4)}, v3') if False else None
    PA = ACC
    k('s_waitcnt vmcnt(0)')
    side_stores()
    NZ = k.newlabel('nozero')
    k(f's_cmp_ge_u32 s2, 32')
    k(f's_cbranch_scc1 {NZ}')
    k(f's_cmp_lg_u32 s{sRB}, 0')
    k(f's_cbranch_scc1 {NZ}')
    k(f's_lshl_b32 s{sT0}, s2, 8')
    k(f's_add_u32 s{sT0}, s{sT0}, {WS_CNT:#x}')
    k(f'v_lshlrev_b32 v2, 2, v{vLANE}')
    k(f'v_mov_b32 v4, 0')
    k(f'buffer_store_dword v4, v2, s[{SWS}:{SWS+3}], s{sT0} offen sc0 sc1')
    k.label(NZ)
    k('s_setprio 1')
    for q in range(8):
        k(f'ds_read_b128 {v(PA+4*q,4)}, v3 offset:{q*1024}')
    k(f'v_lshlrev_b32 v5, 4, v{vH}')
    k(f'v_add_u32 v5, {L_SW}, v5')
    k(f's_lshl_b32 s{sC}, s{sRBK}, 2')
    k(f's_mov_b32 s{sTA}, s{sTB}')
    k('s_waitcnt lgkmcnt(0)')
    k('s_branch k1_fepi')
    k.label(END)
    k('s_endpgm')
    return k.text(168, 100 if DBG else 80)

K2_CONST = 131072
K2_LDS = K2_CONST + 8192 + 256 + 16384
def gen_k2():
    k = Kern('k2_kernel')
    END = 'k2_end'
    SWS = 4
    sW, sHEAD, sQT, sIT, sT0, sT1, sFB = 8, 9, 10, 11, 12, 13, 14
    sKS, sVS, sLD = 22, 23, 24
    vLANE, vKA, vVA, vO16, vINC, vVA0 = 1, 2, 3, 4, 5, 6
    QF = 8
    NEGM = 16
    O = 32
    S = [48, 64]
    P = 80
    KF = [88, 92]
    VF = [96, 104]
    T = 112
    FA = 128
    FB = 144
    sFT0, sFT1, sFW, sA0, sA1, sA2, sTB, sNBP = 28, 29, 30, 31, 32, 33, 34, 35
    sFT0i, sFT1i, sFWi = 36, 37, 38
    sST, sSW, sWOB = 29, 39, 58
    UN = 8
    k('s_cmp_ge_u32 s2, 256')
    k(f's_cbranch_scc1 {END}')
    k.stamp_init('2' in DBG)
    k.stamp(); k.stamp(real=True)
    k('s_load_dwordx2 s[20:21], s[0:1], 72')
    k('v_lshrrev_b32 v2, 6, v0')
    k(f'v_and_b32 v{vLANE}, 63, v0')
    k(f'v_readfirstlane_b32 s{sW}, v2')
    k(f's_and_b32 s{sHEAD}, s2, 31')
    k(f's_lshr_b32 s{sQT}, s2, 5')
    k(f's_lshl_b32 s{sQT}, s{sQT}, 3')
    k(f'v_lshlrev_b32 v{vO16}, 4, v{vLANE}')
    k(f's_add_u32 s{sQT}, s{sQT}, s{sW}')
    k(f's_lshl_b32 s{sT0}, s{sHEAD}, 16')
    k(f's_lshl_b32 s{sT1}, s{sQT}, 10')
    k(f's_add_u32 s25, s{sT1}, s{sT0}')
    k(f's_lshl_b32 s{sLD}, s{sW}, 10')
    k(f's_add_u32 s{sT0}, s{sT0}, s{sLD}')
    k(f's_add_u32 s{sKS}, s{sT0}, {32*65536:#x}')
    k(f's_add_u32 s{sVS}, s{sT0}, {64*65536:#x}')
    k('s_waitcnt lgkmcnt(0)')
    k.srd(SWS, 20, 21, WS_SIZE)
    k(f'buffer_load_dwordx4 {v(QF,4)}, v{vO16}, s[{SWS}:{SWS+3}], s25 offen')
    def dma_round(i):
        k(f's_add_u32 m0, s{sLD}, {i*8192}')
        k(f's_add_u32 s26, s{sKS}, {i*8192}')
        k.vmop(f'buffer_load_dwordx4 v{vO16}, s[{SWS}:{SWS+3}], s26 offen lds', 'dma')
        k(f's_add_u32 m0, s{sLD}, {65536 + i*8192}')
        k(f's_add_u32 s26, s{sVS}, {i*8192}')
        k.vmop(f'buffer_load_dwordx4 v{vO16}, s[{SWS}:{SWS+3}], s26 offen lds', 'dma')
    dma_round(0)
    dma_round(1)
    k('v_lshlrev_b32 v7, 4, v0')
    k(f'v_add_u32 v7, {K2_CONST}, v7')
    for i in range(4):
        k(f'v_mov_b32 v{T+i}, 0')
    k('v_and_b32 v12, 31, v0')
    k('v_cmp_eq_u32 vcc, 0, v12')
    k(f'v_mov_b32 v13, 0x3f803f80')
    k('s_nop 0')
    for i in range(4):
        k(f'v_cndmask_b32 v{T+i}, v{T+i}, v13, vcc')
    k(f'ds_write_b128 v7, {v(T,4)}')
    for i in range(4):
        k(f'v_mov_b32 v{T+4+i}, 0')
    k(f'v_mov_b32 v7, {K2_CONST + 8192}')
    k(f'v_lshl_add_u32 v7, v{vLANE}, 2, v7')
    k(f'ds_write_b32 v7, v{T+4}')
    k(f'v_lshrrev_b32 v7, 5, v{vLANE}')
    k(f'v_lshlrev_b32 v7, 8, v7')
    k(f'v_and_b32 v12, 15, v{vLANE}')
    k(f'v_lshl_add_u32 v7, v12, 4, v7')
    k(f'v_add_u32 v{vVA0}, 0x10000, v7')
    k(f'v_mov_b32 v{vINC}, {UN*1024}')
    k(f'v_and_b32 v12, 31, v{vLANE}')
    k(f'v_mov_b32 v13, {K2_CONST + 16}')
    k(f'v_mov_b32 v14, 0')
    k('v_cmp_lt_u32 vcc, 15, v12')
    k('s_nop 1')
    k(f'v_cndmask_b32 v{vVA0}, v{vVA0}, v13, vcc')
    k(f'v_cndmask_b32 v{vINC}, v{vINC}, v14, vcc')
    k(f'v_mov_b32 v13, {K2_CONST}')
    k('v_cmp_eq_u32 vcc, 16, v12')
    k('s_nop 1')
    k(f'v_cndmask_b32 v{vVA0}, v{vVA0}, v13, vcc')
    k(f'v_subrev_u32 v14, 20, v12')
    k(f'v_mov_b32 v13, {K2_CONST + 64}')
    k('v_cmp_gt_u32 vcc, 8, v14')
    k('s_nop 1')
    k(f'v_cndmask_b32 v{vVA0}, v{vVA0}, v13, vcc')
    k(f's_mov_b32 s{sFB}, 0')
    k(f's_and_b32 s{sTB}, s2, 7')
    k(f's_lshr_b32 s{sT0}, s2, 3')
    k(f's_and_b32 s{sT0}, s{sT0}, 3')
    k(f's_lshl_b32 s{sT0}, s{sT0}, 3')
    k(f's_add_u32 s{sTB}, s{sTB}, s{sT0}')
    k(f's_lshr_b32 s{sNBP}, s2, 5')
    k(f's_lshr_b32 s{sT0}, s{sW}, 2')
    k(f's_mul_i32 s{sT0}, s{sT0}, 56')
    k(f's_add_u32 s{sT0}, s{sT0}, 32')
    k(f's_lshl_b32 s{sFT0i}, s{sTB}, 1')
    k(f's_bfe_u32 s{sT1}, s{sW}, 0x10001')
    k(f's_add_u32 s{sFT0i}, s{sFT0i}, s{sT1}')
    k(f's_mul_i32 s{sFT0i}, s{sFT0i}, 144')
    k(f's_add_u32 s{sFT0i}, s{sFT0i}, s{sT0}')
    k(f's_lshl_b32 s{sFT0i}, s{sFT0i}, 10')
    k(f's_add_u32 s{sFT0i}, s{sFT0i}, {WS_TF:#x}')
    k(f's_lshl_b32 s{sFWi}, s{sT0}, 4')
    k(f's_lshl_b32 s{sT1}, s{sNBP}, 1')
    k(f's_add_u32 s{sFWi}, s{sFWi}, s{sT1}')
    k(f's_and_b32 s{sT1}, s{sW}, 1')
    k(f's_add_u32 s{sFWi}, s{sFWi}, s{sT1}')
    k(f's_lshl_b32 s{sFWi}, s{sFWi}, 10')
    k(f's_add_u32 s{sFWi}, s{sFWi}, {WS_WF:#x}')
    k(f's_lshr_b32 s{sWOB}, s{sW}, 2')
    k(f's_lshl_b32 s{sWOB}, s{sWOB}, 8')
    k(f's_lshl_b32 s{sT1}, s{sNBP}, 1')
    k(f's_add_u32 s{sWOB}, s{sWOB}, s{sT1}')
    k(f's_and_b32 s{sT1}, s{sW}, 1')
    k(f's_add_u32 s{sWOB}, s{sWOB}, s{sT1}')
    k(f's_lshl_b32 s{sWOB}, s{sWOB}, 10')
    k(f's_add_u32 s{sWOB}, s{sWOB}, {WS_WF:#x}')
    k('s_waitcnt vmcnt(2) lgkmcnt(0)' if EARLY else 's_waitcnt vmcnt(0) lgkmcnt(0)')
    k('s_barrier')
    k.stamp()
    k(f'ds_read_b128 {v(KF[0],4)}, v{vO16}')
    k('s_waitcnt lgkmcnt(0)')
    k(MFMA(v(S[0],16), v(KF[0],4), v(QF,4), '0'))
    k('s_nop 15')
    k(f'v_max3_f32 v{T}, v{S[0]}, v{S[0]+1}, v{S[0]+2}')
    for i in range(3, 15, 2):
        k(f'v_max3_f32 v{T}, v{T}, v{S[0]+i}, v{S[0]+i+1}')
    k(f'v_max_f32 v{T}, v{T}, v{S[0]+15}')
    RESTART = k.newlabel('restart')
    k.label(RESTART)
    k(f'v_mov_b32 v{T+1}, v{T}')
    k(f'v_mov_b32 v{vKA}, v{vO16}')
    k(f'v_mov_b32 v{vVA}, v{vVA0}')
    k(f'v_permlane32_swap_b32 v{T}, v{T+1}')
    k(f'ds_read_b128 {v(KF[0],4)}, v{vKA}')
    k(f'ds_read_b128 {v(VF[0],4)}, v{vVA}')
    k(f'ds_read_b128 {v(VF[0]+4,4)}, v{vVA} offset:512')
    k(f'ds_read_b128 {v(KF[1],4)}, v{vKA} offset:1024')
    k(f'v_max_f32 v{T}, v{T}, v{T+1}')
    for i in range(16):
        k(f'v_sub_f32 v{NEGM+i}, 0, v{T}')
    for i in range(16):
        k(f'v_mov_b32 v{O+i}, 0')
    for i in range(8):
        k(f'v_mov_b32 v{VF[1]+i}, 0')
    for i in range(8):
        k(f'v_mov_b32 v{P+i}, 0')
    for i in range(12, 16):
        k(f'v_mov_b32 v{S[1]+i}, 0')
    for i in range(16):
        k(f'v_mov_b32 v{FA+i}, 0')
    k(f's_mov_b32 s{sFT0}, s{sFT0i}')
    k(f's_mov_b32 s{sST}, 1024')
    k(f's_mov_b32 s{sSW}, 16384')
    k(f's_mul_i32 s{sFW}, s{sFB}, 16384')
    k(f's_sub_u32 s{sFW}, s{sFWi}, s{sFW}')
    k('s_waitcnt lgkmcnt(0)')
    k(MFMA(v(S[0],16), v(KF[0],4), v(QF,4), v(NEGM,16)))
    k('s_nop 15')
    def body(dma, prio=None):
        dq = []
        if dma:
            for i in range(2, 8):
                dq.append(i)
        nolds = 'nolds' in EXP
        noffn = 'noffn' in EXP
        k.vm = ['r1', 'r1'] if (dma and EARLY) else []
        def MF(*a):
            if 'nomfma' not in EXP: k(MFMA(*a))
        def floadW(j):
            if noffn: return
            if j == 0 and dma: return
            r = FB + 8 * ((j - 1) % 8)
            k.vmop(f'buffer_load_dwordx4 {v(r+4,4)}, v{vO16}, s[{SWS}:{SWS+3}], s{sFW} offen', 'f')
            k(f's_add_u32 s{sFW}, s{sFW}, s{sSW}')
            if j == 0:
                k(f's_add_u32 s{sA0}, s{sWOB}, 16384')
                k(f's_cmp_lt_u32 s{sIT}, 7')
                k(f's_cselect_b32 s{sFW}, s{sFW}, s{sA0}')
                k(f's_cselect_b32 s{sFT0}, s{sFT0}, s{sWOB}')
                k(f's_cselect_b32 s{sST}, s{sST}, 0x8000')
                k(f's_cselect_b32 s{sSW}, s{sSW}, 0x8000')
        def floadT(q):
            if noffn: return
            r = FB + 8 * q
            k.vmop(f'buffer_load_dwordx4 {v(r,4)}, v{vO16}, s[{SWS}:{SWS+3}], s{sFT0} offen', 'f')
            k(f's_add_u32 s{sFT0}, s{sFT0}, s{sST}')
        def fmma(q):
            if noffn or dma: return
            r = FB + 8 * q
            k('s_waitcnt vmcnt(14)')
            MF(v(FA,16), v(r+4,4), v(r,4), v(FA,16))
        for j in range(UN):
            b = j & 1
            cur, nxt = S[b], S[b ^ 1]
            e = lambda i: k(f'v_exp_f32 v{cur+i}, v{cur+i}')
            c = lambda i: k(f'v_cvt_pk_bf16_f32 v{P+i}, v{cur+2*i}, v{cur+2*i+1}')
            cp = lambda i: k(f'v_cvt_pk_bf16_f32 v{P+i}, v{nxt+2*i}, v{nxt+2*i+1}')
            if dma and EARLY and j == 5:
                k.vmwait('r1')
                k('s_barrier')
            e(0)
            if prio is not None and (j == 0 or prio[j] != prio[j-1]):
                k(f's_setprio {prio[j]}')
            if j == UN - 1:
                k(f'v_add_u32 v{vVA}, v{vINC}, v{vVA}')
            cp(6); e(1); e(2)
            if WPOS == 0: floadW(j)
            cp(7); e(3); e(4)
            MF(v(O,16), v(VF[b^1]+4,4), v(P+4,4), v(O,16))
            if WPOS == 1: floadW(j)
            voff = ((j + 1) % UN) * 1024
            if not nolds: k(f'ds_read_b128 {v(VF[b^1],4)}, v{vVA} offset:{voff}')
            if WPOS == 2: floadW(j)
            c(0); e(5); e(6); c(1)
            if not nolds: k('s_waitcnt lgkmcnt(1)')
            e(7)
            MF(v(nxt,16), v(KF[b^1],4), v(QF,4), v(NEGM,16))
            if not nolds: k(f'ds_read_b128 {v(VF[b^1]+4,4)}, v{vVA} offset:{voff+512}')
            e(8); c(2); e(9); e(10); c(3); e(11)
            if dq and j < 6:
                dma_round(dq.pop(0))
            e(12)
            MF(v(O,16), v(VF[b],4), v(P,4), v(O,16))
            if not nolds: k(f'ds_read_b128 {v(KF[b],4)}, v{vKA} offset:{(j+2)*1024}')
            c(4); e(13)
            if j == UN - 1:
                k(f'v_add_u32 v{vKA}, {UN*1024}, v{vKA}')
            e(14); c(5)
            fmma(j)
            floadT(j)
            if j == UN - 1:
                k(f's_add_u32 s{sIT}, s{sIT}, 1')
                k(f's_cmp_lt_u32 s{sIT}, {64//UN}')
            e(15)
    FIRST = k.newlabel('first'); LOOP = k.newlabel('loop'); LOOP2 = k.newlabel('loop2'); AFTER = k.newlabel('after'); R2 = k.newlabel('r2')
    k(f's_mov_b32 s{sIT}, 0')
    k(f's_cmp_eq_u32 s{sFB}, 1')
    k(f's_cbranch_scc1 {LOOP}')
    nh = int(os.environ.get('NH', '6'))
    if nh >= 0:
        k(f's_cmp_ge_u32 s{sW}, 4')
        k(f's_cbranch_scc1 {R2}')
    body(True)
    k('s_waitcnt vmcnt(0)')
    k('s_barrier')
    k.label(LOOP)
    body(False)
    k(f's_cbranch_scc1 {LOOP}')
    if nh >= 0:
        k(f's_branch {AFTER}')
        k.label(R2)
        pr = [1] * nh + [0] * (UN - nh)
        body(True, pr)
        k('s_waitcnt vmcnt(0)')
        k('s_barrier')
        k.label(LOOP2)
        body(False, pr)
        k(f's_cbranch_scc1 {LOOP2}')
        k('s_setprio 0')
        k.label(AFTER)
    k('s_nop 1')
    k(f'v_cvt_pk_bf16_f32 v{P+6}, v{S[1]+12}, v{S[1]+13}')
    k(f'v_cvt_pk_bf16_f32 v{P+7}, v{S[1]+14}, v{S[1]+15}')
    k('s_nop 1')
    k(MFMA(v(O,16), v(VF[1]+4,4), v(P+4,4), v(O,16)))
    k('s_waitcnt lgkmcnt(0)')
    k('s_nop 15')
    k.stamp()
    k(f'v_mov_b32 v{T}, v{O+8}')
    k(f'v_mov_b32 v{T+1}, v{O+8}')
    k('s_nop 1')
    k(f'v_permlane32_swap_b32 v{T}, v{T+1}')
    k('s_nop 1')
    DONE = k.newlabel('done')
    k(f's_cmp_eq_u32 s{sFB}, 1')
    k(f's_cbranch_scc1 {DONE}')
    if EXP != ['']: k(f's_branch {DONE}')
    k(f'v_mov_b32 v{T+2}, {fhex(2.0**40)}')
    k(f'v_cmp_nlt_f32 vcc, v{T}, v{T+2}')
    k(f'v_mov_b32 v{T+1}, 0x207')
    for i in range(8):
        k(f'v_cmp_class_f32 s[26:27], v{O+i}, v{T+1}')
        k('s_or_b64 vcc, vcc, s[26:27]')
    k('s_cmp_eq_u64 vcc, 0')
    k(f's_cbranch_scc1 {DONE}')
    k(f's_mov_b32 s{sFB}, 1')
    k(f'v_mov_b32 v{vKA}, v{vO16}')
    k(f'v_mov_b32 v{T}, 0xff800000')
    k(f's_mov_b32 s{sIT}, 0')
    FL = k.newlabel('fbloop')
    k.label(FL)
    k(f'ds_read_b128 {v(KF[0],4)}, v{vKA}')
    k('s_waitcnt lgkmcnt(0)')
    k(MFMA(v(S[0],16), v(KF[0],4), v(QF,4), '0'))
    k('s_nop 15')
    for i in range(0, 16, 2):
        k(f'v_max3_f32 v{T}, v{T}, v{S[0]+i}, v{S[0]+i+1}')
    k(f'v_add_u32 v{vKA}, 0x400, v{vKA}')
    k(f's_add_u32 s{sIT}, s{sIT}, 1')
    k(f's_cmp_lt_u32 s{sIT}, 64')
    k(f's_cbranch_scc1 {FL}')
    k('s_waitcnt vmcnt(0)')
    for i in range(64):
        k(f'v_mov_b32 v{FB+i}, 0')
    k(f's_branch {RESTART}')
    k.label(DONE)
    k(f'v_rcp_f32 v{T}, v{T}')
    k('s_nop 0')
    for i in range(8):
        k(f'v_mul_f32 v{O+i}, v{O+i}, v{T}')
    for i in range(4):
        k(f'v_cvt_pk_bf16_f32 v{T+4+i}, v{O+2*i}, v{O+2*i+1}')
    k(f's_mul_i32 s{sT0}, s{sQT}, 144')
    k(f's_add_u32 s{sT0}, s{sT0}, s{sHEAD}')
    k(f's_lshl_b32 s{sT0}, s{sT0}, 10')
    k(f's_add_u32 s{sT0}, s{sT0}, {WS_TF:#x}')
    k(f'buffer_store_dwordx4 {v(T+4,4)}, v{vO16}, s[{SWS}:{SWS+3}], s{sT0} offen {OSF}')
    k.stamp(real=('r' in DBG))
    WOF, OF, XR = FB, 16, 80
    SX, SO, SD = 40, 44, 48
    sNB, sTT, sKH, sXO = 50, 51, 52, 53
    k('s_load_dwordx2 s[54:55], s[0:1], 0')
    k('s_load_dwordx2 s[56:57], s[0:1], 56')
    k(f's_load_dwordx2 s[{SD}:{SD+1}], s[0:1], 64')
    k(f's_and_b32 s{sNB}, s{sW}, 1')
    k(f's_bfe_u32 s{sTT}, s{sW}, 0x10001')
    k(f's_lshr_b32 s{sKH}, s{sW}, 2')
    k(f'buffer_load_dwordx4 {v(FB+60,4)}, v{vO16}, s[{SWS}:{SWS+3}], s{sFW} offen')
    vXO = T + 8
    k(f'v_and_b32 v{vXO}, 31, v{vLANE}')
    k(f'v_lshlrev_b32 v{vXO}, 10, v{vXO}')
    k(f'v_lshrrev_b32 v{vXO+1}, 5, v{vLANE}')
    k(f'v_lshl_add_u32 v{vXO}, v{vXO+1}, 3, v{vXO}')
    k(f's_lshl_b32 s{sXO}, s{sTB}, 1')
    k(f's_add_u32 s{sXO}, s{sXO}, s{sTT}')
    k(f's_lshl_b32 s{sXO}, s{sXO}, 15')
    k(f's_lshl_b32 s{sA1}, s{sNBP}, 7')
    k(f's_add_u32 s{sXO}, s{sXO}, s{sA1}')
    k(f's_lshl_b32 s{sA1}, s{sNB}, 6')
    k(f's_add_u32 s{sXO}, s{sXO}, s{sA1}')
    k(f's_lshl_b32 s{sA1}, s{sKH}, 5')
    k(f's_add_u32 s{sXO}, s{sXO}, s{sA1}')
    k('s_waitcnt lgkmcnt(0)')
    k.srd(SX, 54, 55, 2048 * 1024)
    k.srd(SO, 56, 57, 2048 * 1024)
    k(f'buffer_load_dwordx2 {v(XR,2)}, v{vXO}, s[{SX}:{SX+3}], s{sXO} offen')
    k(f'buffer_load_dwordx2 {v(XR+2,2)}, v{vXO}, s[{SX}:{SX+3}], s{sXO} offen offset:16')
    k('s_waitcnt vmcnt(3)')
    k('s_barrier')
    k.stamp()
    NOTW0 = k.newlabel('notw0'); POLL = k.newlabel('poll'); PD = k.newlabel('polldone')
    k(f's_cmp_lg_u32 s{sW}, 0')
    k(f's_cbranch_scc1 {NOTW0}')
    k(f's_lshr_b32 s{sA0}, s2, 5')
    k(f's_lshl_b32 s{sA0}, s{sA0}, 10')
    k(f's_add_u32 s{sA0}, s{sA0}, {WS_CNT:#x}')
    k(f'v_lshlrev_b32 v{T}, 8, v{vLANE}')
    k(f'v_mov_b32 v{T+1}, 1')
    k('s_mov_b64 exec, 15')
    k(f'buffer_atomic_add v{T+1}, v{T}, s[{SWS}:{SWS+3}], s{sA0} offen sc1')
    k('s_mov_b64 exec, 1')
    k(f's_lshl_b32 s{sA0}, s{sTB}, 8')
    k(f's_add_u32 s{sA0}, s{sA0}, {WS_CNT:#x}')
    k(f'v_mov_b32 v{T}, 0')
    k(f's_mov_b32 s{sA1}, 0')
    k.label(POLL)
    k(f'buffer_load_dword v{T+1}, v{T}, s[{SWS}:{SWS+3}], s{sA0} offen {POLLF}')
    k('s_waitcnt vmcnt(0)')
    k(f'v_readfirstlane_b32 s{sA2}, v{T+1}')
    k(f's_add_u32 s{sA1}, s{sA1}, 1')
    k(f's_cmp_ge_u32 s{sA2}, 32')
    k(f's_cbranch_scc1 {PD}')
    k(f's_cmp_lt_u32 s{sA1}, {1 << 16}')
    k(f's_sleep {SLP}')
    k(f's_cbranch_scc1 {POLL}')
    k.label(PD)
    k('s_mov_b64 exec, -1')
    k.label(NOTW0)
    k('s_barrier')
    k.stamp()
    if not ODMA:
        k(f's_lshl_b32 s{sA0}, s{sTB}, 1')
        k(f's_add_u32 s{sA0}, s{sA0}, s{sTT}')
        k(f's_mul_i32 s{sA0}, s{sA0}, 144')
        k(f's_lshl_b32 s{sA1}, s{sKH}, 4')
        k(f's_add_u32 s{sA0}, s{sA0}, s{sA1}')
        k(f's_lshl_b32 s{sA0}, s{sA0}, 10')
        k(f's_add_u32 s{sA0}, s{sA0}, {WS_TF:#x}')
        k.vm = []
        for j in range(16):
            if j and j % 4 == 0: k(f's_add_u32 s{sA0}, s{sA0}, 4096')
            k.vmop(f'buffer_load_dwordx4 {v(OF+4*j,4)}, v{vO16}, s[{SWS}:{SWS+3}], s{sA0} offen offset:{(j%4)*1024} {OLF}', j)
        for j in range(16):
            k.vmwait(j)
            k(MFMA(v(FA,16), v(WOF+4*j,4), v(OF+4*j,4), v(FA,16)))
    else:
        k(f's_lshl_b32 s{sA0}, s{sTB}, 1')
        k(f's_add_u32 s{sA0}, s{sA0}, s{sKH}')
        k(f's_mul_i32 s{sA0}, s{sA0}, 144')
        k(f's_and_b32 s{sA1}, s{sW}, 3')
        k(f's_lshl_b32 s{sA1}, s{sA1}, 3')
        k(f's_add_u32 s{sA0}, s{sA0}, s{sA1}')
        k(f's_lshl_b32 s{sA0}, s{sA0}, 10')
        k(f's_add_u32 s{sA0}, s{sA0}, {WS_TF:#x}')
        k(f's_lshl_b32 s{sA1}, s{sW}, 13')
        for j in range(8):
            k(f's_add_u32 m0, s{sA1}, {j*1024}')
            k(f's_add_u32 s{sA2}, s{sA0}, {j*1024}')
            k(f'buffer_load_dwordx4 v{vO16}, s[{SWS}:{SWS+3}], s{sA2} offen {OLF} lds')
        k(f's_lshl_b32 s{sA0}, s{sTT}, 15')
        k(f's_lshl_b32 s{sA1}, s{sKH}, 14')
        k(f's_add_u32 s{sA0}, s{sA0}, s{sA1}')
        k(f'v_add_u32 v{T}, s{sA0}, v{vO16}')
        k('s_waitcnt vmcnt(0)')
        k('s_barrier')
        for j in range(16):
            k(f'ds_read_b128 {v(OF+4*j,4)}, v{T} offset:{j*1024}')
            if j == 7: k('s_waitcnt lgkmcnt(4)')
        for j in range(16):
            k(f's_waitcnt lgkmcnt({min(15, 15 - j)})')
            k(MFMA(v(FA,16), v(WOF+4*j,4), v(OF+4*j,4), v(FA,16)))
    k('s_nop 15')
    k.stamp()
    RED = K2_CONST + 8192 + 256
    k(f's_and_b32 s{sA0}, s{sW}, 3')
    k(f's_lshl_b32 s{sA0}, s{sA0}, 12')
    k(f's_add_u32 s{sA0}, s{sA0}, {RED}')
    k(f'v_add_u32 v{T}, s{sA0}, v{vO16}')
    LO = k.newlabel('lo'); J = k.newlabel('j')
    R = FB
    k(f's_cmp_eq_u32 s{sKH}, 0')
    k(f's_cbranch_scc1 {LO}')
    k(f'ds_write_b128 v{T}, {v(FA,4)}')
    k(f'ds_write_b128 v{T}, {v(FA+4,4)} offset:1024')
    k('s_waitcnt lgkmcnt(0)')
    k('s_barrier')
    k(f'ds_read_b128 {v(R,4)}, v{T} offset:2048')
    k(f'ds_read_b128 {v(R+4,4)}, v{T} offset:3072')
    for i in range(8):
        k(f'v_mov_b32 v{R+8+i}, v{FA+8+i}')
    k(f's_branch {J}')
    k.label(LO)
    k(f'ds_write_b128 v{T}, {v(FA+8,4)} offset:2048')
    k(f'ds_write_b128 v{T}, {v(FA+12,4)} offset:3072')
    k('s_waitcnt lgkmcnt(0)')
    k('s_barrier')
    k(f'ds_read_b128 {v(R,4)}, v{T}')
    k(f'ds_read_b128 {v(R+4,4)}, v{T} offset:1024')
    for i in range(8):
        k(f'v_mov_b32 v{R+8+i}, v{FA+i}')
    k.label(J)
    for i in range(4):
        k(f'v_lshlrev_b32 v{R+16+2*i}, 16, v{XR+i}')
        k(f'v_and_b32 v{R+17+2*i}, 0xffff0000, v{XR+i}')
    for i in range(8):
        k(f'v_add_f32 v{R+8+i}, v{R+8+i}, v{R+16+i}')
    k('s_waitcnt lgkmcnt(0)')
    for i in range(8):
        k(f'v_add_f32 v{R+8+i}, v{R+8+i}, v{R+i}')
    for i in range(4):
        k(f'v_cvt_pk_bf16_f32 v{R+24+i}, v{R+8+2*i}, v{R+8+2*i+1}')
    k(f'buffer_store_dwordx2 {v(R+24,2)}, v{vXO}, s[{SO}:{SO+3}], s{sXO} offen')
    k(f'buffer_store_dwordx2 {v(R+26,2)}, v{vXO}, s[{SO}:{SO+3}], s{sXO} offen offset:16')
    k.stamp()
    if k.st_en:
        k('s_waitcnt vmcnt(0)')
    k.stamp(); k.stamp(real=True)
    k.stamp_dump(1, sW, vtmp=T+9+2)
    k.label(END)
    k('s_endpgm')
    return k.text(208, 100 if DBG else 64)

K3_LDS = 131072
def gen_k3():
    k = Kern('k3_kernel')
    END = 'k3_end'
    SWS, SX, SO = 4, 8, 12
    sW, sTB, sNBP, sT0, sT1, sTO, sWO, sNB, sTT, sKH, sXO, sL = 16, 17, 18, 19, 20, 21, 23, 30, 31, 32, 33, 34
    vLANE, vO16 = 1, 2
    ACC = 16
    BUF = 32
    PI = 96
    XR = 104
    k('s_cmp_ge_u32 s2, 256')
    k(f's_cbranch_scc1 {END}')
    k.stamp_init('3' in DBG)
    k.stamp(); k.stamp(real=True)
    k('s_load_dwordx2 s[28:29], s[0:1], 72')
    k('s_load_dwordx2 s[24:25], s[0:1], 0')
    k('s_load_dwordx2 s[26:27], s[0:1], 56')
    k('v_lshrrev_b32 v2, 6, v0')
    k(f'v_and_b32 v{vLANE}, 63, v0')
    k(f'v_readfirstlane_b32 s{sW}, v2')
    k(f's_and_b32 s{sTB}, s2, 7')
    k(f's_lshr_b32 s{sT0}, s2, 3')
    k(f's_and_b32 s{sT0}, s{sT0}, 3')
    k(f's_lshl_b32 s{sT0}, s{sT0}, 3')
    k(f's_add_u32 s{sTB}, s{sTB}, s{sT0}')
    k(f's_lshr_b32 s{sNBP}, s2, 5')
    k(f'v_lshlrev_b32 v{vO16}, 4, v{vLANE}')
    k(f's_and_b32 s{sNB}, s{sW}, 1')
    k(f's_bfe_u32 s{sTT}, s{sW}, 0x10001')
    k(f's_lshr_b32 s{sKH}, s{sW}, 2')
    k(f's_and_b32 s{sT0}, s{sW}, 3')
    k(f's_lshl_b32 s{sT0}, s{sT0}, 1')
    k(f's_lshl_b32 s{sT1}, s{sKH}, 4')
    k(f's_add_u32 s{sT0}, s{sT0}, s{sT1}')
    k(f's_mul_i32 s{sTO}, s{sTB}, {2*144}')
    k(f's_add_u32 s{sTO}, s{sTO}, s{sT0}')
    k(f's_lshl_b32 s{sTO}, s{sTO}, 10')
    k(f's_add_u32 s{sTO}, s{sTO}, {WS_TF:#x}')
    k(f's_lshl_b32 s{sWO}, s{sT0}, 4')
    k(f's_lshl_b32 s{sT1}, s{sNBP}, 1')
    k(f's_add_u32 s{sWO}, s{sWO}, s{sT1}')
    k(f's_lshl_b32 s{sWO}, s{sWO}, 10')
    k(f's_add_u32 s{sWO}, s{sWO}, {WS_WF:#x}')
    k(f's_lshl_b32 s{sL}, s{sT0}, 10')
    k('s_waitcnt lgkmcnt(0)')
    k.srd(SWS, 28, 29, WS_SIZE)
    for ph in range(2):
        for dk in range(2):
            ks = ph * 8 + dk
            for tt in range(2):
                k(f's_add_u32 m0, s{sL}, {tt*32768 + ks*1024}')
                k(f's_add_u32 s35, s{sTO}, {tt*144*1024 + ks*1024}')
                k.vmop(f'buffer_load_dwordx4 v{vO16}, s[{SWS}:{SWS+3}], s35 offen lds', ph)
            for nb in range(2):
                k(f's_add_u32 m0, s{sL}, {65536 + nb*32768 + ks*1024}')
                k(f's_add_u32 s35, s{sWO}, {ks*16384 + nb*1024}')
                k.vmop(f'buffer_load_dwordx4 v{vO16}, s[{SWS}:{SWS+3}], s35 offen lds', ph)
    k.srd(SX, 24, 25, 2048 * 1024)
    k.srd(SO, 26, 27, 2048 * 1024)
    k(f's_lshl_b32 s{sT0}, s{sTB}, 3')
    k(f's_add_u32 s{sT0}, s{sT0}, s{sNBP}')
    k(f's_lshl_b32 s{sT0}, s{sT0}, 2')
    k(f's_and_b32 s{sT1}, s{sW}, 3')
    k(f's_add_u32 s{sT0}, s{sT0}, s{sT1}')
    k(f's_lshl_b32 s{sT0}, s{sT0}, 12')
    k(f's_lshl_b32 s{sT1}, s{sKH}, 11')
    k(f's_add_u32 s{sT0}, s{sT0}, s{sT1}')
    k(f's_add_u32 s{sT0}, s{sT0}, {WS_PART:#x}')
    k.vmop(f'buffer_load_dwordx4 {v(PI,4)}, v{vO16}, s[{SWS}:{SWS+3}], s{sT0} offen', 'p')
    k.vmop(f'buffer_load_dwordx4 {v(PI+4,4)}, v{vO16}, s[{SWS}:{SWS+3}], s{sT0} offen offset:1024', 'p')
    k(f'v_and_b32 v3, 31, v{vLANE}')
    k(f'v_lshlrev_b32 v3, 10, v3')
    k(f'v_lshrrev_b32 v4, 5, v{vLANE}')
    k(f'v_lshl_add_u32 v3, v4, 3, v3')
    k(f's_lshl_b32 s{sXO}, s{sTB}, 1')
    k(f's_add_u32 s{sXO}, s{sXO}, s{sTT}')
    k(f's_lshl_b32 s{sXO}, s{sXO}, 15')
    k(f's_lshl_b32 s{sT0}, s{sNBP}, 7')
    k(f's_add_u32 s{sXO}, s{sXO}, s{sT0}')
    k(f's_lshl_b32 s{sT0}, s{sNB}, 6')
    k(f's_add_u32 s{sXO}, s{sXO}, s{sT0}')
    k(f's_lshl_b32 s{sT0}, s{sKH}, 5')
    k(f's_add_u32 s{sXO}, s{sXO}, s{sT0}')
    k.vmop(f'buffer_load_dwordx2 {v(XR,2)}, v3, s[{SX}:{SX+3}], s{sXO} offen', 'x')
    k.vmop(f'buffer_load_dwordx2 {v(XR+2,2)}, v3, s[{SX}:{SX+3}], s{sXO} offen offset:16', 'x')
    k(f's_lshl_b32 s{sT0}, s{sTT}, 15')
    k(f's_lshl_b32 s{sT1}, s{sKH}, 14')
    k(f's_add_u32 s{sT0}, s{sT0}, s{sT1}')
    k(f'v_add_u32 v5, s{sT0}, v{vO16}')
    k(f's_lshl_b32 s{sT0}, s{sNB}, 15')
    k(f's_add_u32 s{sT0}, s{sT0}, s{sT1}')
    k(f's_add_u32 s{sT0}, s{sT0}, 65536')
    k(f'v_add_u32 v6, s{sT0}, v{vO16}')
    for i in range(16):
        k(f'v_mov_b32 v{ACC+i}, 0')
    k.stamp()
    for ph in range(2):
        k.vmwait(ph)
        k('s_barrier')
        if ph == 0: k.stamp()
        for j in range(8):
            ks = ph * 8 + j
            k(f'ds_read_b128 {v(BUF+8*j,4)}, v5 offset:{ks*1024}')
            k(f'ds_read_b128 {v(BUF+8*j+4,4)}, v6 offset:{ks*1024}')
            if j == 6: k('s_waitcnt lgkmcnt(12)') if False else None
        for j in range(8):
            k(f's_waitcnt lgkmcnt({min(15, 14 - 2*j)})')
            k(MFMA(v(ACC,16), v(BUF+8*j+4,4), v(BUF+8*j,4), v(ACC,16)))
    k('s_nop 15')
    k.stamp()
    k('s_barrier')
    k(f's_and_b32 s{sT0}, s{sW}, 3')
    k(f's_lshl_b32 s{sT0}, s{sT0}, 12')
    k(f'v_add_u32 v5, s{sT0}, v{vO16}')
    LO = k.newlabel('lo'); J = k.newlabel('j')
    k(f's_cmp_eq_u32 s{sKH}, 0')
    k(f's_cbranch_scc1 {LO}')
    k(f'ds_write_b128 v5, {v(ACC,4)}')
    k(f'ds_write_b128 v5, {v(ACC+4,4)} offset:1024')
    k('s_waitcnt lgkmcnt(0)')
    k('s_barrier')
    k(f'ds_read_b128 {v(BUF,4)}, v5 offset:2048')
    k(f'ds_read_b128 {v(BUF+4,4)}, v5 offset:3072')
    for i in range(8):
        k(f'v_mov_b32 v{BUF+8+i}, v{ACC+8+i}')
    k(f's_branch {J}')
    k.label(LO)
    k(f'ds_write_b128 v5, {v(ACC+8,4)} offset:2048')
    k(f'ds_write_b128 v5, {v(ACC+12,4)} offset:3072')
    k('s_waitcnt lgkmcnt(0)')
    k('s_barrier')
    k(f'ds_read_b128 {v(BUF,4)}, v5')
    k(f'ds_read_b128 {v(BUF+4,4)}, v5 offset:1024')
    for i in range(8):
        k(f'v_mov_b32 v{BUF+8+i}, v{ACC+i}')
    k.label(J)
    k('s_waitcnt vmcnt(0)')
    for i in range(4):
        k(f'v_lshlrev_b32 v{BUF+16+2*i}, 16, v{XR+i}')
        k(f'v_and_b32 v{BUF+17+2*i}, 0xffff0000, v{XR+i}')
    for i in range(8):
        k(f'v_add_f32 v{PI+i}, v{PI+i}, v{BUF+16+i}')
        k(f'v_add_f32 v{PI+i}, v{PI+i}, v{BUF+8+i}')
    k('s_waitcnt lgkmcnt(0)')
    for i in range(8):
        k(f'v_add_f32 v{PI+i}, v{PI+i}, v{BUF+i}')
    for i in range(4):
        k(f'v_cvt_pk_bf16_f32 v{BUF+24+i}, v{PI+2*i}, v{PI+2*i+1}')
    k(f'buffer_store_dwordx2 {v(BUF+24,2)}, v3, s[{SO}:{SO+3}], s{sXO} offen')
    k(f'buffer_store_dwordx2 {v(BUF+26,2)}, v3, s[{SO}:{SO+3}], s{sXO} offen offset:16')
    k.stamp()
    if k.st_en:
        k('s_waitcnt vmcnt(0)')
    k.stamp(); k.stamp(real=True)
    k.stamp_dump(2, sW, vtmp=3)
    k.label(END)
    k('s_endpgm')
    return k.text(112, 100 if DBG else 40)

HEADER = open('parallel_sum__mha_block__dense_activation_mish__prompt.s.ref').read().split('; Override launch')[0]

DESC = """; Generated by a hand-written generator script (gen/gen.py).  Two launches:
"""
def main(out):
    t1, d1 = gen_k1()
    t2, d2 = gen_k2()
    s = HEADER
    s += f'; @launch kernel=k1_kernel grid=(256,1,1) block=(768,1,1) lds={K1_LDS}\n'
    s += f'; @launch kernel=k2_kernel grid=(256,1,1) block=(512,1,1) lds={K2_LDS}\n'
    s += DESC
    s += '.amdgcn_target "amdgcn-amd-amdhsa--gfx950"\n'
    s += t1 + t2 + d1 + d2
    open(out, 'w').write(s)

if __name__ == '__main__':
    main(sys.argv[1] if len(sys.argv) > 1 else 'parallel_sum__mha_block__dense_activation_mish__prompt.s')
```
